```python
import torch

def _softmax(x, axis=-1):
    return torch.softmax(x, dim=axis)
def _gelu(x):
    return torch.nn.functional.gelu(x, approximate="tanh")
def _silu(x):
    return torch.nn.functional.silu(x)
def _sigmoid(x):
    return torch.sigmoid(x)
def _layernorm(x, axis=-1, eps=1e-5):
    m = x.mean(dim=axis, keepdim=True)
    v = x.var(dim=axis, keepdim=True, unbiased=False)
    return (x - m) / torch.sqrt(v + eps)
def _scatter_add(tgt, idx, src, axis=0):
    return tgt.clone().index_add_(axis, idx, src)
def _segment_sum(src, seg, n):
    out = torch.zeros((n,) + src.shape[1:], dtype=src.dtype)
    return out.index_add_(0, seg, src)
def _pad(x, pw):
    flat = tuple(v for pair in reversed(pw) for v in pair)
    return torch.nn.functional.pad(x, flat)

kernel_name = 'gated_mix__linear_kernel_hedgehog__dense_activation_mish__prompt'

def setup_inputs():

    _w = (lambda a: (lambda t: t.to(torch.bfloat16) if t.is_floating_point() else t)(torch.as_tensor(a)))
    def _A_setup():
        B, S, D, H = 1, 2048, 448, 16
        Dh = D // H
        return {
            "x": _w((lambda *s: torch.randn(*s, dtype=torch.bfloat16) * 0.05)(B, S, D)),
            "wqkv": _w((lambda *s: torch.randn(*s, dtype=torch.bfloat16) * 0.8)(D, 3 * D)),
            "w_phi": _w((lambda *s: torch.randn(*s, dtype=torch.bfloat16) * 0.8)(H, Dh, Dh) * (Dh ** -0.5)),
            "wo": _w((lambda *s: torch.randn(*s, dtype=torch.bfloat16) * 0.05)(D, D)),
        }
    _A_in = _A_setup()

    def _B_setup():
        B, S, D, F = 1, 2048, 448, 1792
        return {
            "x": _w((lambda *s: torch.randn(*s, dtype=torch.bfloat16) * 0.05)(B, S, D)),
            "w1": _w((lambda *s: torch.randn(*s, dtype=torch.bfloat16) * 6.4)(D, F) * (D ** -0.5)),
            "b1": _w((lambda *s: torch.randn(*s, dtype=torch.bfloat16) * 0.1)(F)),
            "w2": _w((lambda *s: torch.randn(*s, dtype=torch.bfloat16) * 0.1)(F, D) * (F ** -0.5)),
        }
    _B_in = _B_setup()

    return {
        "A_x": _A_in["x"],
        "A_wqkv": _A_in["wqkv"],
        "A_w_phi": _A_in["w_phi"],
        "A_wo": _A_in["wo"],
        "B_x": _B_in["x"],
        "B_w1": _B_in["w1"],
        "B_b1": _B_in["b1"],
        "B_w2": _B_in["w2"],
        "gate_w": _w((lambda *s: torch.randn(*s, dtype=torch.bfloat16) * 0.05)(448) * 16.0),
    }

def reference(A_x, A_wqkv, A_w_phi, A_wo, B_x, B_w1, B_b1, B_w2, gate_w):
    def _A_ref(x, wqkv, w_phi, wo):
        B, S, D = x.shape
        H = 16; Dh = D // H
        qkv = (lambda x, *d: x.permute(*d))((x @ wqkv).reshape(B, S, 3, H, Dh), 2, 0, 3, 1, 4)
        q, k, v = qkv[0], qkv[1], qkv[2]
        pq = torch.einsum("bhsd,hdf->bhsf", q, w_phi)
        pk = torch.einsum("bhsd,hdf->bhsf", k, w_phi)
        phi_q = torch.concatenate([_softmax(pq, axis=-1), _softmax(-pq, axis=-1)], axis=-1)
        phi_k = torch.concatenate([_softmax(pk, axis=-1), _softmax(-pk, axis=-1)], axis=-1)
        kv = torch.einsum("bhsf,bhsd->bhfd", phi_k, v)
        z  = torch.einsum("bhsf->bhf", phi_k)
        num = torch.einsum("bhqf,bhfd->bhqd", phi_q, kv)
        den = torch.einsum("bhqf,bhf->bhq", phi_q, z)[..., None] + 1e-6
        o = num / den
        return (lambda x, *d: x.permute(*d))(o, 0, 2, 1, 3).reshape(B, S, D) @ wo

    def _B_ref(x, w1, b1, w2):
        h = torch.einsum("bsd,df->bsf", x, w1) + b1
        sp = torch.log1p(torch.exp(-torch.abs(h))) + torch.where(h > 0, h, torch.zeros_like(h))
        act = h * torch.tanh(sp)
        return torch.einsum("bsf,fd->bsd", act, w2)

    x = A_x
    g = _sigmoid((x * gate_w).sum(-1, keepdims=True))
    a = _A_ref(x, A_wqkv, A_w_phi, A_wo)
    b = _B_ref(x, B_w1, B_b1, B_w2)
    return g * a + (1 - g) * b
```

```python
import re, copy

def parse_reg(tok):
    t = tok.strip()
    t = re.sub(r'^-', '', t)
    m = re.match(r'^(?:abs\(|\|)(.*?)(?:\)|\|)$', t)
    if m: t = m.group(1)
    m = re.match(r'^([vs])(\d+)$', t)
    if m: return [(m.group(1), int(m.group(2)))]
    m = re.match(r'^([vs])\[(\d+):(\d+)\]$', t)
    if m: return [(m.group(1), i) for i in range(int(m.group(2)), int(m.group(3))+1)]
    if t in ('vcc',): return [('x','vcc')]
    if t in ('exec',): return [('x','exec')]
    if t == 'm0': return [('x','m0')]
    return []

TRANS = ('v_exp_f32','v_log_f32','v_rcp_f32','v_rsq_f32','v_sqrt_f32','v_sin_f32','v_cos_f32')

def split_ops(s):
    out=[]; depth=0; cur=''
    for ch in s:
        if ch in '[(': depth+=1
        if ch in '])': depth-=1
        if ch==',' and depth==0: out.append(cur.strip()); cur=''
        else: cur+=ch
    if cur.strip(): out.append(cur.strip())
    return out

class Ins:
    def __init__(self, text):
        self.text = text
        parts = text.split(None,1)
        self.mn = parts[0]
        rest = parts[1] if len(parts)>1 else ''
        ops = split_ops(rest)
        self.mods = ''
        if ops:
            l = ops[-1].split(None,1)
            ops[-1] = l[0]
            if len(l)>1: self.mods = l[1]
        self.ops = ops
        mn = self.mn
        R = [parse_reg(o) for o in ops]
        self.w=[]; self.r=[]
        self.kind='other'
        flat = lambda L: [x for l in L for x in l]
        if mn.startswith('v_mfma'):
            self.kind='mfma'; self.w=R[0]; self.r=flat(R[1:4]); self.A=R[1]; self.B=R[2]; self.C=R[3]
            self.passes = 8 if '32x32x16' in mn else 4
        elif mn.startswith('v_'):
            self.kind='valu'
            base = re.sub(r'_e(32|64)$','',mn)
            self.trans = base in TRANS
            if mn.startswith('v_permlane') and 'swap' in mn:
                self.w=flat(R[0:2]); self.r=flat(R[0:2]); self.perm=True
            elif mn.startswith('v_cmp'):
                self.w=R[0]; self.r=flat(R[1:])
            elif mn.startswith(('v_add_co','v_sub_co','v_addc_co','v_subb_co')):
                self.w=flat(R[0:2]); self.r=flat(R[2:])
            elif mn.startswith(('v_fmac','v_dot2c','v_pk_fmac','v_writelane')):
                self.w=R[0]; self.r=flat(R)
            elif mn=='v_nop': pass
            else:
                self.w=R[0]; self.r=flat(R[1:])
        elif mn.startswith('ds_'):
            self.kind='ds'
            if mn.startswith(('ds_read','ds_bpermute','ds_permute','ds_swizzle')):
                self.w=R[0]; self.r=flat(R[1:])
            else:
                self.r=flat(R)
        elif mn.startswith(('buffer_','global_')):
            self.kind='vmem'
            self.lds = bool(re.search(r'\blds\b', self.mods))
            if mn.startswith('buffer_load'):
                if self.lds: self.r=flat(R)+[('x','m0')]
                else: self.w=R[0]; self.r=flat(R[1:])
            elif mn.startswith('global_load'):
                self.w=R[0]; self.r=flat(R[1:])
            elif mn.startswith('buffer_store'):
                self.r=flat(R); self.data=R[0]
            elif mn.startswith('global_store'):
                self.r=flat(R); self.data=R[1]
            elif mn.startswith(('buffer_inv','buffer_wbl2')): pass
            else:
                self.r=flat(R)
        elif mn.startswith('s_'):
            self.kind='salu'
            if mn.startswith(('s_load','s_memtime','s_memrealtime','s_buffer_load')):
                self.kind='smem'; self.w=R[0]; self.r=flat(R[1:])
            elif mn.startswith(('s_cmp','s_waitcnt','s_barrier','s_branch','s_cbranch','s_nop','s_endpgm','s_setprio','s_sleep','s_bitcmp')):
                self.r=flat(R)
            elif 'saveexec' in mn:
                self.w=R[0]+[('x','exec')]; self.r=flat(R[1:])
            else:
                self.w=R[0]; self.r=flat(R[1:])

class K:
    def __init__(self):
        self.lines=[]
        self.reset_state()
        self.nins=0
    def reset_state(self):
        self.t=0
        self.vm=[]
        self.lg=[]
        self.smem_pending=set()
        self.last={}
    def state(self): return copy.deepcopy((self.t,self.vm,self.lg,self.smem_pending,self.last))
    def set_state(self, s): self.t,self.vm,self.lg,self.smem_pending,self.last = copy.deepcopy(s)
    def raw(self, text): self.lines.append(text)
    def c(self, text): self.lines.append('    ; '+text)
    def label(self, name): self.lines.append(name+':')
    def _emit(self, text, states=1):
        self.lines.append('    '+text); self.t+=states; self.nins+=1
    def nop(self, n):
        while n>0:
            k=min(n,16); self._emit(f's_nop {k-1}', k); n-=k
    def waitcnt(self, vm=None, lg=None):
        parts=[]
        if vm is not None and len(self.vm)>vm:
            vm=min(vm,63); parts.append(f'vmcnt({vm})'); self.vm=self.vm[len(self.vm)-vm:] if vm>0 else []
        if lg is not None and (len(self.lg)>lg or (lg==0 and self.smem_pending)):
            lg=min(lg,15); parts.append(f'lgkmcnt({lg})'); self.lg=self.lg[len(self.lg)-lg:] if lg>0 else []
            if lg==0: self.smem_pending=set()
        if parts: self._emit('s_waitcnt '+' '.join(parts))
    def force_wait(self, vm=None, lg=None):
        parts=[]
        if vm is not None:
            parts.append(f'vmcnt({vm})'); self.vm=self.vm[max(0,len(self.vm)-vm):] if vm>0 else []
        if lg is not None:
            parts.append(f'lgkmcnt({lg})'); self.lg=self.lg[max(0,len(self.lg)-lg):] if lg>0 else []
            if lg==0: self.smem_pending=set()
        self._emit('s_waitcnt '+' '.join(parts))
    def wait_tag(self, tag):
        idx=[i for i,(d,t) in enumerate(self.vm) if t==tag]
        if idx: self.waitcnt(vm=len(self.vm)-1-max(idx))
    def I(self, text, tag=None):
        for line in text.strip().split('\n'):
            line=line.strip()
            if line: self._I(line, tag)
    def _I(self, text, tag):
        ins=Ins(text)
        touched=set(ins.r)|set(ins.w)
        vm=None; lg=None
        for i,(d,t) in enumerate(self.vm):
            if tag=='pf' and t=='pf' and not (d & set(ins.r)): continue
            if d & touched: vm=len(self.vm)-1-i
        for i,(d,t) in enumerate(self.lg):
            if d & touched: lg=len(self.lg)-1-i
        if self.smem_pending & touched: lg=0
        if lg is not None and self.smem_pending: lg=0
        if vm is not None or lg is not None: self.waitcnt(vm,lg)
        need=0
        def req(kind, regs, n):
            nonlocal need
            for r in regs:
                tt=self.last.get((kind,r))
                if tt is not None:
                    need=max(need, n-(self.t-tt-1))
        vr=[r for r in ins.r if r[0]=='v']; vw=[r for r in ins.w if r[0]=='v']
        sr=[r for r in ins.r if r[0]!='v']
        if ins.kind=='mfma':
            req('valu_w', vr, 2)
            for p,n in ((8,12),(4,8)):
                req(f'mfma{p}_w', ins.A+ins.B, n)
            for p,n in ((8,10),(4,6)):
                for r in ins.C+ins.w:
                    tt=self.last.get((f'mfma{p}_w',r))
                    if tt is not None and self.last.get(('mfma_dst',r))!=(tuple(ins.C),ins.passes):
                        need=max(need,n-(self.t-tt-1))
            req('exec_valu_w',[('x','exec')],4)
        elif ins.kind=='valu':
            for p,n in ((8,12),(4,8)): req(f'mfma{p}_w', vr+vw, n)
            for p,n in ((8,7),(4,3)): req(f'mfma{p}_c', vw, n)
            if not ins.trans: req('trans_w', vr, 1)
            if getattr(ins,'perm',False): req('valu_w', vr, 2)
            if ins.mn.startswith(('v_readfirstlane','v_readlane')): req('valu_w', vr, 1)
            if 'dpp' in ins.mods or 'row_' in ins.mods or 'quad_perm' in ins.mods: req('valu_w', vr, 2)
            req('valu_sw', sr, 2)
            if ins.mn.startswith(('v_readlane','v_writelane')): req('valu_sw', sr, 4)
            req('store_data', vw, 2)
            req('opsel_w', vr+vw, 1)
        elif ins.kind in ('vmem','ds'):
            for p,n in ((8,12),(4,8)): req(f'mfma{p}_w', vr+vw, n)
            if ins.kind=='vmem': req('valu_sw', sr, 5)
            req('m0_w', [r for r in sr if r==('x','m0')], 1)
            req('store_data', vw, 1)
        elif ins.kind in ('salu','smem'):
            req('valu_sw', sr, 1)
        if need>0: self.nop(need)
        t0=self.t
        if ins.mn=='s_nop': self._emit(text, int(ins.ops[0])+1)
        else: self._emit(text)
        if ins.kind=='mfma':
            for r in ins.w:
                for p in (4,8): self.last.pop((f'mfma{p}_w',r),None)
                self.last[(f'mfma{ins.passes}_w',r)]=t0; self.last[('mfma_dst',r)]=(tuple(ins.w),ins.passes)
                self.last.pop(('valu_w',r),None)
            for r in ins.C: self.last[(f'mfma{ins.passes}_c',r)]=t0
        elif ins.kind=='valu':
            for r in ins.w:
                if r[0]=='v':
                    self.last[('valu_w',r)]=t0
                    if ins.trans: self.last[('trans_w',r)]=t0
                    else: self.last.pop(('trans_w',r),None)
                    if 'sdwa' in ins.mn or 'dst_sel' in ins.mods: self.last[('opsel_w',r)]=t0
                else:
                    self.last[('valu_sw',r)]=t0
                    if r==('x','exec'): self.last[('exec_valu_w',r)]=t0
        elif ins.kind=='vmem':
            if not ins.mn.startswith(('buffer_inv','buffer_wbl2')) or True:
                self.vm.append((set(ins.w),tag))
            if hasattr(ins,'data') and len(ins.data)>2:
                for r in ins.data: self.last[('store_data',r)]=t0
        elif ins.kind=='ds':
            self.lg.append((set(ins.w),tag))
        elif ins.kind=='smem':
            self.smem_pending|=set(ins.w)|{('x','smem')}
        elif ins.kind=='salu':
            for r in ins.w:
                if r==('x','m0'): self.last[('m0_w',r)]=t0
                self.last.pop(('valu_sw',r),None)
            if ins.mn=='s_waitcnt':
                raise Exception('use waitcnt()/force_wait()')
    def text(self): return '\n'.join(self.lines)+'\n'

def interleave(main, extra, start=0, end=None):
    if not extra: return list(main)
    n=len(main); end=n if end is None else end
    out=[]; k=0
    for i,m in enumerate(main):
        out.append(m)
        if start<=i<end:
            tgt=(i-start+1)*len(extra)//(end-start)
            while k<tgt: out.append(extra[k]); k+=1
    while k<len(extra): out.append(extra[k]); k+=1
    return out
```

```python
import sys, struct
from emit import K, interleave
NAME = "gated_mix__linear_kernel_hedgehog__dense_activation_mish__prompt"
TS = '--ts' in sys.argv
OUT = [a for a in sys.argv[1:] if not a.startswith('--')][0]

def f2u(x): return struct.unpack('<I', struct.pack('<f', x))[0]
LOG2E = 1.4426950408889634; LN2 = 0.6931471805599453

WS_EPOCH=0; WS_FA=0x1000; WS_FO=0x5000; WS_G=0x10000; WS_P2=0x30000; WS_P1=0x100000; WS_O=0x500000; WS_ACT=0x800000; WS_TS=0xF000000
WR=0; XR=96*1024; LDS_BYTES=160*1024
SPIN=200000

sX='s[8:11]'; sW='s[12:15]'; sWS='s[16:19]'; sW2='s[20:23]'; sWO='s[24:27]'; sOUT='s[28:31]'; sM='s[32:35]'; sG='s[36:39]'
sL2='s[40:41]'
sLn='s[42:43]'
sWave='s44'; sTB='s45'; sRole='s46'; sT64='s47'; sCT='s48'; sTag='s49'; sTag2='s50'
sLW='s51'
sT0='s52'; sT1='s53'; sT2='s54'; sT3='s55'
sMask='s[56:57]'; sHi='s[58:59]'
sW2b='s60'; sWOb='s61'; sL4='s62'; sL2k='s63'
sSpin='s88'; sH0='s89'; sA0='s90'; sA1='s91'
sTS=92
P = lambda i: 64+2*i

def v(a,n=1): return f'v{a}' if n==1 else f'v[{a}:{a+n-1}]'

k=K()
nlab=[0]
def newlab(p):
    nlab[0]+=1; return f'L_{p}_{nlab[0]}'

def srd(dst, ptr, size):
    d=int(dst[2:dst.index(':')])
    k.I(f's_mov_b32 s{d}, s{P(ptr)}\ns_mov_b32 s{d+1}, s{P(ptr)+1}\ns_mov_b32 s{d+2}, {size}\ns_mov_b32 s{d+3}, 0x20000')

NSTAMP=8
def stamp(i):
    if not TS: return
    k.I('s_memrealtime s[100:101]'); k.force_wait(lg=0); k.I(f's_mov_b32 s{sTS+i}, s100')

def dump_stamps():
    if not TS: return
    lab=newlab('ts')
    k.I(f's_cmp_lg_u32 {sWave}, 0'); k.I(f's_cbranch_scc1 {lab}')
    k.I('s_mov_b64 exec, 1')
    k.I(f's_lshl_b32 {sT0}, s2, 6\ns_add_u32 {sT0}, {sT0}, {WS_TS}\nv_mov_b32 v1, 0\nv_mov_b32 v3, 0')
    for i in range(NSTAMP):
        k.I(f'v_mov_b32 v2, s{sTS+i}')
        k.I(f'buffer_store_dwordx2 v[2:3], v1, {sWS}, {sT0} offen offset:{8*i}')
    k.label(lab)

vLane=0; vW=4; vX=5; vW2=6; vL16=7
vA=8
vB=16
vC=20
WREG=24
FB=152
FA=160
ACC=192

def dma(voff, srd_, soff, ldsbase, ldsconst, tag, masked=False):
    L=[]
    L.append(f's_add_u32 m0, {ldsbase}, {ldsconst}')
    if isinstance(soff,int): L.append(f's_mov_b32 {sT0}, {soff}')
    else: L.append(f's_add_u32 {sT0}, {soff[0]}, {soff[1]}')
    if masked: L.append(f's_mov_b64 exec, {sMask}')
    L.append(f'buffer_load_dwordx4 {v(voff)}, {srd_}, {sT0} offen lds')
    if masked: L.append('s_mov_b64 exec, -1')
    return ('\n'.join(L), tag)

def s1_dmas(s, wstride, masked=False):
    slot=s%3; L=[]
    for m in range(2): L.append(dma(vX, sX, 64*m*896+128*s, sLW, XR+slot*16384+m*8192, f's{s}'))
    for m in range(4): L.append(dma(vW, sW, (64*s+16*m)*wstride, sLW, WR+slot*32768+m*8192, f's{s}', masked))
    return L

PSLOT=[1,2,0,1,2,0]
def ks_lds(ks):
    p,i=divmod(ks,3); s=PSLOT[p]
    if i<2: return ('W', WR+s*32768+i*2048)
    return ('X', s*16384)
def s2_dmas(p):
    L=[]
    for ks in range(3*p,3*p+3):
        kind,off=ks_lds(ks)
        base = sL4 if kind=='W' else sL2k
        for h in range(2):
            if ks<14: L.append(dma(vW2, sW2, (sW2b,(16*ks+8*h)*896), base, off+1024*h, f'p{p}'))
            else:
                hd,s=divmod(ks-14,2)
                L.append(dma(vW2, sWO, (sWOb,(28*hd+16*s+8*h)*896), base, off+1024*h, f'p{p}'))
    return L
vS2=8
def s2_addr_setup(tmp):
    k.I(f'''v_lshrrev_b32 {v(tmp)}, 5, {v(vLane)}
    v_lshlrev_b32 {v(tmp)}, 9, {v(tmp)}
    v_bfe_u32 {v(tmp+1)}, {v(vLane)}, 2, 2
    v_lshl_add_u32 {v(tmp)}, {v(tmp+1)}, 7, {v(tmp)}
    v_lshrrev_b32 {v(tmp+1)}, 1, {v(tmp+1)}
    v_lshl_add_u32 {v(tmp)}, {v(tmp+1)}, 6, {v(tmp)}
    v_bfe_u32 {v(tmp+1)}, {v(vLane)}, 4, 1
    v_lshl_add_u32 {v(tmp)}, {v(tmp+1)}, 5, {v(tmp)}
    v_and_b32 {v(tmp+1)}, 3, {v(vLane)}
    v_lshl_add_u32 {v(tmp)}, {v(tmp+1)}, 3, {v(tmp)}
    v_xor_b32 {v(tmp+1)}, 64, {v(tmp)}
    v_add_u32 {v(vS2)}, {sL4}, {v(tmp)}
    v_add_u32 {v(vS2+1)}, {sL4}, {v(tmp+1)}
    v_add_u32 {v(vS2+2)}, 0x10000, {v(vS2)}
    v_add_u32 {v(vS2+3)}, 0x10000, {v(vS2+1)}
    v_add_u32 {v(vS2+4)}, {sL2k}, {v(tmp)}
    v_add_u32 {v(vS2+5)}, {sL2k}, {v(tmp+1)}''')
def wreg(ks,ct): return WREG+8*ks+4*ct
def s2_reads(p):
    L=[]
    for ks in range(3*p,3*p+3):
        kind,off=ks_lds(ks)
        if kind=='W':
            a=vS2
            if off>=65536: a+=2; off-=65536
        else: a=vS2+4
        for ct in range(2):
            for i in range(2):
                L.append(f'ds_read_b64_tr_b16 {v(wreg(ks,ct)+2*i,2)}, {v(a+ct)} offset:{off+1024*i}')
    return L

def emit_list(L):
    for x in L:
        if isinstance(x,tuple): k.I(x[0],x[1])
        else: k.I(x)

def gemm1(NA, NB, wstride, tail, masked=False, gate=None, zero_c=True):
    if NB==1: fa=lambda b,t: FA+16*b+4*t; fb=lambda b,t: FB+4*b
    else:     fa=lambda b,t: FB+4*b;      fb=lambda b,t: FA+16*b+4*t
    def reads(g):
        s,ks=divmod(g,4); slot=s%3; b=g&1; A=[];B=[]
        for t in range(NB):
            B.append(f'ds_read_b128 {v(fb(b,t),4)}, {v(vB+ks)} offset:{slot*16384+t*4096}')
        for t in range(NA):
            a=vA+t+(4 if slot==2 else 0); off=(slot&1)*32768+ks*8192
            A.append([f'ds_read_b64_tr_b16 {v(fa(b,t)+2*i,2)}, {v(a)} offset:{off+2048*i}' for i in range(2)])
        if NB==1: return B+[x for l in A for x in l]
        return A[0]+B
    def mfmas(g):
        b=g&1; L=[]
        for ta in range(NA):
            for tb in range(NB):
                d=v(ACC+16*(ta*NB+tb),16)
                c = '0' if (g==0 and zero_c) else d
                L.append(f'v_mfma_f32_32x32x16_bf16 {d}, {v(fa(b,ta),4)}, {v(fb(b,tb),4)}, {c}')
        return L
    k.wait_tag('s0'); k.waitcnt(lg=0); k.I('s_barrier')
    stamp(1)
    emit_list(reads(0))
    pend=[]
    for g in range(28):
        M=mfmas(g)
        if (g+1)%4==0:
            s=(g+1)//4
            k.waitcnt(lg=0)
            k.I(M[0]); M=M[1:]
            if s<7: k.wait_tag(f's{s}')
            k.I('s_barrier')
            n=s+2
            pend = s1_dmas(n,wstride,masked) if n<7 else list(tail.get(n,[]))
            if gate and n<7: pend = gate(n)+pend
        ex = reads(g+1) if g+1<28 else []
        nd = 2 if g<27 else 0
        d=pend[:nd]; pend=pend[nd:]
        if (g+2)%4==0 and g<27: d+=pend; pend=[]
        emit_list(interleave(M, ex+d))
    return pend

k.raw(f'; @launch grid=(256,1,1) block=(512,1,1) lds={LDS_BYTES}')
k.raw('.amdgcn_target "amdgcn-amd-amdhsa--gfx950"\n.text')
k.raw(f'.globl {NAME}_kernel\n.p2align 8\n.type {NAME}_kernel,@function\n{NAME}_kernel:')
k.I('s_cmp_ge_u32 s2, 256\ns_cbranch_scc1 L_end')
k.I('s_load_dwordx16 s[64:79], s[0:1], 0\ns_load_dwordx8 s[80:87], s[0:1], 64')
if TS:
    for i in range(NSTAMP): k.I(f's_mov_b32 s{sTS+i}, 0')
    k.I('s_memrealtime s[100:101]')
k.I(f'v_lshrrev_b32 v1, 6, v0\nv_and_b32 v0, 63, v0\nv_readfirstlane_b32 {sWave}, v1')
k.I(f'''s_and_b32 {sT0}, s2, 7
s_lshr_b32 {sT1}, s2, 3
s_and_b32 {sT2}, {sT0}, 1
s_lshr_b32 {sT3}, {sT0}, 1
s_lshl_b32 {sTB}, {sT2}, 3
s_lshl_b32 {sLW}, {sWave}, 10
s_mov_b32 s40, {f2u(LOG2E)}
s_mov_b32 s41, {f2u(LOG2E)}
s_mov_b32 s42, {f2u(LOG2E)}
s_mov_b32 s43, {f2u(-LOG2E)}
s_mov_b32 s58, 0
s_mov_b32 s59, -1
v_lshlrev_b32 {v(vL16)}, 4, {v(vLane)}''')
k.I(f'''v_lshrrev_b32 v1, 3, v0
s_lshl_b32 {sA0}, {sWave}, 3
v_add_u32 v1, {sA0}, v1
v_lshrrev_b32 v2, 1, v1
v_xor_b32 v2, v2, v0
v_and_b32 v2, 7, v2
v_mul_u32_u24 v1, 896, v1
v_lshl_add_u32 {v(vX)}, v2, 4, v1''')
k.I(f'''v_and_b32 v1, 31, v0
v_bfe_u32 v2, v0, 1, 3
v_lshrrev_b32 v3, 5, v0
v_xor_b32 v2, v2, v3
v_lshlrev_b32 v2, 4, v2
v_lshl_add_u32 v1, v1, 7, v2
v_add_u32 {v(vB)}, {XR}, v1''')
k.I(f'''s_lshl_b32 {sA0}, {sWave}, 1
v_add_u32 v24, {sA0}, v3
v_and_b32 v25, 3, v24
v_lshlrev_b32 v25, 2, v25
v_and_b32 v26, 31, v0
v_xor_b32 v25, v25, v26''')
k.I(f'''v_bfe_u32 v28, v0, 2, 2
v_lshl_add_u32 v27, v3, 3, v28
v_lshlrev_b32 v27, 9, v27
v_lshlrev_b32 v28, 6, v28
v_bfe_u32 v29, v0, 4, 1
v_and_b32 v26, 3, v0
v_lshl_add_u32 v29, v29, 2, v26''')
k.force_wait(lg=0)
if TS: k.I(f's_mov_b32 s{sTS}, s100')
k.I(f's_load_dword {sTag}, s[{P(11)}:{P(11)+1}], {WS_EPOCH}')
srd(sX,0,2048*896); srd(sWS,11,0x10000000)
k.I(f's_cmp_lt_u32 {sT1}, 4\ns_cbranch_scc1 L_Q')
st_q=k.state()
k.I(f'''s_sub_u32 {sT1}, {sT1}, 4
s_mul_i32 {sT3}, {sT3}, 28
s_add_u32 {sT3}, {sT3}, {sT1}
s_lshr_b32 {sRole}, {sT3}, 3
s_and_b32 {sT3}, {sT3}, 7
s_add_u32 {sTB}, {sTB}, {sT3}
s_mul_i32 {sT2}, {sT1}, 37
s_lshr_b32 {sT2}, {sT2}, 8
s_mul_i32 {sT3}, {sT2}, 7
s_sub_u32 {sCT}, {sT1}, {sT3}
s_lshl_b32 {sT64}, {sT0}, 2
s_add_u32 {sT64}, {sT64}, {sT2}
s_mul_i32 {sT0}, {sTB}, {128*896}
v_add_u32 {v(vX)}, {sT0}, {v(vX)}
s_and_b32 {sT0}, {sWave}, 3
s_lshl_b32 {sT0}, {sT0}, 12
v_add_u32 {v(vB)}, {sT0}, {v(vB)}
v_xor_b32 {v(vB+1)}, 32, {v(vB)}
v_xor_b32 {v(vB+2)}, 64, {v(vB)}
v_xor_b32 {v(vB+3)}, 96, {v(vB)}''')
def s2_setup():
    srd(sW2,7,1792*896); srd(sWO,3,448*896); srd(sOUT,9,2048*896)
    k.I(f'''s_mul_i32 {sW2b}, {sWave}, {224*896}
    s_mul_i32 {sWOb}, {sWave}, {56*896}
    s_lshl_b32 {sL4}, {sWave}, 12
    s_lshl_b32 {sL2k}, {sWave}, 11
    s_add_u32 {sL2k}, {sL2k}, {XR}
    v_lshrrev_b32 v1, 3, v0
    v_lshlrev_b32 v2, 1, v1
    v_and_b32 v2, 4, v2
    v_and_b32 v3, 7, v0
    v_xor_b32 v2, v2, v3
    v_mul_u32_u24 v1, 896, v1
    v_lshl_add_u32 v1, v2, 4, v1
    s_lshl_b32 {sT0}, {sCT}, 7
    v_add_u32 {v(vW2)}, {sT0}, v1''')
def tags():
    k.force_wait(lg=0)
    k.I(f'''s_mul_i32 {sTag}, {sTag}, 1664525
    s_add_u32 {sTag}, {sTag}, 1013904223
    s_mul_i32 {sTag2}, {sTag}, 22695477
    s_add_u32 {sTag2}, {sTag2}, 12345''')
def a_addr(t, colexpr_v):
    k.I(f'''v_xor_b32 {v(vA+t)}, {v(colexpr_v)}, v28
    v_add_u32 {v(vA+t)}, {v(vA+t)}, v27
    v_add_u32 {v(vA+4+t)}, 0x10000, {v(vA+t)}''')

k.I(f's_cmp_ge_u32 {sRole}, 8\ns_cbranch_scc1 L_KV')
st_kv=k.state()

def poll(loads, checks, name):
    lab=newlab(name); done=newlab(name+'d')
    k.I(f's_mov_b32 {sSpin}, {SPIN}')
    k.nop(2)
    k.label(lab)
    for l in loads: k.I(l)
    k.force_wait(vm=0)
    first=True
    for r,s in checks:
        if first: k.I(f'v_cmp_ne_u32 vcc, {s}, {v(r)}'); first=False
        else:
            k.I(f'v_cmp_ne_u32 {sMask}, {s}, {v(r)}'); k.I(f's_or_b64 vcc, vcc, {sMask}')
    k.nop(1)
    k.I(f's_cmp_eq_u64 vcc, 0\ns_cbranch_scc1 {done}')
    k.I(f's_sub_u32 {sSpin}, {sSpin}, 1\ns_cmp_lg_u32 {sSpin}, 0\ns_cbranch_scc1 {lab}')
    k.label(done)

def flag_store(soff_sgpr):
    k.I(f'v_mov_b32 v1, {sTag}\nv_mov_b32 v2, 0\ns_mov_b64 exec, 1')
    k.I(f'buffer_store_dword v1, v2, {sWS}, {soff_sgpr} offen sc1')
    k.I('s_mov_b64 exec, -1')

k.c('F role')
srd(sW,5,448*3584); srd(sM,6,1792*2)
k.I(f'''s_mul_i32 {sT0}, {sRole}, 448
s_and_b32 {sT1}, {sT0}, 127
s_sub_u32 {sT2}, {sT0}, {sT1}
s_movk_i32 {sT3}, 3584
v_mul_lo_u32 v24, v24, {sT3}
v_lshl_add_u32 v24, v25, 4, v24
v_add_u32 {v(vW)}, {sT2}, v24
s_lshr_b32 {sA1}, {sWave}, 2
s_lshl_b32 {sA1}, {sA1}, 8
s_add_u32 {sA0}, {sT0}, {sA1}
s_add_u32 {sA1}, {sT1}, {sA1}''')
k.I(f'v_lshrrev_b32 v1, 5, v0\nv_lshlrev_b32 v1, 3, v1')
for t in range(4):
    for q in range(4):
        k.I(f'buffer_load_dwordx2 {v(FA+8*t+2*q,2)}, v1, {sM}, {sA0} offen offset:{64*t+16*q}')
for s in range(3): emit_list(s1_dmas(s,3584))
for t in range(4):
    k.I(f'v_lshl_add_u32 v26, v29, 3, {sA1}\nv_add_u32 v26, {64*t}, v26')
    a_addr(t,26)
s2_setup()
k.I(f'v_mov_b32 {v(vC)}, 0.5\nv_mov_b32 {v(vC+1)}, 0.5\nv_mov_b32 {v(vC+2)}, 1.0\nv_mov_b32 {v(vC+3)}, 1.0')
for t in range(4):
    for q in range(8):
        k.I(f'v_lshlrev_b32 {v(ACC+16*t+2*q)}, 16, {v(FA+8*t+q)}\nv_and_b32 {v(ACC+16*t+2*q+1)}, 0xffff0000, {v(FA+8*t+q)}')
tags()
k.I(f's_cmp_ge_u32 {sWave}, 4\ns_cbranch_scc1 L_F3')
st_f3=k.state()

def mish_tile(t, T, U, O):
    L=[]
    for hh in range(2):
        a=ACC+16*t+8*hh
        for i in range(0,8,2): L.append(f'v_pk_mul_f32 {v(a+i,2)}, {v(a+i,2)}, {sL2}')
        for i in range(8): L.append(f'v_exp_f32 {v(T+i)}, {v(a+i)}')
        for i in range(0,8,2): L.append(f'v_pk_fma_f32 {v(U+i,2)}, {v(T+i,2)}, {v(vC,2)}, {v(vC+2,2)}')
        for i in range(0,8,2): L.append(f'v_pk_fma_f32 {v(U+i,2)}, {v(U+i,2)}, {v(T+i,2)}, {v(vC+2,2)}')
        for i in range(8): L.append(f'v_rcp_f32 {v(U+i)}, {v(U+i)}')
        for i in range(0,8,2): L.append(f'v_pk_fma_f32 {v(U+i,2)}, {v(a+i,2)}, {v(U+i,2)}, {v(a+i,2)} neg_lo:[1,0,0] neg_hi:[1,0,0]')
        for i in range(0,8,2): L.append(f'v_cvt_pk_bf16_f32 {v(O+4*hh+i//2)}, {v(U+i)}, {v(U+i+1)}')
    return L

def f_role(NT):
    gemm1(NT,1,3584,{7:s2_dmas(0),8:s2_dmas(1)},zero_c=False)
    stamp(2)
    k.I(f'''s_lshl_b32 {sA0}, {sTB}, 2
    s_and_b32 {sA1}, {sWave}, 3
    s_add_u32 {sA0}, {sA0}, {sA1}
    s_mul_i32 {sA0}, {sA0}, 112
    s_mul_i32 {sA1}, {sRole}, 14
    s_add_u32 {sA0}, {sA0}, {sA1}
    s_add_u32 {sA0}, {sA0}, {8 if NT==3 else 0}
    s_lshl_b32 {sA0}, {sA0}, 10
    s_add_u32 {sA0}, {sA0}, {WS_ACT}
    s_add_u32 {sA1}, {sA0}, 4096''')
    s2_addr_setup(1)
    emit_list(s2_dmas(2))
    k.wait_tag('p1')
    emit_list(s2_reads(0)+s2_reads(1))
    T=168;U=176;O=184
    def tile(t):
        L=mish_tile(t,T,U,O)
        n=len(L)//2
        st=lambda hh: f'buffer_store_dwordx4 {v(O+4*hh,4)}, {v(vL16)}, {sWS}, {sA0 if t<2 else sA1} offen offset:{(2*(t&1)+hh)*1024} sc1'
        return L[:n]+[st(0)]+L[n:]+[st(1)]
    L=tile(0); emit_list(L[:12]); k.waitcnt(lg=0)
    emit_list(interleave(L[12:]+tile(1), s2_dmas(3)+s2_dmas(4)))
    k.wait_tag('p2')
    emit_list(s2_reads(2))
    L=tile(2); emit_list(L[:12]); k.waitcnt(lg=0)
    emit_list(interleave(L[12:], s2_dmas(5), end=len(L)//2))
    if NT==4: emit_list(tile(3))
    k.I(f'''s_lshl_b32 {sA0}, {sTB}, 3
    s_add_u32 {sA0}, {sA0}, {sRole}
    s_lshl_b32 {sA0}, {sA0}, 7
    s_lshl_b32 {sA1}, {sWave}, 2
    s_add_u32 {sA0}, {sA0}, {sA1}
    s_add_u32 {sA0}, {sA0}, {WS_FA}''')
    k.force_wait(vm=0)
    flag_store(sA0)
    stamp(3)

f_role(4)
k.I('s_branch L_S2')
k.label('L_F3'); k.set_state(st_f3)
f_role(3)
k.I('s_branch L_S2')

def wphi_load(dst16, head_sgpr_off):
    for s in range(2):
        for j in range(8):
            d=16*s+(j&3)+8*(j>>2)
            k.I(f'buffer_load_ushort {v(dst16+8*s+j)}, v30, {sM}, {head_sgpr_off} offen offset:{d*56}')
def wphi_lane():
    k.I('''v_and_b32 v30, 3, v0
    v_bfe_u32 v31, v0, 3, 2
    v_lshl_add_u32 v30, v31, 2, v30
    v_bfe_u32 v31, v0, 2, 1
    v_mul_u32_u24 v31, 14, v31
    v_add_u32 v30, v30, v31
    v_min_u32 v30, 27, v30
    v_lshlrev_b32 v30, 1, v30
    v_lshrrev_b32 v31, 5, v0
    v_mul_u32_u24 v31, 224, v31
    v_add_u32 v30, v30, v31''')
def wphi_pack(src16,dst8):
    for i in range(8):
        k.I(f'v_lshl_or_b32 {v(dst8+i)}, {v(src16+2*i+1)}, 16, {v(src16+2*i)}')
    for i in (6,7):
        k.I(f'v_cndmask_b32 {v(dst8+i)}, {v(dst8+i)}, 0, {sHi}')

def feat(a, wp, PK, Pp, E, S, norm):
    for i in range(8): k.I(f'v_cvt_pk_bf16_f32 {v(PK+i)}, {v(a+2*i)}, {v(a+2*i+1)}')
    k.I(f'v_mfma_f32_32x32x16_bf16 {v(Pp,16)}, {v(wp,4)}, {v(PK,4)}, 0')
    k.I(f'v_mfma_f32_32x32x16_bf16 {v(Pp,16)}, {v(wp+4,4)}, {v(PK+4,4)}, {v(Pp,16)}')
    k.I(f'v_max_f32 {v(S)}, {v(Pp)}, {v(Pp+1)}')
    k.I(f'v_max_f32 {v(S+1)}, -{v(Pp)}, -{v(Pp+1)}')
    for i in range(2,14,2):
        k.I(f'v_max3_f32 {v(S)}, {v(S)}, {v(Pp+i)}, {v(Pp+i+1)}')
        k.I(f'v_max3_f32 {v(S+1)}, {v(S+1)}, -{v(Pp+i)}, -{v(Pp+i+1)}')
    k.I(f'v_permlane32_swap_b32 {v(S)}, {v(S+1)}')
    k.I(f'v_max_f32 {v(S)}, {v(S)}, {v(S+1)}')
    k.I(f'v_mul_f32 {v(S)}, s43, {v(S)}')
    k.I(f'v_mov_b32 {v(S+1)}, {v(S)}')
    k.I(f'v_permlane32_swap_b32 {v(S)}, {v(S+1)}')
    for r in range(14):
        h=r&1
        k.I(f'v_pk_fma_f32 {v(E+2*r,2)}, {v(Pp+r-h,2)}, {sLn}, {v(S,2)} op_sel:[{h},0,0] op_sel_hi:[{h},1,1]')
    for r in range(28): k.I(f'v_exp_f32 {v(E+r)}, {v(E+r)}')
    if norm:
        k.I(f'v_pk_add_f32 {v(S,2)}, {v(E,2)}, {v(E+2,2)}')
        k.I(f'v_pk_add_f32 {v(S+2,2)}, {v(E+4,2)}, {v(E+6,2)}')
        for r in range(4,14):
            s=S+2*(r&1)
            k.I(f'v_pk_add_f32 {v(s,2)}, {v(s,2)}, {v(E+2*r,2)}')
        k.I(f'v_pk_add_f32 {v(S,2)}, {v(S,2)}, {v(S+2,2)}')
        k.I(f'v_permlane32_swap_b32 {v(S)}, {v(S+1)}')
        k.I(f'v_add_f32 {v(S)}, {v(S)}, {v(S+1)}')
        k.I(f'v_rcp_f32 {v(S)}, {v(S)}')
        k.I(f'v_mov_b32 {v(S+1)}, {v(S)}')
        k.I(f'v_permlane32_swap_b32 {v(S)}, {v(S+1)}')
        for r in range(14): k.I(f'v_pk_mul_f32 {v(E+2*r,2)}, {v(E+2*r,2)}, {v(S,2)}')
def feat_pack(E, O):
    for sg in range(2):
        for i in range(7):
            k.I(f'v_cvt_pk_bf16_f32 {v(O+8*sg+i)}, {v(E+4*i+sg)}, {v(E+4*i+2+sg)}')

k.label('L_KV'); k.set_state(st_kv)
k.c('KV role')
srd(sW,1,448*2688); srd(sM,2,16*1568)
k.I(f'''s_sub_u32 {sRole}, {sRole}, 8
s_lshl_b32 {sT0}, {sRole}, 2
s_lshr_b32 {sH0}, 0xDA8630, {sT0}
s_and_b32 {sH0}, {sH0}, 15
s_lshl_b32 {sT2}, {sRole}, 7
s_movk_i32 {sT3}, 2688
v_mul_lo_u32 v24, v24, {sT3}
v_lshl_add_u32 v24, v25, 4, v24
v_lshrrev_b32 v25, 4, v25
v_mul_u32_u24 v25, 640, v25
v_add_u32 v24, v24, v25
s_add_u32 {sT1}, {sT2}, 896
v_add_u32 {v(vW)}, {sT1}, v24
s_mul_i32 {sA1}, {sH0}, 56
s_sub_u32 {sA1}, {sA1}, {sT2}''')
wphi_lane()
k.I(f'''s_lshr_b32 {sT1}, {sWave}, 2
s_lshl_b32 {sT2}, {sT1}, 1
s_add_u32 {sT2}, {sT2}, {sH0}
s_mul_i32 {sT2}, {sT2}, 1568
s_add_u32 {sT3}, {sH0}, 1
s_mul_i32 {sT3}, {sT3}, 1568''')
wphi_load(FA,sT2); wphi_load(FA+16,sT3)
for s in range(3): emit_list(s1_dmas(s,2688))
k.I(f'v_min_u32 v29, 6, v29\ns_lshr_b32 {sT1}, {sWave}, 2')
for t,(o0,o1) in enumerate([(0,112),(56,312),(256,368)]):
    k.I(f's_mul_i32 {sT2}, {sT1}, {o1-o0}\ns_add_u32 {sT2}, {sT2}, {sA1}\ns_add_u32 {sT2}, {sT2}, {o0}\nv_lshl_add_u32 v26, v29, 3, {sT2}')
    a_addr(t,26)
s2_setup()
WP=128
wphi_pack(FA,WP); wphi_pack(FA+16,WP+8)
tags()
gemm1(3,1,2688,{7:s2_dmas(0)})
stamp(2)
PHI=[0,16384,65536]; VV=[81920,81920+64,98304]
k.I(f'''v_and_b32 v1, 5, v0
v_and_b32 v2, 2, v0
v_lshl_or_b32 v1, v2, 2, v1
v_bfe_u32 v2, v0, 3, 1
v_lshl_or_b32 v1, v2, 1, v1
v_lshrrev_b32 v2, 5, v0
v_xor_b32 v1, v1, v2
v_and_b32 v2, 31, v0
v_lshlrev_b32 v2, 7, v2
v_lshl_or_b32 v1, v1, 3, v2
s_and_b32 {sT0}, {sWave}, 3
s_lshl_b32 {sT0}, {sT0}, 12
v_add_u32 v8, {sT0}, v1''')
for c in range(1,8): k.I(f'v_xor_b32 {v(8+c)}, {16*c}, v8')
PK=48;Pp=56;E=72;S=100;O=104
def wr_tile(src, base, n):
    hi = 4 if (base&64) else 0; b=base&~64
    for q in range(n):
        if b<65536: k.I(f'ds_write_b64 {v(8+hi+q)}, {v(src+2*q,2)} offset:{b}')
        else:
            k.I(f'v_add_u32 v1, 0x10000, {v(8+hi+q)}'); k.I(f'ds_write_b64 v1, {v(src+2*q,2)} offset:{b-65536}')
def k_tile(t, wp, arr):
    feat(ACC+16*t, wp, PK, Pp, E, S, True)
    feat_pack(E,O)
    wr_tile(O, arr, 8)
def v_tile(t, arr, tmp):
    a=ACC+16*t
    k.I(f'v_cndmask_b32 {v(a+12)}, {v(a+12)}, 1.0, {sHi}')
    for i in range(8): k.I(f'v_cvt_pk_bf16_f32 {v(tmp+i)}, {v(a+2*i)}, {v(a+2*i+1)}')
    wr_tile(tmp, arr, 4)
k.I(f'v_mov_b32 {v(O+7)}, 0\nv_mov_b32 {v(O+15)}, 0')
k.I(f's_cmp_ge_u32 {sWave}, 4\ns_cbranch_scc1 L_KV1')
st=k.state()
v_tile(2,VV[0],160); k_tile(0,WP,PHI[0]); k.waitcnt(lg=0); k_tile(1,WP+8,PHI[1])
k.force_wait(lg=0); k.I('s_branch L_KV2')
k.label('L_KV1'); k.set_state(st)
v_tile(1,VV[1],160); v_tile(2,VV[2],168); k_tile(0,WP,PHI[2])
k.force_wait(lg=0)
k.label('L_KV2'); k.nop(4)
k.I('s_barrier')
stamp(3)
k.I(f's_cmp_ge_u32 {sWave}, 6\ns_cbranch_scc1 L_KV3')
k.I(f'''v_bfe_u32 v1, v0, 2, 2
v_lshrrev_b32 v2, 5, v0
v_lshl_add_u32 v3, v2, 3, v1
v_lshlrev_b32 v3, 7, v3
v_and_b32 v8, 1, v1
v_lshl_or_b32 v8, v2, 1, v8
v_lshrrev_b32 v1, 1, v1
v_lshl_or_b32 v8, v1, 3, v8
v_bfe_u32 v1, v0, 4, 1
v_and_b32 v2, 3, v0
v_lshl_add_u32 v1, v1, 2, v2
v_xor_b32 v8, v8, v1
v_lshl_add_u32 v8, v8, 3, v3
s_lshr_b32 {sT0}, {sWave}, 1
s_and_b32 {sT1}, {sWave}, 1
s_lshl_b32 {sT1}, {sT1}, 6
s_lshl_b32 {sT2}, {sT0}, 14
s_cmp_eq_u32 {sT0}, 2
s_cselect_b32 {sT2}, 65536, {sT2}
s_cselect_b32 {sT3}, 16384, 0
s_add_u32 {sT3}, {sT3}, 81920
s_cmp_eq_u32 {sT0}, 1
s_cselect_b32 {sA0}, 64, 0
v_xor_b32 v10, {sA0}, v8
v_xor_b32 v8, {sT1}, v8
v_xor_b32 v9, 32, v8
v_xor_b32 v11, 32, v10
v_add_u32 v8, {sT2}, v8
v_add_u32 v9, {sT2}, v9
v_add_u32 v10, {sT3}, v10
v_add_u32 v11, {sT3}, v11''')
KA=48; KB=80; KD=112
for ks in range(8):
    for i in range(2):
        k.I(f'ds_read_b64_tr_b16 {v(KA+4*ks+2*i,2)}, {v(8+i)} offset:{2048*ks+512*i}')
        k.I(f'ds_read_b64_tr_b16 {v(KB+4*ks+2*i,2)}, {v(10+i)} offset:{2048*ks+512*i}')
k.I(f'''s_add_u32 {sA0}, {sH0}, {sT0}
s_lshl_b32 {sA0}, {sA0}, 1
s_and_b32 {sT1}, {sWave}, 1
s_add_u32 {sA0}, {sA0}, {sT1}
s_lshl_b32 {sA0}, {sA0}, 7
s_add_u32 {sA0}, {sA0}, {sTB}
s_lshl_b32 {sA0}, {sA0}, 10
s_add_u32 {sA0}, {sA0}, {WS_P1}''')
G0=160
for p in range(7): k.I(f'v_mov_b32 {v(G0+4*p+2)}, {sTag}\nv_mov_b32 {v(G0+4*p+3)}, {sTag2}')
for ks in range(8):
    k.I(f'v_mfma_f32_32x32x16_bf16 {v(KD,16)}, {v(KA+4*ks,4)}, {v(KB+4*ks,4)}, {"0" if ks==0 else v(KD,16)}')
for p in range(7):
    k.I(f'v_mov_b32 {v(G0+4*p)}, {v(KD+2*p)}\nv_mov_b32 {v(G0+4*p+1)}, {v(KD+2*p+1)}')
    k.I(f'buffer_store_dwordx4 {v(G0+4*p,4)}, {v(vL16)}, {sWS}, {sA0} offen sc1')
    k.I(f's_add_u32 {sA0}, {sA0}, 16384')
k.label('L_KV3'); k.nop(4)
k.I('s_barrier')
stamp(4)
k.I(f's_cmp_lt_u32 {sWave}, 5\ns_cbranch_scc1 L_KV4')
k.I(f's_and_b32 {sT0}, {sTB}, 7\ns_cmp_eq_u32 {sT0}, 7\ns_cbranch_scc1 L_KV4')
k.I(f'''s_add_u32 {sA0}, {sH0}, {sWave}
s_sub_u32 {sA0}, {sA0}, 5
s_lshl_b32 {sA0}, {sA0}, 4
s_add_u32 {sA0}, {sA0}, {sTB}
s_lshl_b32 {sA1}, {sA0}, 9
s_add_u32 {sA1}, {sA1}, {WS_P2}
s_lshl_b32 {sA0}, {sA0}, 14
s_add_u32 {sA0}, {sA0}, {WS_P1}
s_add_u32 {sT1}, {sA0}, 4096
s_add_u32 {sT2}, {sA0}, 8192
s_add_u32 {sT3}, {sA0}, 12288''')
R0=48
poll([f'buffer_load_dwordx4 {v(R0+4*i,4)}, {v(vL16)}, {sWS}, {[sA0,sT1,sT2,sT3][i>>2]} offen offset:{(i&3)*1024} sc1' for i in range(16)],
     [(R0+4*i+2+j,[sTag,sTag2][j]) for i in range(16) for j in range(2)],'p1')
for i in range(1,16): k.I(f'v_pk_add_f32 {v(R0,2)}, {v(R0,2)}, {v(R0+4*i,2)}')
k.I(f'v_cvt_pk_bf16_f32 v2, {v(R0)}, {v(R0+1)}\nv_mov_b32 v3, {sTag}\nv_lshlrev_b32 v1, 3, v0')
k.I(f'buffer_store_dwordx2 v[2:3], v1, {sWS}, {sA1} offen sc1')
k.label('L_KV4'); k.nop(4)
stamp(5)
s2_addr_setup(1)
k.vm=[(set(),'p0')]
emit_list(s2_dmas(1)+s2_dmas(2))
k.wait_tag('p0'); emit_list(s2_reads(0)); k.waitcnt(lg=0); emit_list(s2_dmas(3))
k.wait_tag('p1'); emit_list(s2_reads(1)); k.waitcnt(lg=0); emit_list(s2_dmas(4))
k.wait_tag('p2'); emit_list(s2_reads(2)); k.waitcnt(lg=0); emit_list(s2_dmas(5))
k.force_wait(vm=0)

k.label('L_S2'); k.reset_state(); k.nop(4)
k.c('stage 2: pieces 0-2 in regs, pieces 3-5 landed in LDS')
emit_list(s2_reads(3)+s2_reads(4)+s2_reads(5))
k.I(f'''s_lshr_b32 {sT1}, {sT64}, 1
s_lshl_b32 {sA0}, {sT1}, 3
s_add_u32 {sA0}, {sA0}, {sWave}
s_lshl_b32 {sA0}, {sA0}, 7
s_and_b32 {sT2}, {sT64}, 1
s_lshl_b32 {sT2}, {sT2}, 3
s_add_u32 {sA0}, {sA0}, {sT2}
s_add_u32 {sA0}, {sA0}, {WS_FA}
v_and_b32 v1, 1, v0
v_and_b32 v2, 2, v0
v_lshlrev_b32 v2, 3, v2
v_lshl_or_b32 v1, v1, 2, v2''')
poll([f'buffer_load_dword v2, v1, {sWS}, {sA0} offen sc1'],[(2,sTag)],'fa')
stamp(6)
k.I(f'''s_mul_i32 {sA0}, {sT64}, 224
s_mul_i32 {sA1}, {sWave}, 14
s_add_u32 {sA0}, {sA0}, {sA1}
s_lshl_b32 {sA0}, {sA0}, 10
s_add_u32 {sA0}, {sA0}, {WS_ACT}''')
k.waitcnt(lg=0)
bufs=[168,172,176,180,184,188,8,12,16,20]
free=list(bufs); where={}
def act_load(ks,tt):
    b=free.pop(0); where[(ks,tt)]=b
    off=(tt*112+ks)*1024
    return f's_add_u32 {sT0}, {sA0}, {off&~4095}\nbuffer_load_dwordx4 {v(b,4)}, {v(vL16)}, {sWS}, {sT0} offen offset:{off&4095} sc1'
order=[(ks,tt) for ks in range(14) for tt in range(2)]
nl=0
while free and nl<len(order): k.I(act_load(*order[nl])); nl+=1
def acc2(tt,ct): return ACC+32*tt+16*ct
for ks in range(14):
    for tt in range(2):
        for ct in range(2):
            d=v(acc2(tt,ct),16)
            k.I(f'v_mfma_f32_32x32x16_bf16 {d}, {v(wreg(ks,ct),4)}, {v(where[(ks,tt)],4)}, {"0" if ks==0 else d}')
    if ks>=1:
        free += [where[(ks-1,0)],where[(ks-1,1)],wreg(ks-1,0),wreg(ks-1,1)]
    while free and nl<len(order): k.I(act_load(*order[nl])); nl+=1
k.I(f'''s_lshr_b32 {sT1}, {sT64}, 1
s_lshl_b32 {sT1}, {sT1}, 4
s_lshl_b32 {sT2}, {sWave}, 1
s_add_u32 {sT1}, {sT1}, {sT2}
s_lshl_b32 {sA0}, {sT1}, 7
s_add_u32 {sA0}, {sA0}, {WS_FO}
v_and_b32 v1, 1, v0
v_lshlrev_b32 v1, 7, v1''')
poll([f'buffer_load_dword v2, v1, {sWS}, {sA0} offen sc1'],[(2,sTag)],'fo')
k.I(f'''s_lshl_b32 {sA1}, {sT1}, 9
s_and_b32 {sT3}, {sT64}, 1
s_lshl_b32 {sT3}, {sT3}, 8
s_add_u32 {sA1}, {sA1}, {sT3}
s_add_u32 {sA1}, {sA1}, {WS_G}
s_lshl_b32 {sA0}, {sT64}, 5
s_add_u32 {sA0}, {sA0}, {sT2}
s_lshl_b32 {sA0}, {sA0}, 11
s_add_u32 {sA0}, {sA0}, {WS_O}
s_add_u32 {sT3}, {sA0}, 32768
v_and_b32 v1, 31, v0
v_lshlrev_b32 v1, 2, v1''')
k.I(f'buffer_load_dword v2, v1, {sWS}, {sA1} offen sc1')
k.I(f'buffer_load_dword v4, v1, {sWS}, {sA1} offen offset:128 sc1')
OB=24
for q in range(4):
    for tt in range(2):
        k.I(f'buffer_load_dwordx4 {v(OB+8*q+4*tt,4)}, {v(vL16)}, {sWS}, {sA0 if tt==0 else sT3} offen offset:{q*1024} sc1')
for tt in range(2):
    for i in range(0,32,2):
        k.I(f'v_pk_mul_f32 {v(ACC+32*tt+i,2)}, {v(ACC+32*tt+i,2)}, {v(2+2*tt,2)} op_sel_hi:[1,0]')
for q in range(4):
    for tt in range(2):
        for ct in range(2):
            d=v(acc2(tt,ct),16)
            k.I(f'v_mfma_f32_32x32x16_bf16 {d}, {v(wreg(14+q,ct),4)}, {v(OB+8*q+4*tt,4)}, {d}')
k.I(f'''v_and_b32 v1, 31, v0
v_lshrrev_b32 v2, 5, v0
v_and_b32 v3, 7, v0
v_xor_b32 v2, v2, v3
v_lshlrev_b32 v1, 8, v1
v_lshl_or_b32 v1, v2, 4, v1
s_lshl_b32 {sT0}, {sWave}, 14
v_add_u32 v8, {sT0}, v1
v_xor_b32 v9, 32, v8
v_xor_b32 v10, 64, v8
v_xor_b32 v11, 96, v8''')
k.I('s_barrier')
for tt in range(2):
    for ct in range(2):
        for q in range(4):
            k.I(f'ds_write_b128 {v(8+q)}, {v(acc2(tt,ct)+4*q,4)} offset:{tt*8192+ct*128}')
k.I(f'''v_lshrrev_b32 v1, 3, v0
v_and_b32 v2, 7, v0
v_lshlrev_b32 v3, 1, v2
v_xor_b32 v3, v3, v1
v_lshlrev_b32 v3, 4, v3
v_lshl_or_b32 v3, v1, 8, v3
s_lshl_b32 {sT0}, {sWave}, 11
v_add_u32 v12, {sT0}, v3
v_xor_b32 v13, 16, v12
v_add_u32 v14, 0x10000, v12
v_add_u32 v15, 0x10000, v13
v_mul_u32_u24 v1, 896, v1
v_lshl_add_u32 v1, v2, 4, v1
s_lshl_b32 {sT0}, {sT64}, 3
s_add_u32 {sT0}, {sT0}, {sWave}
s_mul_i32 {sT0}, {sT0}, {8*896}
s_lshl_b32 {sT1}, {sCT}, 7
s_add_u32 {sT0}, {sT0}, {sT1}''')
k.waitcnt(lg=0); k.I('s_barrier')
RB=24
for s in range(8):
    for c in range(2):
        k.I(f'ds_read_b128 {v(RB+8*s+4*c,4)}, {v(12+c+(2 if s>=4 else 0))} offset:{(s&3)*16384}')
for s in range(1,8):
    for i in range(0,8,2): k.I(f'v_pk_add_f32 {v(RB+i,2)}, {v(RB+i,2)}, {v(RB+8*s+i,2)}')
for i in range(4): k.I(f'v_cvt_pk_bf16_f32 {v(16+i)}, {v(RB+2*i)}, {v(RB+2*i+1)}')
k.I(f'buffer_store_dwordx4 v[16:19], v1, {sOUT}, {sT0} offen')
stamp(7)
dump_stamps()
k.I('s_endpgm')

k.label('L_Q'); k.set_state(st_q)
k.c('Q role')
srd(sW,1,448*2688); srd(sM,2,16*1568); srd(sG,8,896)
k.I(f'''s_lshl_b32 {sT3}, {sT3}, 2
s_add_u32 {sT3}, {sT3}, {sT1}
s_lshr_b32 {sRole}, {sT3}, 3
s_and_b32 {sT3}, {sT3}, 7
s_add_u32 {sTB}, {sTB}, {sT3}
s_mul_i32 {sT0}, {sTB}, {128*896}
v_add_u32 {v(vX)}, {sT0}, {v(vX)}
v_xor_b32 {v(vB+1)}, 32, {v(vB)}
v_xor_b32 {v(vB+2)}, 64, {v(vB)}
v_xor_b32 {v(vB+3)}, 96, {v(vB)}
s_lshl_b32 {sH0}, {sRole}, 3
s_add_u32 {sH0}, {sH0}, {sWave}
s_movk_i32 {sT3}, 2688
v_mul_lo_u32 v24, v24, {sT3}
v_lshl_add_u32 v24, v25, 4, v24
s_mul_i32 {sT2}, {sRole}, 384
v_add_u32 {v(vW)}, {sT2}, v24
s_cmp_eq_u32 {sRole}, 0
s_cselect_b32 {sA0}, 7, 0
v_lshrrev_b32 v25, 2, v25
v_cmp_ne_u32 {sMask}, {sA0}, v25
s_mul_i32 {sA1}, {sH0}, 56
s_sub_u32 {sA1}, {sA1}, {sT2}
s_lshl_b32 {sA0}, {sA0}, 6''')
wphi_lane()
k.I(f's_mul_i32 {sT2}, {sH0}, 1568')
wphi_load(FA,sT2)
GV=32
k.I('v_lshlrev_b32 v1, 1, v0')
for s in range(7): k.I(f'buffer_load_ushort {v(GV+2*s)}, v1, {sG}, 0 offen offset:{128*s}')
for s in range(3): emit_list(s1_dmas(s,2688,True))
for s in range(7): k.I(f'v_mov_b32 {v(GV+2*s+1)}, 0')
k.I(f'''v_lshl_add_u32 v26, v29, 3, {sA1}
v_mov_b32 v1, {sA0}
v_cmp_eq_u32 vcc, 7, v29
v_cndmask_b32 v26, v26, v1, vcc''')
a_addr(0,26)
k.I(f'''v_and_b32 v2, 3, v0
v_lshlrev_b32 v2, 6, v2
v_xor_b32 v2, v2, v1
v_lshl_add_u32 v9, v0, 9, v2
v_add_u32 v13, 0x10000, v9''')
WP=128
wphi_pack(FA,WP)
gate=lambda s: [f'ds_write_b64 {v(13 if s%3==2 else 9)}, {v(GV+2*s,2)} offset:{((s%3)&1)*32768}']
for s in range(3): emit_list(gate(s))
tags()
gemm1(1,4,2688,{},masked=True,gate=gate)
stamp(2)
EQ=24
PK=88;Pp=96;E=136;S=164;GG=168
for t in range(4):
    a=ACC+16*t
    k.I(f'v_mul_f32 {v(GG+t)}, s43, {v(a+12)}')
    k.I(f'v_mov_b32 {v(EQ+16*t+7)}, 0\nv_mov_b32 {v(EQ+16*t+15)}, 0')
    k.I(f'v_exp_f32 {v(GG+t)}, {v(GG+t)}')
    feat(a, WP, PK, Pp, E, S, False)
    k.I(f'v_add_f32 {v(GG+t)}, 1.0, {v(GG+t)}')
    k.I(f'v_rcp_f32 {v(GG+t)}, {v(GG+t)}')
    feat_pack(E,EQ+16*t)
k.I(f'''s_lshl_b32 {sT1}, {sTB}, 4
s_add_u32 {sT1}, {sT1}, {sH0}
s_lshl_b32 {sA0}, {sT1}, 9
s_add_u32 {sA0}, {sA0}, {WS_G}
v_and_b32 v1, 31, v0
v_lshlrev_b32 v1, 2, v1
s_mov_b32 {sT0}, {f2u(LN2)}''')
for t in range(4):
    k.I(f'v_sub_f32 {v(172+t)}, 1.0, {v(GG+t)}\nv_mul_f32 {v(172+t)}, {sT0}, {v(172+t)}')
k.I(f's_mov_b64 exec, {sHi}')
for t in range(4): k.I(f'buffer_store_dword {v(172+t)}, v1, {sWS}, {sA0} offen offset:{128*t} sc1')
k.I('s_mov_b64 exec, -1')
stamp(3)
k.I(f'''s_lshl_b32 {sA0}, {sH0}, 13
s_add_u32 {sA0}, {sA0}, {WS_P2}
s_add_u32 {sA1}, {sA0}, 4096
v_lshlrev_b32 v1, 3, v0''')
R0=96
sl=[s for s in range(16) if (s&7)!=7]
poll([f'buffer_load_dwordx2 {v(R0+2*s,2)}, v1, {sWS}, {sA0 if s<8 else sA1} offen offset:{(s&7)*512} sc1' for s in sl],
     [(R0+2*s+1,sTag) for s in sl],'p2')
stamp(4)
KV=136
k.I(f'v_and_b32 v2, 31, v0\nv_cmp_eq_u32 vcc, 29, v2\nv_mov_b32 v3, 0x3f803f80')
for s in range(16):
    if (s&7)==7: k.I(f'v_mov_b32 {v(KV+s)}, 0')
    else: k.I(f'v_cndmask_b32 {v(KV+s)}, {v(R0+2*s)}, v3, vcc')
k.I(f'''s_lshl_b32 {sA0}, {sTB}, 6
s_add_u32 {sA0}, {sA0}, {sH0}
s_lshl_b32 {sA0}, {sA0}, 11
s_add_u32 {sA0}, {sA0}, {WS_O}
s_mov_b32 {sT1}, {f2u(1e-6)}''')
def nacc(t,sg): return ACC+32*(t&1)+16*sg
def omf(t):
    for sg in range(2):
        for s in range(2):
            d=v(nacc(t,sg),16)
            k.I(f'v_mfma_f32_32x32x16_bf16 {d}, {v(KV+8*sg+4*s,4)}, {v(EQ+16*t+8*sg+4*s,4)}, {"0" if s==0 else d}')
omf(0)
for t in range(4):
    if t<3: omf(t+1)
    p=nacc(t,0); n=nacc(t,1)
    k.I(f'''v_rcp_f32 v8, {v(p+13)}
    v_rcp_f32 v10, {v(n+13)}
    v_fma_f32 v12, {v(p+12)}, v8, {sT1}
    v_fma_f32 v12, {v(n+12)}, v10, v12
    v_rcp_f32 v12, v12
    v_mul_f32 v12, v12, {v(GG+t)}
    v_mul_f32 v8, v8, v12
    v_mul_f32 v10, v10, v12
    v_mov_b32 v9, v8
    v_mov_b32 v11, v10
    v_permlane32_swap_b32 v9, v8
    v_permlane32_swap_b32 v11, v10''')
    for i in range(0,16,2): k.I(f'v_pk_mul_f32 {v(p+i,2)}, {v(p+i,2)}, v[8:9] op_sel_hi:[1,0]')
    for i in range(0,16,2): k.I(f'v_pk_fma_f32 {v(p+i,2)}, {v(n+i,2)}, v[10:11], {v(p+i,2)} op_sel_hi:[1,0,1]')
    o=96+8*t
    for i in range(8): k.I(f'v_cvt_pk_bf16_f32 {v(o+i)}, {v(p+2*i)}, {v(p+2*i+1)}')
    for i in (6,7): k.I(f'v_cndmask_b32 {v(o+i)}, {v(o+i)}, 0, {sHi}')
    for s in range(2): k.I(f'buffer_store_dwordx4 {v(o+4*s,4)}, {v(vL16)}, {sWS}, {sA0} offen offset:{1024*s} sc1')
    k.I(f's_add_u32 {sA0}, {sA0}, 32768')
k.I(f'''s_lshl_b32 {sA0}, {sTB}, 4
s_add_u32 {sA0}, {sA0}, {sH0}
s_lshl_b32 {sA0}, {sA0}, 7
s_add_u32 {sA0}, {sA0}, {WS_FO}''')
k.force_wait(vm=0)
flag_store(sA0)
stamp(5)
k.I(f's_cmp_lg_u32 s2, 0\ns_cbranch_scc1 L_Qend\ns_cmp_lg_u32 {sWave}, 0\ns_cbranch_scc1 L_Qend')
k.I('v_lshlrev_b32 v1, 7, v0')
k.I(f's_mov_b32 {sA0}, {WS_FA}\ns_mov_b32 {sA1}, {WS_FA+8192}\ns_mov_b32 {sT0}, {WS_FO}\ns_mov_b32 {sT1}, {WS_FO+8192}\ns_mov_b32 {sT2}, {WS_FO+16384}\ns_mov_b32 {sT3}, {WS_FO+24576}')
poll([f'buffer_load_dword {v(8+i)}, v1, {sWS}, {s} offen sc1' for i,s in enumerate([sA0,sA1,sT0,sT1,sT2,sT3])],[(8+i,sTag) for i in range(6)],'ep')
k.I(f's_mov_b32 {sA0}, {WS_EPOCH}')
flag_store(sA0)
k.label('L_Qend'); k.nop(2)
stamp(7)
dump_stamps()
k.label('L_end')
k.I('s_endpgm')
k.raw(f""".section .rodata,"a"
.p2align 6
.amdhsa_kernel {NAME}_kernel
  .amdhsa_next_free_vgpr 256
  .amdhsa_next_free_sgpr 102
  .amdhsa_accum_offset 256
  .amdhsa_group_segment_fixed_size 0
  .amdhsa_kernarg_size 96
  .amdhsa_user_sgpr_count 2
  .amdhsa_user_sgpr_kernarg_segment_ptr 1
  .amdhsa_system_sgpr_workgroup_id_x 1
.end_amdhsa_kernel""")
open(OUT,'w').write(k.text())
print('instructions', k.nins)
```

```python
import sys, struct
from emit import K, interleave
NAME = "gated_mix__linear_kernel_hedgehog__dense_activation_mish__prompt"
TS = '--ts' in sys.argv
CLK = 's_memtime' if '--cyc' in sys.argv else 's_memrealtime'
OUT = [a for a in sys.argv[1:] if not a.startswith('--')][0]

def f2u(x): return struct.unpack('<I', struct.pack('<f', x))[0]
LOG2E = 1.4426950408889634; LN2 = 0.6931471805599453

WS_EPOCH=0; WS_FA=0x1000; WS_FO=0x5000; WS_G=0x10000; WS_P2=0x30000; WS_P1=0x100000; WS_O=0x500000; WS_ACT=0x800000; WS_TS=0xF000000
WR=0; XR=96*1024; LDS_BYTES=160*1024
SPIN=200000

sX='s[8:11]'; sW='s[12:15]'; sWS='s[16:19]'; sW2='s[20:23]'; sWO='s[24:27]'; sOUT='s[28:31]'; sM='s[32:35]'; sG='s[36:39]'
sL2='s[40:41]'
sLn='s[42:43]'
sWave='s44'; sTB='s45'; sRole='s46'; sT64='s47'; sCT='s48'; sTag='s49'; sTag2='s50'
sLW='s51'
sT0='s52'; sT1='s53'; sT2='s54'; sT3='s55'
sMask='s[56:57]'; sHi='s[58:59]'
sW2b='s60'; sWOb='s61'; sL4='s62'; sL2k='s63'
sSpin='s88'; sH0='s89'; sA0='s90'; sA1='s91'
sTS=92
P = lambda i: 64+2*i

def v(a,n=1): return f'v{a}' if n==1 else f'v[{a}:{a+n-1}]'

k=K()
nlab=[0]
def newlab(p):
    nlab[0]+=1; return f'L_{p}_{nlab[0]}'

def srd(dst, ptr, size):
    d=int(dst[2:dst.index(':')])
    k.I(f's_mov_b32 s{d}, s{P(ptr)}\ns_mov_b32 s{d+1}, s{P(ptr)+1}\ns_mov_b32 s{d+2}, {size}\ns_mov_b32 s{d+3}, 0x20000')

NSTAMP=16
def tsreg(i): return sTS+i if i<2 else 64+i-2
def stamp(i):
    if not TS: return
    k.I(CLK+' s[100:101]'); k.force_wait(lg=0); k.I(f's_mov_b32 s{tsreg(i)}, s100')
def stamp_init():
    if not TS: return
    for i in range(1,NSTAMP): k.I(f's_mov_b32 s{tsreg(i)}, 0')
DBG='--dbgts' in sys.argv
def dump_stamps():
    if not TS: return
    k.I('s_mov_b64 exec, 1')
    if DBG:
        k.I(f's_load_dwordx2 s[32:33], s[0:1], 80'); k.force_wait(lg=0)
        k.I('s_mov_b32 s34, 256\ns_mov_b32 s35, 0x20000\nv_mov_b32 v1, 0')
        k.I(f's_not_b32 s{tsreg(0)}, s{tsreg(0)}')
        for i in range(NSTAMP):
            k.I(f'v_mov_b32 v2, s{tsreg(i)}')
            k.I(f'buffer_atomic_umax v2, v1, s[32:35], 0 offen offset:{4*i}')
        return
    k.I(f's_lshl_b32 {sT0}, s2, 3\ns_add_u32 {sT0}, {sT0}, {sWave}\ns_lshl_b32 {sT0}, {sT0}, 7\ns_add_u32 {sT0}, {sT0}, {WS_TS}\nv_mov_b32 v1, 0\nv_mov_b32 v3, 0')
    for i in range(NSTAMP):
        k.I(f'v_mov_b32 v2, s{tsreg(i)}')
        k.I(f'buffer_store_dwordx2 v[2:3], v1, {sWS}, {sT0} offen offset:{8*i}')

vLane=0; vW=4; vX=5; vW2=6; vL16=7
vA=8
vB=16
vC=20
WREG=24
FB=152
FA=160
ACC=192

def dma(voff, srd_, soff, ldsbase, ldsconst, tag, masked=False):
    L=[]
    L.append(f's_add_u32 m0, {ldsbase}, {ldsconst}')
    if isinstance(soff,int): L.append(f's_mov_b32 {sT0}, {soff}')
    else: L.append(f's_add_u32 {sT0}, {soff[0]}, {soff[1]}')
    if masked: L.append(f's_mov_b64 exec, {sMask}')
    L.append(f'buffer_load_dwordx4 {v(voff)}, {srd_}, {sT0} offen lds')
    if masked: L.append('s_mov_b64 exec, -1')
    return ('\n'.join(L), tag)

def s1_dmas(s, wstride, masked=False):
    slot=s%3; L=[]
    for m in range(2): L.append(dma(vX, sX, 64*m*896+128*s, sLW, XR+slot*16384+m*8192, f's{s}'))
    for m in range(4): L.append(dma(vW, sW, (64*s+16*m)*wstride, sLW, WR+slot*32768+m*8192, f's{s}', masked))
    return L

PSLOT=[1,2,0,1,2,0]
def ks_lds(ks):
    p,i=divmod(ks,3); s=PSLOT[p]
    if i<2: return ('W', WR+s*32768+i*2048)
    return ('X', s*16384)
def s2_dmas(p):
    L=[]
    for ks in range(3*p,3*p+3):
        kind,off=ks_lds(ks)
        base = sL4 if kind=='W' else sL2k
        for h in range(2):
            if ks<14: L.append(dma(vW2, sW2, (sW2b,(16*ks+8*h)*896), base, off+1024*h, f'p{p}'))
            else:
                hd,s=divmod(ks-14,2)
                L.append(dma(vW2, sWO, (sWOb,(28*hd+16*s+8*h)*896), base, off+1024*h, f'p{p}'))
    return L
vS2=8
def s2_addr_setup(tmp):
    k.I(f'''v_lshrrev_b32 {v(tmp)}, 5, {v(vLane)}
    v_lshlrev_b32 {v(tmp)}, 9, {v(tmp)}
    v_bfe_u32 {v(tmp+1)}, {v(vLane)}, 2, 2
    v_lshl_add_u32 {v(tmp)}, {v(tmp+1)}, 7, {v(tmp)}
    v_lshrrev_b32 {v(tmp+1)}, 1, {v(tmp+1)}
    v_lshl_add_u32 {v(tmp)}, {v(tmp+1)}, 6, {v(tmp)}
    v_bfe_u32 {v(tmp+1)}, {v(vLane)}, 4, 1
    v_lshl_add_u32 {v(tmp)}, {v(tmp+1)}, 5, {v(tmp)}
    v_and_b32 {v(tmp+1)}, 3, {v(vLane)}
    v_lshl_add_u32 {v(tmp)}, {v(tmp+1)}, 3, {v(tmp)}
    v_xor_b32 {v(tmp+1)}, 64, {v(tmp)}
    v_add_u32 {v(vS2)}, {sL4}, {v(tmp)}
    v_add_u32 {v(vS2+1)}, {sL4}, {v(tmp+1)}
    v_add_u32 {v(vS2+2)}, 0x10000, {v(vS2)}
    v_add_u32 {v(vS2+3)}, 0x10000, {v(vS2+1)}
    v_add_u32 {v(vS2+4)}, {sL2k}, {v(tmp)}
    v_add_u32 {v(vS2+5)}, {sL2k}, {v(tmp+1)}''')
def wreg(ks,ct): return WREG+8*ks+4*ct
def s2_reads(p):
    L=[]
    for ks in range(3*p,3*p+3):
        kind,off=ks_lds(ks)
        if kind=='W':
            a=vS2
            if off>=65536: a+=2; off-=65536
        else: a=vS2+4
        for ct in range(2):
            for i in range(2):
                L.append(f'ds_read_b64_tr_b16 {v(wreg(ks,ct)+2*i,2)}, {v(a+ct)} offset:{off+1024*i}')
    return L

def emit_list(L):
    for x in L:
        if isinstance(x,tuple): k.I(x[0],x[1])
        else: k.I(x)

def gemm1(NA, NB, wstride, tail, masked=False, gate=None, zero_c=True):
    if NB==1: fa=lambda b,t: FA+16*b+4*t; fb=lambda b,t: FB+4*b
    else:     fa=lambda b,t: FB+4*b;      fb=lambda b,t: FA+16*b+4*t
    def reads(g):
        s,ks=divmod(g,4); slot=s%3; b=g&1; A=[];B=[]
        for t in range(NB):
            B.append(f'ds_read_b128 {v(fb(b,t),4)}, {v(vB+ks)} offset:{slot*16384+t*4096}')
        for t in range(NA):
            a=vA+t+(4 if slot==2 else 0); off=(slot&1)*32768+ks*8192
            A.append([f'ds_read_b64_tr_b16 {v(fa(b,t)+2*i,2)}, {v(a)} offset:{off+2048*i}' for i in range(2)])
        if NB==1: return B+[x for l in A for x in l]
        return A[0]+B
    def mfmas(g):
        b=g&1; L=[]
        for ta in range(NA):
            for tb in range(NB):
                d=v(ACC+16*(ta*NB+tb),16)
                c = '0' if (g==0 and zero_c) else d
                L.append(f'v_mfma_f32_32x32x16_bf16 {d}, {v(fa(b,ta),4)}, {v(fb(b,tb),4)}, {c}')
        return L
    k.wait_tag('s0'); k.waitcnt(lg=0); k.I('s_barrier')
    stamp(1)
    emit_list(reads(0))
    pend=[]
    for g in range(28):
        M=mfmas(g)
        if (g+1)%4==0:
            s=(g+1)//4
            k.waitcnt(lg=0)
            k.I(M[0]); M=M[1:]
            if s<7: k.wait_tag(f's{s}')
            k.I('s_barrier')
            n=s+2
            pend = s1_dmas(n,wstride,masked) if n<7 else list(tail.get(n,[]))
            if gate and n<7: pend = gate(n)+pend
        ex = reads(g+1) if g+1<28 else []
        nd = 2 if g<27 else 0
        d=pend[:nd]; pend=pend[nd:]
        if (g+2)%4==0 and g<27: d+=pend; pend=[]
        emit_list(interleave(M, ex+d))
    return pend

k.raw(f'; @launch grid=(256,1,1) block=(512,1,1) lds={LDS_BYTES}')
k.raw('.amdgcn_target "amdgcn-amd-amdhsa--gfx950"\n.text')
k.raw(f'.globl {NAME}_kernel\n.p2align 8\n.type {NAME}_kernel,@function\n{NAME}_kernel:')
k.I('s_cmp_ge_u32 s2, 256\ns_cbranch_scc1 L_end')
k.I('s_load_dwordx16 s[64:79], s[0:1], 0\ns_load_dwordx8 s[80:87], s[0:1], 64')
if TS:
    k.I(CLK+' s[100:101]')
k.I(f'v_lshrrev_b32 v1, 6, v0\nv_and_b32 v0, 63, v0\nv_readfirstlane_b32 {sWave}, v1')
k.I(f'''s_and_b32 {sT0}, s2, 7
s_lshr_b32 {sT1}, s2, 3
s_and_b32 {sT2}, {sT0}, 1
s_lshr_b32 {sT3}, {sT0}, 1
s_lshl_b32 {sTB}, {sT2}, 3
s_lshl_b32 {sLW}, {sWave}, 10
s_mov_b32 s40, {f2u(LOG2E)}
s_mov_b32 s41, {f2u(LOG2E)}
s_mov_b32 s42, {f2u(LOG2E)}
s_mov_b32 s43, {f2u(-LOG2E)}
s_mov_b32 s58, 0
s_mov_b32 s59, -1
v_lshlrev_b32 {v(vL16)}, 4, {v(vLane)}''')
k.I(f'''v_lshrrev_b32 v1, 3, v0
s_lshl_b32 {sA0}, {sWave}, 3
v_add_u32 v1, {sA0}, v1
v_lshrrev_b32 v2, 1, v1
v_xor_b32 v2, v2, v0
v_and_b32 v2, 7, v2
v_mul_u32_u24 v1, 896, v1
v_lshl_add_u32 {v(vX)}, v2, 4, v1''')
k.I(f'''v_and_b32 v1, 31, v0
v_bfe_u32 v2, v0, 1, 3
v_lshrrev_b32 v3, 5, v0
v_xor_b32 v2, v2, v3
v_lshlrev_b32 v2, 4, v2
v_lshl_add_u32 v1, v1, 7, v2
v_add_u32 {v(vB)}, {XR}, v1''')
k.I(f'''s_lshl_b32 {sA0}, {sWave}, 1
v_add_u32 v24, {sA0}, v3
v_and_b32 v25, 3, v24
v_lshlrev_b32 v25, 2, v25
v_and_b32 v26, 31, v0
v_xor_b32 v25, v25, v26''')
k.I(f'''v_bfe_u32 v28, v0, 2, 2
v_lshl_add_u32 v27, v3, 3, v28
v_lshlrev_b32 v27, 9, v27
v_lshlrev_b32 v28, 6, v28
v_bfe_u32 v29, v0, 4, 1
v_and_b32 v26, 3, v0
v_lshl_add_u32 v29, v29, 2, v26''')
k.force_wait(lg=0)
if TS: k.I(f's_mov_b32 s{sTS}, s100')
k.I(f's_load_dword {sTag}, s[{P(11)}:{P(11)+1}], {WS_EPOCH}')
srd(sX,0,2048*896); srd(sWS,11,0x10000000)
k.I(f's_cmp_lt_u32 {sT1}, 4\ns_cbranch_scc1 L_Q')
st_q=k.state()
k.I(f'''s_sub_u32 {sT1}, {sT1}, 4
s_mul_i32 {sT3}, {sT3}, 28
s_add_u32 {sT3}, {sT3}, {sT1}
s_lshr_b32 {sRole}, {sT3}, 3
s_and_b32 {sT3}, {sT3}, 7
s_add_u32 {sTB}, {sTB}, {sT3}
s_mul_i32 {sT2}, {sT1}, 37
s_lshr_b32 {sT2}, {sT2}, 8
s_mul_i32 {sT3}, {sT2}, 7
s_sub_u32 {sCT}, {sT1}, {sT3}
s_lshl_b32 {sT64}, {sT0}, 2
s_add_u32 {sT64}, {sT64}, {sT2}
s_mul_i32 {sT0}, {sTB}, {128*896}
v_add_u32 {v(vX)}, {sT0}, {v(vX)}
s_and_b32 {sT0}, {sWave}, 3
s_lshl_b32 {sT0}, {sT0}, 12
v_add_u32 {v(vB)}, {sT0}, {v(vB)}
v_xor_b32 {v(vB+1)}, 32, {v(vB)}
v_xor_b32 {v(vB+2)}, 64, {v(vB)}
v_xor_b32 {v(vB+3)}, 96, {v(vB)}''')
def s2_setup():
    srd(sW2,7,1792*896); srd(sWO,3,448*896); srd(sOUT,9,2048*896)
    k.I(f'''s_mul_i32 {sW2b}, {sWave}, {224*896}
    s_mul_i32 {sWOb}, {sWave}, {56*896}
    s_lshl_b32 {sL4}, {sWave}, 12
    s_lshl_b32 {sL2k}, {sWave}, 11
    s_add_u32 {sL2k}, {sL2k}, {XR}
    v_lshrrev_b32 v1, 3, v0
    v_lshlrev_b32 v2, 1, v1
    v_and_b32 v2, 4, v2
    v_and_b32 v3, 7, v0
    v_xor_b32 v2, v2, v3
    v_mul_u32_u24 v1, 896, v1
    v_lshl_add_u32 v1, v2, 4, v1
    s_lshl_b32 {sT0}, {sCT}, 7
    v_add_u32 {v(vW2)}, {sT0}, v1''')
def tags():
    k.force_wait(lg=0)
    k.I(f'''s_mul_i32 {sTag}, {sTag}, 1664525
    s_add_u32 {sTag}, {sTag}, 1013904223
    s_mul_i32 {sTag2}, {sTag}, 22695477
    s_add_u32 {sTag2}, {sTag2}, 12345''')
    stamp_init(); stamp(8)
def a_addr(t, colexpr_v):
    k.I(f'''v_xor_b32 {v(vA+t)}, {v(colexpr_v)}, v28
    v_add_u32 {v(vA+t)}, {v(vA+t)}, v27
    v_add_u32 {v(vA+4+t)}, 0x10000, {v(vA+t)}''')

k.I(f's_cmp_ge_u32 {sRole}, 8\ns_cbranch_scc1 L_KV')
st_kv=k.state()

def poll(loads, checks, name):
    lab=newlab(name); done=newlab(name+'d')
    k.I(f's_mov_b32 {sSpin}, {SPIN}')
    k.nop(2)
    k.label(lab)
    for l in loads: k.I(l)
    k.force_wait(vm=0)
    first=True
    for r,s in checks:
        if first: k.I(f'v_cmp_ne_u32 vcc, {s}, {v(r)}'); first=False
        else:
            k.I(f'v_cmp_ne_u32 {sMask}, {s}, {v(r)}'); k.I(f's_or_b64 vcc, vcc, {sMask}')
    k.nop(1)
    k.I(f's_cmp_eq_u64 vcc, 0\ns_cbranch_scc1 {done}')
    k.I(f's_sub_u32 {sSpin}, {sSpin}, 1\ns_cmp_lg_u32 {sSpin}, 0\ns_cbranch_scc1 {lab}')
    k.label(done)

def flag_store(soff_sgpr):
    k.I(f'v_mov_b32 v1, {sTag}\nv_mov_b32 v2, 0\ns_mov_b64 exec, 1')
    k.I(f'buffer_store_dword v1, v2, {sWS}, {soff_sgpr} offen sc1')
    k.I('s_mov_b64 exec, -1')

k.c('F role')
srd(sW,5,448*3584); srd(sM,6,1792*2)
k.I(f'''s_mul_i32 {sT0}, {sRole}, 448
s_and_b32 {sT1}, {sT0}, 127
s_sub_u32 {sT2}, {sT0}, {sT1}
s_movk_i32 {sT3}, 3584
v_mul_lo_u32 v24, v24, {sT3}
v_lshl_add_u32 v24, v25, 4, v24
v_add_u32 {v(vW)}, {sT2}, v24
s_lshr_b32 {sA1}, {sWave}, 2
s_lshl_b32 {sA1}, {sA1}, 8
s_add_u32 {sA0}, {sT0}, {sA1}
s_add_u32 {sA1}, {sT1}, {sA1}''')
k.I(f'v_lshrrev_b32 v1, 5, v0\nv_lshlrev_b32 v1, 3, v1')
for t in range(4):
    for q in range(4):
        k.I(f'buffer_load_dwordx2 {v(FA+8*t+2*q,2)}, v1, {sM}, {sA0} offen offset:{64*t+16*q}')
for s in range(3): emit_list(s1_dmas(s,3584))
for t in range(4):
    k.I(f'v_lshl_add_u32 v26, v29, 3, {sA1}\nv_add_u32 v26, {64*t}, v26')
    a_addr(t,26)
s2_setup()
k.I(f'v_mov_b32 {v(vC)}, 0.5\nv_mov_b32 {v(vC+1)}, 0.5\nv_mov_b32 {v(vC+2)}, 1.0\nv_mov_b32 {v(vC+3)}, 1.0')
for t in range(4):
    for q in range(8):
        k.I(f'v_lshlrev_b32 {v(ACC+16*t+2*q)}, 16, {v(FA+8*t+q)}\nv_and_b32 {v(ACC+16*t+2*q+1)}, 0xffff0000, {v(FA+8*t+q)}')
tags()
k.I(f's_cmp_ge_u32 {sWave}, 4\ns_cbranch_scc1 L_F3')
st_f3=k.state()

def mish_tile(t, T, U, O):
    L=[]
    for hh in range(2):
        a=ACC+16*t+8*hh
        for i in range(0,8,2): L.append(f'v_pk_mul_f32 {v(a+i,2)}, {v(a+i,2)}, {sL2}')
        for i in range(8): L.append(f'v_exp_f32 {v(T+i)}, {v(a+i)}')
        for i in range(0,8,2): L.append(f'v_pk_fma_f32 {v(U+i,2)}, {v(T+i,2)}, {v(vC,2)}, {v(vC+2,2)}')
        for i in range(0,8,2): L.append(f'v_pk_fma_f32 {v(U+i,2)}, {v(U+i,2)}, {v(T+i,2)}, {v(vC+2,2)}')
        for i in range(8): L.append(f'v_rcp_f32 {v(U+i)}, {v(U+i)}')
        for i in range(0,8,2): L.append(f'v_pk_fma_f32 {v(U+i,2)}, {v(a+i,2)}, {v(U+i,2)}, {v(a+i,2)} neg_lo:[1,0,0] neg_hi:[1,0,0]')
        for i in range(0,8,2): L.append(f'v_cvt_pk_bf16_f32 {v(O+4*hh+i//2)}, {v(U+i)}, {v(U+i+1)}')
    return L

def f_role(NT):
    gemm1(NT,1,3584,{7:s2_dmas(0),8:s2_dmas(1)},zero_c=False)
    stamp(2)
    k.I(f'''s_lshl_b32 {sA0}, {sTB}, 2
    s_and_b32 {sA1}, {sWave}, 3
    s_add_u32 {sA0}, {sA0}, {sA1}
    s_mul_i32 {sA0}, {sA0}, 112
    s_mul_i32 {sA1}, {sRole}, 14
    s_add_u32 {sA0}, {sA0}, {sA1}
    s_add_u32 {sA0}, {sA0}, {8 if NT==3 else 0}
    s_lshl_b32 {sA0}, {sA0}, 10
    s_add_u32 {sA0}, {sA0}, {WS_ACT}
    s_add_u32 {sA1}, {sA0}, 4096''')
    s2_addr_setup(1)
    emit_list(s2_dmas(2))
    k.wait_tag('p1')
    emit_list(s2_reads(0)+s2_reads(1))
    T=168;U=176;O=184
    def tile(t):
        L=mish_tile(t,T,U,O)
        n=len(L)//2
        st=lambda hh: f'buffer_store_dwordx4 {v(O+4*hh,4)}, {v(vL16)}, {sWS}, {sA0 if t<2 else sA1} offen offset:{(2*(t&1)+hh)*1024} sc1'
        return L[:n]+[st(0)]+L[n:]+[st(1)]
    L=tile(0); emit_list(L[:12]); k.waitcnt(lg=0)
    emit_list(interleave(L[12:]+tile(1), s2_dmas(3)+s2_dmas(4)))
    k.wait_tag('p2')
    emit_list(s2_reads(2))
    L=tile(2); emit_list(L[:12]); k.waitcnt(lg=0)
    emit_list(interleave(L[12:], s2_dmas(5), end=len(L)//2))
    if NT==4: emit_list(tile(3))
    k.I(f'''s_lshl_b32 {sA0}, {sTB}, 3
    s_add_u32 {sA0}, {sA0}, {sRole}
    s_lshl_b32 {sA0}, {sA0}, 7
    s_lshl_b32 {sA1}, {sWave}, 2
    s_add_u32 {sA0}, {sA0}, {sA1}
    s_add_u32 {sA0}, {sA0}, {WS_FA}''')
    stamp(9)
    k.force_wait(vm=0)
    flag_store(sA0)
    stamp(3)

f_role(4)
k.I('s_branch L_S2')
k.label('L_F3'); k.set_state(st_f3)
f_role(3)
k.I('s_branch L_S2')

def wphi_load(dst16, head_sgpr_off):
    for s in range(2):
        for j in range(8):
            d=16*s+(j&3)+8*(j>>2)
            k.I(f'buffer_load_ushort {v(dst16+8*s+j)}, v30, {sM}, {head_sgpr_off} offen offset:{d*56}')
def wphi_lane():
    k.I('''v_and_b32 v30, 3, v0
    v_bfe_u32 v31, v0, 3, 2
    v_lshl_add_u32 v30, v31, 2, v30
    v_bfe_u32 v31, v0, 2, 1
    v_mul_u32_u24 v31, 14, v31
    v_add_u32 v30, v30, v31
    v_min_u32 v30, 27, v30
    v_lshlrev_b32 v30, 1, v30
    v_lshrrev_b32 v31, 5, v0
    v_mul_u32_u24 v31, 224, v31
    v_add_u32 v30, v30, v31''')
def wphi_pack(src16,dst8):
    for i in range(8):
        k.I(f'v_lshl_or_b32 {v(dst8+i)}, {v(src16+2*i+1)}, 16, {v(src16+2*i)}')
    for i in (6,7):
        k.I(f'v_cndmask_b32 {v(dst8+i)}, {v(dst8+i)}, 0, {sHi}')

def feat(a, wp, PK, Pp, E, S, norm):
    for i in range(8): k.I(f'v_cvt_pk_bf16_f32 {v(PK+i)}, {v(a+2*i)}, {v(a+2*i+1)}')
    k.I(f'v_mfma_f32_32x32x16_bf16 {v(Pp,16)}, {v(wp,4)}, {v(PK,4)}, 0')
    k.I(f'v_mfma_f32_32x32x16_bf16 {v(Pp,16)}, {v(wp+4,4)}, {v(PK+4,4)}, {v(Pp,16)}')
    k.I(f'v_max_f32 {v(S)}, {v(Pp)}, {v(Pp+1)}')
    k.I(f'v_max_f32 {v(S+1)}, -{v(Pp)}, -{v(Pp+1)}')
    for i in range(2,14,2):
        k.I(f'v_max3_f32 {v(S)}, {v(S)}, {v(Pp+i)}, {v(Pp+i+1)}')
        k.I(f'v_max3_f32 {v(S+1)}, {v(S+1)}, -{v(Pp+i)}, -{v(Pp+i+1)}')
    k.I(f'v_permlane32_swap_b32 {v(S)}, {v(S+1)}')
    k.I(f'v_max_f32 {v(S)}, {v(S)}, {v(S+1)}')
    k.I(f'v_mul_f32 {v(S)}, s43, {v(S)}')
    k.I(f'v_mov_b32 {v(S+1)}, {v(S)}')
    k.I(f'v_permlane32_swap_b32 {v(S)}, {v(S+1)}')
    for r in range(14):
        h=r&1
        k.I(f'v_pk_fma_f32 {v(E+2*r,2)}, {v(Pp+r-h,2)}, {sLn}, {v(S,2)} op_sel:[{h},0,0] op_sel_hi:[{h},1,1]')
    for r in range(28): k.I(f'v_exp_f32 {v(E+r)}, {v(E+r)}')
    if norm:
        k.I(f'v_pk_add_f32 {v(S,2)}, {v(E,2)}, {v(E+2,2)}')
        k.I(f'v_pk_add_f32 {v(S+2,2)}, {v(E+4,2)}, {v(E+6,2)}')
        for r in range(4,14):
            s=S+2*(r&1)
            k.I(f'v_pk_add_f32 {v(s,2)}, {v(s,2)}, {v(E+2*r,2)}')
        k.I(f'v_pk_add_f32 {v(S,2)}, {v(S,2)}, {v(S+2,2)}')
        k.I(f'v_permlane32_swap_b32 {v(S)}, {v(S+1)}')
        k.I(f'v_add_f32 {v(S)}, {v(S)}, {v(S+1)}')
        k.I(f'v_rcp_f32 {v(S)}, {v(S)}')
        k.I(f'v_mov_b32 {v(S+1)}, {v(S)}')
        k.I(f'v_permlane32_swap_b32 {v(S)}, {v(S+1)}')
        for r in range(14): k.I(f'v_pk_mul_f32 {v(E+2*r,2)}, {v(E+2*r,2)}, {v(S,2)}')
def feat_pack(E, O):
    for sg in range(2):
        for i in range(7):
            k.I(f'v_cvt_pk_bf16_f32 {v(O+8*sg+i)}, {v(E+4*i+sg)}, {v(E+4*i+2+sg)}')

k.label('L_KV'); k.set_state(st_kv)
k.c('KV role')
srd(sW,1,448*2688); srd(sM,2,16*1568)
k.I(f'''s_sub_u32 {sRole}, {sRole}, 8
s_lshl_b32 {sT0}, {sRole}, 2
s_lshr_b32 {sH0}, 0xDA8630, {sT0}
s_and_b32 {sH0}, {sH0}, 15
s_lshl_b32 {sT2}, {sRole}, 7
s_movk_i32 {sT3}, 2688
v_mul_lo_u32 v24, v24, {sT3}
v_lshl_add_u32 v24, v25, 4, v24
v_lshrrev_b32 v25, 4, v25
v_mul_u32_u24 v25, 640, v25
v_add_u32 v24, v24, v25
s_add_u32 {sT1}, {sT2}, 896
v_add_u32 {v(vW)}, {sT1}, v24
s_mul_i32 {sA1}, {sH0}, 56
s_sub_u32 {sA1}, {sA1}, {sT2}''')
wphi_lane()
k.I(f'''s_lshr_b32 {sT1}, {sWave}, 2
s_lshl_b32 {sT2}, {sT1}, 1
s_add_u32 {sT2}, {sT2}, {sH0}
s_mul_i32 {sT2}, {sT2}, 1568
s_add_u32 {sT3}, {sH0}, 1
s_mul_i32 {sT3}, {sT3}, 1568''')
wphi_load(FA,sT2); wphi_load(FA+16,sT3)
for s in range(3): emit_list(s1_dmas(s,2688))
k.I(f'v_min_u32 v29, 6, v29\ns_lshr_b32 {sT1}, {sWave}, 2')
for t,(o0,o1) in enumerate([(0,112),(56,312),(256,368)]):
    k.I(f's_mul_i32 {sT2}, {sT1}, {o1-o0}\ns_add_u32 {sT2}, {sT2}, {sA1}\ns_add_u32 {sT2}, {sT2}, {o0}\nv_lshl_add_u32 v26, v29, 3, {sT2}')
    a_addr(t,26)
s2_setup()
WP=128
wphi_pack(FA,WP); wphi_pack(FA+16,WP+8)
tags()
gemm1(3,1,2688,{7:s2_dmas(0)})
stamp(2)
PHI=[0,16384,65536]; VV=[81920,81920+64,98304]
k.I(f'''v_and_b32 v1, 5, v0
v_and_b32 v2, 2, v0
v_lshl_or_b32 v1, v2, 2, v1
v_bfe_u32 v2, v0, 3, 1
v_lshl_or_b32 v1, v2, 1, v1
v_lshrrev_b32 v2, 5, v0
v_xor_b32 v1, v1, v2
v_and_b32 v2, 31, v0
v_lshlrev_b32 v2, 7, v2
v_lshl_or_b32 v1, v1, 3, v2
s_and_b32 {sT0}, {sWave}, 3
s_lshl_b32 {sT0}, {sT0}, 12
v_add_u32 v8, {sT0}, v1''')
for c in range(1,8): k.I(f'v_xor_b32 {v(8+c)}, {16*c}, v8')
PK=48;Pp=56;E=72;S=100;O=104
def wr_tile(src, base, n):
    hi = 4 if (base&64) else 0; b=base&~64
    for q in range(n):
        if b<65536: k.I(f'ds_write_b64 {v(8+hi+q)}, {v(src+2*q,2)} offset:{b}')
        else:
            k.I(f'v_add_u32 v1, 0x10000, {v(8+hi+q)}'); k.I(f'ds_write_b64 v1, {v(src+2*q,2)} offset:{b-65536}')
def k_tile(t, wp, arr):
    feat(ACC+16*t, wp, PK, Pp, E, S, True)
    feat_pack(E,O)
    wr_tile(O, arr, 8)
def v_tile(t, arr, tmp):
    a=ACC+16*t
    k.I(f'v_cndmask_b32 {v(a+12)}, {v(a+12)}, 1.0, {sHi}')
    for i in range(8): k.I(f'v_cvt_pk_bf16_f32 {v(tmp+i)}, {v(a+2*i)}, {v(a+2*i+1)}')
    wr_tile(tmp, arr, 4)
k.I(f'v_mov_b32 {v(O+7)}, 0\nv_mov_b32 {v(O+15)}, 0')
k.I(f's_cmp_ge_u32 {sWave}, 4\ns_cbranch_scc1 L_KV1')
st=k.state()
v_tile(2,VV[0],160); k_tile(0,WP,PHI[0]); k.waitcnt(lg=0); k_tile(1,WP+8,PHI[1])
k.force_wait(lg=0); k.I('s_branch L_KV2')
k.label('L_KV1'); k.set_state(st)
v_tile(1,VV[1],160); v_tile(2,VV[2],168); k_tile(0,WP,PHI[2])
k.force_wait(lg=0)
k.label('L_KV2'); k.nop(4)
k.I('s_barrier')
stamp(3)
k.I(f's_cmp_ge_u32 {sWave}, 6\ns_cbranch_scc1 L_KV3')
k.I(f'''v_bfe_u32 v1, v0, 2, 2
v_lshrrev_b32 v2, 5, v0
v_lshl_add_u32 v3, v2, 3, v1
v_lshlrev_b32 v3, 7, v3
v_and_b32 v8, 1, v1
v_lshl_or_b32 v8, v2, 1, v8
v_lshrrev_b32 v1, 1, v1
v_lshl_or_b32 v8, v1, 3, v8
v_bfe_u32 v1, v0, 4, 1
v_and_b32 v2, 3, v0
v_lshl_add_u32 v1, v1, 2, v2
v_xor_b32 v8, v8, v1
v_lshl_add_u32 v8, v8, 3, v3
s_lshr_b32 {sT0}, {sWave}, 1
s_and_b32 {sT1}, {sWave}, 1
s_lshl_b32 {sT1}, {sT1}, 6
s_lshl_b32 {sT2}, {sT0}, 14
s_cmp_eq_u32 {sT0}, 2
s_cselect_b32 {sT2}, 65536, {sT2}
s_cselect_b32 {sT3}, 16384, 0
s_add_u32 {sT3}, {sT3}, 81920
s_cmp_eq_u32 {sT0}, 1
s_cselect_b32 {sA0}, 64, 0
v_xor_b32 v10, {sA0}, v8
v_xor_b32 v8, {sT1}, v8
v_xor_b32 v9, 32, v8
v_xor_b32 v11, 32, v10
v_add_u32 v8, {sT2}, v8
v_add_u32 v9, {sT2}, v9
v_add_u32 v10, {sT3}, v10
v_add_u32 v11, {sT3}, v11''')
KA=48; KB=80; KD=112
for ks in range(8):
    for i in range(2):
        k.I(f'ds_read_b64_tr_b16 {v(KA+4*ks+2*i,2)}, {v(8+i)} offset:{2048*ks+512*i}')
        k.I(f'ds_read_b64_tr_b16 {v(KB+4*ks+2*i,2)}, {v(10+i)} offset:{2048*ks+512*i}')
k.I(f'''s_add_u32 {sA0}, {sH0}, {sT0}
s_lshl_b32 {sA0}, {sA0}, 1
s_and_b32 {sT1}, {sWave}, 1
s_add_u32 {sA0}, {sA0}, {sT1}
s_lshl_b32 {sA0}, {sA0}, 7
s_add_u32 {sA0}, {sA0}, {sTB}
s_lshl_b32 {sA0}, {sA0}, 10
s_add_u32 {sA0}, {sA0}, {WS_P1}''')
G0=160
for p in range(7): k.I(f'v_mov_b32 {v(G0+4*p+2)}, {sTag}\nv_mov_b32 {v(G0+4*p+3)}, {sTag2}')
for ks in range(8):
    k.I(f'v_mfma_f32_32x32x16_bf16 {v(KD,16)}, {v(KA+4*ks,4)}, {v(KB+4*ks,4)}, {"0" if ks==0 else v(KD,16)}')
for p in range(7):
    k.I(f'v_mov_b32 {v(G0+4*p)}, {v(KD+2*p)}\nv_mov_b32 {v(G0+4*p+1)}, {v(KD+2*p+1)}')
    k.I(f'buffer_store_dwordx4 {v(G0+4*p,4)}, {v(vL16)}, {sWS}, {sA0} offen sc1')
    k.I(f's_add_u32 {sA0}, {sA0}, 16384')
k.label('L_KV3'); k.nop(4)
k.I('s_barrier')
stamp(4)
k.I(f's_cmp_lt_u32 {sWave}, 5\ns_cbranch_scc1 L_KV4')
k.I(f's_and_b32 {sT0}, {sTB}, 7\ns_cmp_eq_u32 {sT0}, 7\ns_cbranch_scc1 L_KV4')
k.I(f'''s_add_u32 {sA0}, {sH0}, {sWave}
s_sub_u32 {sA0}, {sA0}, 5
s_lshl_b32 {sA0}, {sA0}, 4
s_add_u32 {sA0}, {sA0}, {sTB}
s_lshl_b32 {sA1}, {sA0}, 9
s_add_u32 {sA1}, {sA1}, {WS_P2}
s_lshl_b32 {sA0}, {sA0}, 14
s_add_u32 {sA0}, {sA0}, {WS_P1}
s_add_u32 {sT1}, {sA0}, 4096
s_add_u32 {sT2}, {sA0}, 8192
s_add_u32 {sT3}, {sA0}, 12288''')
R0=48
poll([f'buffer_load_dwordx4 {v(R0+4*i,4)}, {v(vL16)}, {sWS}, {[sA0,sT1,sT2,sT3][i>>2]} offen offset:{(i&3)*1024} sc1' for i in range(16)],
     [(R0+4*i+2+j,[sTag,sTag2][j]) for i in range(16) for j in range(2)],'p1')
for i in range(1,16): k.I(f'v_pk_add_f32 {v(R0,2)}, {v(R0,2)}, {v(R0+4*i,2)}')
k.I(f'v_cvt_pk_bf16_f32 v2, {v(R0)}, {v(R0+1)}\nv_mov_b32 v3, {sTag}\nv_lshlrev_b32 v1, 3, v0')
k.I(f'buffer_store_dwordx2 v[2:3], v1, {sWS}, {sA1} offen sc1')
k.label('L_KV4'); k.nop(4)
stamp(5)
s2_addr_setup(1)
k.vm=[(set(),'p0')]
emit_list(s2_dmas(1)+s2_dmas(2))
k.wait_tag('p0'); emit_list(s2_reads(0)); k.waitcnt(lg=0); emit_list(s2_dmas(3))
k.wait_tag('p1'); emit_list(s2_reads(1)); k.waitcnt(lg=0); emit_list(s2_dmas(4))
k.wait_tag('p2'); emit_list(s2_reads(2)); k.waitcnt(lg=0); emit_list(s2_dmas(5))
k.force_wait(vm=0)
stamp(9)

k.label('L_S2'); k.reset_state(); k.nop(4)
k.c('stage 2: pieces 0-2 in regs, pieces 3-5 landed in LDS')
emit_list(s2_reads(3)+s2_reads(4)+s2_reads(5))
k.I(f'''s_lshr_b32 {sT1}, {sT64}, 1
s_lshl_b32 {sA0}, {sT1}, 3
s_add_u32 {sA0}, {sA0}, {sWave}
s_lshl_b32 {sA0}, {sA0}, 7
s_and_b32 {sT2}, {sT64}, 1
s_lshl_b32 {sT2}, {sT2}, 3
s_add_u32 {sA0}, {sA0}, {sT2}
s_add_u32 {sA0}, {sA0}, {WS_FA}
v_and_b32 v1, 1, v0
v_and_b32 v2, 2, v0
v_lshlrev_b32 v2, 3, v2
v_lshl_or_b32 v1, v1, 2, v2''')
poll([f'buffer_load_dword v2, v1, {sWS}, {sA0} offen sc1'],[(2,sTag)],'fa')
stamp(6)
k.I(f'''s_mul_i32 {sA0}, {sT64}, 224
s_mul_i32 {sA1}, {sWave}, 14
s_add_u32 {sA0}, {sA0}, {sA1}
s_lshl_b32 {sA0}, {sA0}, 10
s_add_u32 {sA0}, {sA0}, {WS_ACT}''')
k.waitcnt(lg=0)
bufs=[168,172,176,180,184,188,8,12,16,20]
free=list(bufs); where={}
def act_load(ks,tt):
    b=free.pop(0); where[(ks,tt)]=b
    off=(tt*112+ks)*1024
    return f's_add_u32 {sT0}, {sA0}, {off&~4095}\nbuffer_load_dwordx4 {v(b,4)}, {v(vL16)}, {sWS}, {sT0} offen offset:{off&4095} sc1'
order=[(ks,tt) for ks in range(14) for tt in range(2)]
nl=0
while free and nl<len(order): k.I(act_load(*order[nl])); nl+=1
def acc2(tt,ct): return ACC+32*tt+16*ct
for ks in range(14):
    for tt in range(2):
        for ct in range(2):
            d=v(acc2(tt,ct),16)
            k.I(f'v_mfma_f32_32x32x16_bf16 {d}, {v(wreg(ks,ct),4)}, {v(where[(ks,tt)],4)}, {"0" if ks==0 else d}')
    if ks>=1:
        free += [where[(ks-1,0)],where[(ks-1,1)],wreg(ks-1,0),wreg(ks-1,1)]
    while free and nl<len(order): k.I(act_load(*order[nl])); nl+=1
stamp(10)
k.I(f'''s_lshr_b32 {sT1}, {sT64}, 1
s_lshl_b32 {sT1}, {sT1}, 4
s_lshl_b32 {sT2}, {sWave}, 1
s_add_u32 {sT1}, {sT1}, {sT2}
s_lshl_b32 {sA0}, {sT1}, 7
s_add_u32 {sA0}, {sA0}, {WS_FO}
v_and_b32 v1, 1, v0
v_lshlrev_b32 v1, 7, v1''')
poll([f'buffer_load_dword v2, v1, {sWS}, {sA0} offen sc1'],[(2,sTag)],'fo')
stamp(11)
k.I(f'''s_lshl_b32 {sA1}, {sT1}, 9
s_and_b32 {sT3}, {sT64}, 1
s_lshl_b32 {sT3}, {sT3}, 8
s_add_u32 {sA1}, {sA1}, {sT3}
s_add_u32 {sA1}, {sA1}, {WS_G}
s_lshl_b32 {sA0}, {sT64}, 5
s_add_u32 {sA0}, {sA0}, {sT2}
s_lshl_b32 {sA0}, {sA0}, 11
s_add_u32 {sA0}, {sA0}, {WS_O}
s_add_u32 {sT3}, {sA0}, 32768
v_and_b32 v1, 31, v0
v_lshlrev_b32 v1, 2, v1''')
k.I(f'buffer_load_dword v2, v1, {sWS}, {sA1} offen sc1')
k.I(f'buffer_load_dword v4, v1, {sWS}, {sA1} offen offset:128 sc1')
OB=24
for q in range(4):
    for tt in range(2):
        k.I(f'buffer_load_dwordx4 {v(OB+8*q+4*tt,4)}, {v(vL16)}, {sWS}, {sA0 if tt==0 else sT3} offen offset:{q*1024} sc1')
for tt in range(2):
    for i in range(0,32,2):
        k.I(f'v_pk_mul_f32 {v(ACC+32*tt+i,2)}, {v(ACC+32*tt+i,2)}, {v(2+2*tt,2)} op_sel_hi:[1,0]')
for q in range(4):
    for tt in range(2):
        for ct in range(2):
            d=v(acc2(tt,ct),16)
            k.I(f'v_mfma_f32_32x32x16_bf16 {d}, {v(wreg(14+q,ct),4)}, {v(OB+8*q+4*tt,4)}, {d}')
stamp(12)
k.I(f'''v_and_b32 v1, 31, v0
v_lshrrev_b32 v2, 5, v0
v_and_b32 v3, 7, v0
v_xor_b32 v2, v2, v3
v_lshlrev_b32 v1, 8, v1
v_lshl_or_b32 v1, v2, 4, v1
s_lshl_b32 {sT0}, {sWave}, 14
v_add_u32 v8, {sT0}, v1
v_xor_b32 v9, 32, v8
v_xor_b32 v10, 64, v8
v_xor_b32 v11, 96, v8''')
k.I('s_barrier')
for tt in range(2):
    for ct in range(2):
        for q in range(4):
            k.I(f'ds_write_b128 {v(8+q)}, {v(acc2(tt,ct)+4*q,4)} offset:{tt*8192+ct*128}')
k.I(f'''v_lshrrev_b32 v1, 3, v0
v_and_b32 v2, 7, v0
v_lshlrev_b32 v3, 1, v2
v_xor_b32 v3, v3, v1
v_lshlrev_b32 v3, 4, v3
v_lshl_or_b32 v3, v1, 8, v3
s_lshl_b32 {sT0}, {sWave}, 11
v_add_u32 v12, {sT0}, v3
v_xor_b32 v13, 16, v12
v_add_u32 v14, 0x10000, v12
v_add_u32 v15, 0x10000, v13
v_mul_u32_u24 v1, 896, v1
v_lshl_add_u32 v1, v2, 4, v1
s_lshl_b32 {sT0}, {sT64}, 3
s_add_u32 {sT0}, {sT0}, {sWave}
s_mul_i32 {sT0}, {sT0}, {8*896}
s_lshl_b32 {sT1}, {sCT}, 7
s_add_u32 {sT0}, {sT0}, {sT1}''')
k.waitcnt(lg=0); stamp(13); k.I('s_barrier')
RB=24
for s in range(8):
    for c in range(2):
        k.I(f'ds_read_b128 {v(RB+8*s+4*c,4)}, {v(12+c+(2 if s>=4 else 0))} offset:{(s&3)*16384}')
for s in range(1,8):
    for i in range(0,8,2): k.I(f'v_pk_add_f32 {v(RB+i,2)}, {v(RB+i,2)}, {v(RB+8*s+i,2)}')
for i in range(4): k.I(f'v_cvt_pk_bf16_f32 {v(16+i)}, {v(RB+2*i)}, {v(RB+2*i+1)}')
k.I(f'buffer_store_dwordx4 v[16:19], v1, {sOUT}, {sT0} offen')
stamp(15)
dump_stamps()
k.I('s_endpgm')

k.label('L_Q'); k.set_state(st_q)
k.c('Q role')
srd(sW,1,448*2688); srd(sM,2,16*1568); srd(sG,8,896)
k.I(f'''s_lshl_b32 {sT3}, {sT3}, 2
s_add_u32 {sT3}, {sT3}, {sT1}
s_lshr_b32 {sRole}, {sT3}, 3
s_and_b32 {sT3}, {sT3}, 7
s_add_u32 {sTB}, {sTB}, {sT3}
s_mul_i32 {sT0}, {sTB}, {128*896}
v_add_u32 {v(vX)}, {sT0}, {v(vX)}
v_xor_b32 {v(vB+1)}, 32, {v(vB)}
v_xor_b32 {v(vB+2)}, 64, {v(vB)}
v_xor_b32 {v(vB+3)}, 96, {v(vB)}
s_lshl_b32 {sH0}, {sRole}, 3
s_add_u32 {sH0}, {sH0}, {sWave}
s_movk_i32 {sT3}, 2688
v_mul_lo_u32 v24, v24, {sT3}
v_lshl_add_u32 v24, v25, 4, v24
s_mul_i32 {sT2}, {sRole}, 384
v_add_u32 {v(vW)}, {sT2}, v24
s_cmp_eq_u32 {sRole}, 0
s_cselect_b32 {sA0}, 7, 0
v_lshrrev_b32 v25, 2, v25
v_cmp_ne_u32 {sMask}, {sA0}, v25
s_mul_i32 {sA1}, {sH0}, 56
s_sub_u32 {sA1}, {sA1}, {sT2}
s_lshl_b32 {sA0}, {sA0}, 6''')
wphi_lane()
k.I(f's_mul_i32 {sT2}, {sH0}, 1568')
wphi_load(FA,sT2)
GV=32
k.I('v_lshlrev_b32 v1, 1, v0')
for s in range(7): k.I(f'buffer_load_ushort {v(GV+2*s)}, v1, {sG}, 0 offen offset:{128*s}')
for s in range(3): emit_list(s1_dmas(s,2688,True))
for s in range(7): k.I(f'v_mov_b32 {v(GV+2*s+1)}, 0')
k.I(f'''v_lshl_add_u32 v26, v29, 3, {sA1}
v_mov_b32 v1, {sA0}
v_cmp_eq_u32 vcc, 7, v29
v_cndmask_b32 v26, v26, v1, vcc''')
a_addr(0,26)
k.I(f'''v_and_b32 v2, 3, v0
v_lshlrev_b32 v2, 6, v2
v_xor_b32 v2, v2, v1
v_lshl_add_u32 v9, v0, 9, v2
v_add_u32 v13, 0x10000, v9''')
WP=128
wphi_pack(FA,WP)
gate=lambda s: [f'ds_write_b64 {v(13 if s%3==2 else 9)}, {v(GV+2*s,2)} offset:{((s%3)&1)*32768}']
for s in range(3): emit_list(gate(s))
tags()
gemm1(1,4,2688,{},masked=True,gate=gate)
stamp(2)
EQ=24
PK=88;Pp=96;E=136;S=164;GG=168
for t in range(4):
    a=ACC+16*t
    k.I(f'v_mul_f32 {v(GG+t)}, s43, {v(a+12)}')
    k.I(f'v_mov_b32 {v(EQ+16*t+7)}, 0\nv_mov_b32 {v(EQ+16*t+15)}, 0')
    k.I(f'v_exp_f32 {v(GG+t)}, {v(GG+t)}')
    feat(a, WP, PK, Pp, E, S, False)
    k.I(f'v_add_f32 {v(GG+t)}, 1.0, {v(GG+t)}')
    k.I(f'v_rcp_f32 {v(GG+t)}, {v(GG+t)}')
    feat_pack(E,EQ+16*t)
k.I(f'''s_lshl_b32 {sT1}, {sTB}, 4
s_add_u32 {sT1}, {sT1}, {sH0}
s_lshl_b32 {sA0}, {sT1}, 9
s_add_u32 {sA0}, {sA0}, {WS_G}
v_and_b32 v1, 31, v0
v_lshlrev_b32 v1, 2, v1
s_mov_b32 {sT0}, {f2u(LN2)}''')
for t in range(4):
    k.I(f'v_sub_f32 {v(172+t)}, 1.0, {v(GG+t)}\nv_mul_f32 {v(172+t)}, {sT0}, {v(172+t)}')
k.I(f's_mov_b64 exec, {sHi}')
for t in range(4): k.I(f'buffer_store_dword {v(172+t)}, v1, {sWS}, {sA0} offen offset:{128*t} sc1')
k.I('s_mov_b64 exec, -1')
stamp(3)
k.I(f'''s_lshl_b32 {sA0}, {sH0}, 13
s_add_u32 {sA0}, {sA0}, {WS_P2}
s_add_u32 {sA1}, {sA0}, 4096
v_lshlrev_b32 v1, 3, v0''')
R0=96
sl=[s for s in range(16) if (s&7)!=7]
poll([f'buffer_load_dwordx2 {v(R0+2*s,2)}, v1, {sWS}, {sA0 if s<8 else sA1} offen offset:{(s&7)*512} sc1' for s in sl],
     [(R0+2*s+1,sTag) for s in sl],'p2')
stamp(4)
KV=136
k.I(f'v_and_b32 v2, 31, v0\nv_cmp_eq_u32 vcc, 29, v2\nv_mov_b32 v3, 0x3f803f80')
for s in range(16):
    if (s&7)==7: k.I(f'v_mov_b32 {v(KV+s)}, 0')
    else: k.I(f'v_cndmask_b32 {v(KV+s)}, {v(R0+2*s)}, v3, vcc')
k.I(f'''s_lshl_b32 {sA0}, {sTB}, 6
s_add_u32 {sA0}, {sA0}, {sH0}
s_lshl_b32 {sA0}, {sA0}, 11
s_add_u32 {sA0}, {sA0}, {WS_O}
s_mov_b32 {sT1}, {f2u(1e-6)}''')
def nacc(t,sg): return ACC+32*(t&1)+16*sg
def omf(t):
    for sg in range(2):
        for s in range(2):
            d=v(nacc(t,sg),16)
            k.I(f'v_mfma_f32_32x32x16_bf16 {d}, {v(KV+8*sg+4*s,4)}, {v(EQ+16*t+8*sg+4*s,4)}, {"0" if s==0 else d}')
omf(0)
for t in range(4):
    if t<3: omf(t+1)
    p=nacc(t,0); n=nacc(t,1)
    k.I(f'''v_rcp_f32 v8, {v(p+13)}
    v_rcp_f32 v10, {v(n+13)}
    v_fma_f32 v12, {v(p+12)}, v8, {sT1}
    v_fma_f32 v12, {v(n+12)}, v10, v12
    v_rcp_f32 v12, v12
    v_mul_f32 v12, v12, {v(GG+t)}
    v_mul_f32 v8, v8, v12
    v_mul_f32 v10, v10, v12
    v_mov_b32 v9, v8
    v_mov_b32 v11, v10
    v_permlane32_swap_b32 v9, v8
    v_permlane32_swap_b32 v11, v10''')
    for i in range(0,16,2): k.I(f'v_pk_mul_f32 {v(p+i,2)}, {v(p+i,2)}, v[8:9] op_sel_hi:[1,0]')
    for i in range(0,16,2): k.I(f'v_pk_fma_f32 {v(p+i,2)}, {v(n+i,2)}, v[10:11], {v(p+i,2)} op_sel_hi:[1,0,1]')
    o=96+8*t
    for i in range(8): k.I(f'v_cvt_pk_bf16_f32 {v(o+i)}, {v(p+2*i)}, {v(p+2*i+1)}')
    for i in (6,7): k.I(f'v_cndmask_b32 {v(o+i)}, {v(o+i)}, 0, {sHi}')
    for s in range(2): k.I(f'buffer_store_dwordx4 {v(o+4*s,4)}, {v(vL16)}, {sWS}, {sA0} offen offset:{1024*s} sc1')
    k.I(f's_add_u32 {sA0}, {sA0}, 32768')
k.I(f'''s_lshl_b32 {sA0}, {sTB}, 4
s_add_u32 {sA0}, {sA0}, {sH0}
s_lshl_b32 {sA0}, {sA0}, 7
s_add_u32 {sA0}, {sA0}, {WS_FO}''')
stamp(9)
k.force_wait(vm=0)
flag_store(sA0)
stamp(5)
k.I(f's_cmp_lg_u32 s2, 0\ns_cbranch_scc1 L_Qend\ns_cmp_lg_u32 {sWave}, 0\ns_cbranch_scc1 L_Qend')
k.I('v_lshlrev_b32 v1, 7, v0')
k.I(f's_mov_b32 {sA0}, {WS_FA}\ns_mov_b32 {sA1}, {WS_FA+8192}\ns_mov_b32 {sT0}, {WS_FO}\ns_mov_b32 {sT1}, {WS_FO+8192}\ns_mov_b32 {sT2}, {WS_FO+16384}\ns_mov_b32 {sT3}, {WS_FO+24576}')
poll([f'buffer_load_dword {v(8+i)}, v1, {sWS}, {s} offen sc1' for i,s in enumerate([sA0,sA1,sT0,sT1,sT2,sT3])],[(8+i,sTag) for i in range(6)],'ep')
k.I(f's_mov_b32 {sA0}, {WS_EPOCH}')
flag_store(sA0)
k.label('L_Qend'); k.nop(2)
stamp(15)
dump_stamps()
k.label('L_end')
k.I('s_endpgm')
k.raw(f""".section .rodata,"a"
.p2align 6
.amdhsa_kernel {NAME}_kernel
  .amdhsa_next_free_vgpr 256
  .amdhsa_next_free_sgpr 102
  .amdhsa_accum_offset 256
  .amdhsa_group_segment_fixed_size 0
  .amdhsa_kernarg_size 96
  .amdhsa_user_sgpr_count 2
  .amdhsa_user_sgpr_kernarg_segment_ptr 1
  .amdhsa_system_sgpr_workgroup_id_x 1
.end_amdhsa_kernel""")
open(OUT,'w').write(k.text())
print('instructions', k.nins)
```

```python
import sys, struct
from emit import K, interleave
NAME = "gated_mix__linear_kernel_hedgehog__dense_activation_mish__prompt"
TS = '--ts' in sys.argv
CLK = 's_memtime' if '--cyc' in sys.argv else 's_memrealtime'
OPT = {a[2:].split('=')[0]:(a.split('=')[1] if '=' in a else '1') for a in sys.argv[1:] if a.startswith('--')}
OUT = [a for a in sys.argv[1:] if not a.startswith('--')][0]

def f2u(x): return struct.unpack('<I', struct.pack('<f', x))[0]
LOG2E = 1.4426950408889634; LN2 = 0.6931471805599453

WB=int(OPT.get('wb','0'),0)
WS_EPOCH=0; WS_FA=WB+0x20000; WS_FO=WB+0x24000; WS_G=WB+0x2C000; WS_P2=WB+0x30000; WS_P1=WB+0x100000; WS_O=WB+0x500000; WS_ACT=WB+0x800000; WS_TS=0xF000000
WR=0; XR=96*1024; MISC=144*1024; LDS_BYTES=160*1024
SPIN=200000

sRot='s3'; sR6='s6'; sR7='s7'
sX='s[8:11]'; sW='s[12:15]'; sWS='s[16:19]'; sW2='s[20:23]'; sWO='s[24:27]'; sOUT='s[28:31]'; sM='s[32:35]'; sG='s[36:39]'
sL2='s[40:41]'
sLn='s[42:43]'
sWave='s44'; sTB='s45'; sRole='s46'; sT64='s47'; sCT='s48'; sTag='s49'; sTagH='s50'
sLW='s51'
sT0='s52'; sT1='s53'; sT2='s54'; sT3='s55'
sMask='s[56:57]'; sHi='s[58:59]'
sW2b='s60'; sWOb='s61'; sL4='s62'; sL2k='s63'
sSpin='s88'; sH0='s89'; sA0='s90'; sA1='s91'
sTS=92
sI='s94'; sStr='s95'; sB0='s96'; sE='s97'; sA2='s98'; sA3='s99'
sRa='s4'; sRb='s5'
sT16='s80'
P = lambda i: 64+2*i

def v(a,n=1): return f'v{a}' if n==1 else f'v[{a}:{a+n-1}]'

k=K()
nlab=[0]
def newlab(p):
    nlab[0]+=1; return f'L_{p}_{nlab[0]}'

def srd(dst, ptr, size):
    d=int(dst[2:dst.index(':')])
    k.I(f's_mov_b32 s{d}, s{P(ptr)}\ns_mov_b32 s{d+1}, s{P(ptr)+1}\ns_mov_b32 s{d+2}, {size}\ns_mov_b32 s{d+3}, 0x20000')

NSTAMP=16
def tsreg(i): return sTS+i if i<2 else 64+i-2
def stamp(i):
    if 'gts' in OPT and i not in (1,2,15): return
    gstamp(i)
def gstamp(i):
    if not TS: return
    k.I(CLK+' s[100:101]'); k.force_wait(lg=0); k.I(f's_mov_b32 s{tsreg(i)}, s100')
def stamp_init():
    if not TS: return
    for i in range(1,NSTAMP): k.I(f's_mov_b32 s{tsreg(i)}, 0')
def dump_stamps():
    if not TS: return
    k.I('s_mov_b64 exec, 1')
    k.I(f's_lshl_b32 {sT0}, s2, 3\ns_add_u32 {sT0}, {sT0}, {sWave}\ns_lshl_b32 {sT0}, {sT0}, 7\ns_add_u32 {sT0}, {sT0}, {WS_TS}\nv_mov_b32 v1, 0\nv_mov_b32 v3, 0')
    for i in range(NSTAMP):
        k.I(f'v_mov_b32 v2, s{tsreg(i)}')
        k.I(f'buffer_store_dwordx2 v[2:3], v1, {sWS}, {sT0} offen offset:{8*i}')

vLane=0; vW=4; vX=5; vW2=6; vL16=7
vA=8; vB=16; vC=20
WREG=24
FB=152; FA=160; ACC=192
vPF=143
vS2=136

def dma(voff, srd_, soff, ldsbase, ldsconst, tag, masked=False, pre='', post=''):
    L=[]
    if pre: L.append(pre)
    L.append(f's_add_u32 m0, {ldsbase}, {ldsconst}')
    so=sT0
    if isinstance(soff,int): L.append(f's_mov_b32 {sT0}, {soff}')
    elif isinstance(soff,str): so=soff
    else: L.append(f's_add_u32 {sT0}, {soff[0]}, {soff[1]}')
    if masked: L.append(f's_mov_b64 exec, {sMask}')
    L.append(f'buffer_load_dwordx4 {v(voff)}, {srd_}, {so} offen lds')
    if masked: L.append('s_mov_b64 exec, -1')
    if post: L.append(post)
    return ('\n'.join(L), tag)

ROT0 = 'rot7' in OPT
def chunk_expr(s, dst, tmp):
    if ROT0: return f's_add_u32 {dst}, {sRot}, {s}\ns_sub_u32 {tmp}, {dst}, 7\ns_cmp_ge_u32 {dst}, 7\ns_cselect_b32 {dst}, {tmp}, {dst}'
    if s==0: return f's_mov_b32 {dst}, 0'
    return f's_add_u32 {dst}, {sRot}, {s}\ns_sub_u32 {tmp}, {dst}, 6\ns_cmp_ge_u32 {dst}, 7\ns_cselect_b32 {dst}, {tmp}, {dst}'
def s1_dmas(s, masked=False):
    slot=s%3; L=[]
    pre=chunk_expr(s,sR6,sR7)+f'\ns_mul_i32 {sR7}, {sR6}, {sStr}\ns_lshl_b32 {sR7}, {sR7}, 2\ns_lshl_b32 {sR6}, {sR6}, 7'
    for m in range(2): L.append(dma(vX, sX, (sR6,64*m*896) if m else sR6, sLW, XR+slot*16384+m*8192, f's{s}', pre=pre if m==0 else ''))
    for m in range(4): L.append(dma(vW, sW, sR7, sLW, WR+slot*32768+m*8192, f's{s}', masked, post=f's_add_u32 {sR7}, {sR7}, {sStr}' if m<3 else ''))
    return L

PSLOT=[1,2,0,1,2,0]
def ks_lds(ks):
    p,i=divmod(ks,3); s=PSLOT[p]
    if i<2: return ('W', WR+s*32768+i*2048)
    return ('X', s*16384)
def kidx(ks, dst, tmp):
    if 'norot2' in OPT: return f's_mov_b32 {dst}, {ks}'
    if ks<8: return f's_add_u32 {dst}, {sRa}, {ks}\ns_and_b32 {dst}, {dst}, 7'
    return f's_add_u32 {dst}, {sRb}, {ks}\ns_sub_u32 {tmp}, {dst}, 6\ns_cmp_ge_u32 {dst}, 14\ns_cselect_b32 {dst}, {tmp}, {dst}'
def s2_dma_ks(ks):
    L=[]; kind,off=ks_lds(ks)
    base = sL4 if kind=='W' else sL2k
    tag=f'k{ks}'
    if ks<14:
        pre=kidx(ks,sT1,sT2)+f'\ns_mul_i32 {sT1}, {sT1}, {16*896}\ns_add_u32 {sT1}, {sT1}, {sW2b}'
        a=dma(vW2, sW2, sT1, base, off, tag, pre=pre); b=dma(vW2, sW2, (sT1,8*896), base, off+1024, tag)
        return [(a[0]+'\n'+b[0],tag)]
    hd,s=divmod(ks-14,2)
    return [dma(vW2, sWO, (sWOb,(28*hd+14*s+8*h)*896), base, off+1024*h, tag) for h in range(2)]
def s2_dmas(kss): return [] if 'now2' in OPT else [d for ks in kss for d in s2_dma_ks(ks)]
def wait_ks(kss):
    for ks in kss: k.wait_tag(f'k{ks}')
def wreg(ks,ct): return WREG+8*ks+4*ct
def s2_reads(kss, base=None, obase=None):
    base = vS2 if base is None else base
    L=[]
    for ks in kss:
        kind,off=ks_lds(ks)
        if ks<14:
            if kind=='W':
                a=base
                if off>=65536: a+=2; off-=65536
            else: a=base+4
            st=1024
        else:
            a = obase if kind=='W' else obase+2
            st=512
        for ct in range(2):
            for i in range(2):
                L.append(f'ds_read_b64_tr_b16 {v(wreg(ks,ct)+2*i,2)}, {v(a+ct)} offset:{off+st*i}')
    return L
R3=lambda a,b: list(range(a,b))

def emit_list(L):
    for x in L:
        if callable(x): x()
        elif isinstance(x,tuple): k.I(x[0],x[1])
        else: k.I(x)

def gemm1(NA, NB, tail, first, masked=False, pre_barrier=None, extra=None):
    extra = extra or {}
    extra.setdefault(PFG,[]).extend(L2PF)
    if NB==1: fa=lambda b,t: FA+16*b+4*t; fb=lambda b,t: FB+4*b
    else:     fa=lambda b,t: FB+4*b;      fb=lambda b,t: FA+16*b+4*t
    def reads(g):
        s,ks=divmod(g,4); slot=s%3; b=g&1; A=[];B=[]
        for t in range(NB):
            B.append(f'ds_read_b128 {v(fb(b,t),4)}, {v(vB+ks)} offset:{slot*16384+t*4096}')
        for t in range(NA):
            a=vA+t+(4 if slot==2 else 0); off=(slot&1)*32768+ks*8192
            A.append([f'ds_read_b64_tr_b16 {v(fa(b,t)+2*i,2)}, {v(a)} offset:{off+2048*i}' for i in range(2)])
        if NB==1: return B+[x for l in A for x in l]
        return A[0]+B
    def mfmas(g):
        b=g&1; L=[]
        for ta in range(NA):
            for tb in range(NB):
                d=v(ACC+16*(ta*NB+tb),16)
                c = '0' if g==0 else d
                L.append(f'v_mfma_f32_32x32x16_bf16 {d}, {v(fa(b,ta),4)}, {v(fb(b,tb),4)}, {c}')
        return L
    emit_list(first)
    if pre_barrier: pre_barrier(0)
    k.wait_tag('s0'); k.force_wait(lg=0); k.I('s_barrier')
    stamp(1)
    emit_list(reads(0))
    pend=s1_dmas(2,masked)
    for g in range(28):
        M=mfmas(g)
        if (g+1)%4==0:
            s=(g+1)//4
            if pre_barrier and s<7: pre_barrier(s)
            k.force_wait(lg=0)
            k.I(M[0]); M=M[1:]
            if s<7: k.wait_tag(f's{s}')
            k.I('s_barrier')
            if 'gts' in OPT and s<7: gstamp(8+s)
            n=s+2
            pend = s1_dmas(n,masked) if n<7 else list(tail.get(n,[]))
        ex = reads(g+1) if g+1<28 else []
        nd = (2 if g<19 else 1) if g<27 else 0
        d=pend[:nd]; pend=pend[nd:]
        if (g+2)%4==0 and g<27: d+=pend; pend=[]
        emit_list(interleave(M, ex+d+extra.get(g,[])))

def cmp_all(checks):
    first=True
    for r,s,hi in checks:
        dst = 'vcc' if first else sMask
        if hi: k.I(f'v_cmp_ne_u16_sdwa {dst}, {v(r)}, {s} src0_sel:WORD_1 src1_sel:WORD_0')
        else: k.I(f'v_cmp_ne_u32 {dst}, {s}, {v(r)}')
        if not first: k.I(f's_or_b64 vcc, vcc, {sMask}')
        first=False
    k.nop(1)
def poll(loads, checks, name):
    lab=newlab(name); done=newlab(name+'d')
    k.I(f's_mov_b32 {sSpin}, {SPIN}')
    k.nop(2)
    k.label(lab)
    for l in loads: k.I(l)
    k.force_wait(vm=0)
    cmp_all(checks)
    k.I(f's_cmp_eq_u64 vcc, 0\ns_cbranch_scc1 {done}')
    if 'sleep' in OPT: k.I(f's_sleep {OPT["sleep"]}')
    k.I(f's_sub_u32 {sSpin}, {sSpin}, 1\ns_cmp_lg_u32 {sSpin}, 0\ns_cbranch_scc1 {lab}')
    k.label(done)
def check_or_poll(loads, checks, name, hint=None):
    done=newlab(name+'ok')
    cmp_all(checks)
    k.I(f's_cmp_eq_u64 vcc, 0\ns_cbranch_scc1 {done}')
    st=k.state()
    if hint: poll(hint[0],hint[1],name+'h')
    poll(loads,checks,name)
    k.label(done); k.set_state(st)

def flag_store(soff_sgpr):
    k.I(f'v_mov_b32 v1, {sTag}\nv_mov_b32 v2, 0\ns_mov_b64 exec, 1')
    k.I(f'buffer_store_dword v1, v2, {sWS}, {soff_sgpr} offen sc1')
    k.I('s_mov_b64 exec, -1')

k.raw(f'; @launch grid=(256,1,1) block=(512,1,1) lds={LDS_BYTES}')
k.raw('.amdgcn_target "amdgcn-amd-amdhsa--gfx950"\n.text')
k.raw(f'.globl {NAME}_kernel\n.p2align 8\n.type {NAME}_kernel,@function\n{NAME}_kernel:')
k.I('s_cmp_ge_u32 s2, 256\ns_cbranch_scc1 L_end')
k.I('s_load_dwordx16 s[64:79], s[0:1], 0\ns_load_dwordx8 s[80:87], s[0:1], 64')
if TS: k.I(CLK+' s[100:101]')
k.I('s_getpc_b64 s[4:5]'); k.label('L_pc')
k.I(f'''v_lshrrev_b32 v1, 6, v0
s_lshr_b32 {sI}, s2, 3
v_and_b32 v2, 1, v0
v_readfirstlane_b32 {sWave}, v1
v_lshl_add_u32 v2, v1, 1, v2
s_lshl_b32 {sT0}, {sI}, 4
v_add_lshl_u32 v2, v2, {sT0}, 7
v_min_u32 v2, L_codeend-L_pc-4, v2
v_and_b32 v0, 63, v0''')
if 'nocpf' not in OPT: k.I(f'global_load_dword {v(vPF)}, v2, s[4:5]','cpf')
NR = 7 if ROT0 else 6
k.I(f'''s_and_b32 {sT0}, s2, 7
s_lshr_b32 {sT3}, {sT0}, 1
s_lshl_b32 {sT1}, {sT3}, 4
s_sub_u32 {sT1}, {sT1}, 16
s_mul_i32 {sT2}, {sT3}, 12
s_add_u32 {sT2}, {sT2}, 60
s_cmp_lt_u32 {sI}, 16
s_cselect_b32 {sT1}, {sT2}, {sT1}
s_lshl_b32 {sT2}, {sT3}, 2
s_add_u32 {sT2}, {sT2}, 112
s_cmp_lt_u32 {sI}, 4
s_cselect_b32 {sT1}, {sT2}, {sT1}
s_add_u32 {sT1}, {sT1}, {sI}
s_lshr_b32 {sRole}, {sT1}, 3
s_and_b32 {sT1}, {sT1}, 7
s_and_b32 {sTB}, s2, 1
s_lshl_b32 {sTB}, {sTB}, 3
s_add_u32 {sTB}, {sTB}, {sT1}
s_lshl_b32 {sLW}, {sWave}, 10
s_mul_i32 {sT1}, {sRole}, 448
s_and_b32 {sT1}, {sT1}, 0xffffff80
s_lshl_b32 {sT2}, {sRole}, 7
s_sub_u32 {sT2}, {sT2}, 128
s_mul_i32 {sT3}, {sRole}, 384
s_sub_u32 {sT3}, {sT3}, {14*384}
s_cmp_lt_u32 {sRole}, 14
s_cselect_b32 {sB0}, {sT2}, {sT3}
s_cselect_b32 {sE}, 640, 0
s_cmp_lt_u32 {sRole}, 8
s_cselect_b32 {sB0}, {sT1}, {sB0}
s_cselect_b32 {sE}, 0, {sE}
s_movk_i32 {sStr}, 2688
s_cselect_b32 {sStr}, 3584, {sStr}
s_cmp_eq_u32 {sRole}, 14
s_cselect_b32 {sA0}, 7, 8
s_cmp_eq_u32 {sRole}, 15
s_cselect_b32 {sA0}, 0, {sA0}
s_add_u32 {sRot}, {sRole}, {sTB}
s_mul_i32 {sT1}, {sRot}, {37 if ROT0 else 43}
s_lshr_b32 {sT1}, {sT1}, 8
s_mul_i32 {sT1}, {sT1}, {NR}
s_sub_u32 {sRot}, {sRot}, {sT1}''')
if 'norot' in OPT: k.I(f's_mov_b32 {sRot}, 0')
k.I(f'''v_lshrrev_b32 v1, 3, v0
s_lshl_b32 {sT1}, {sWave}, 3
v_add_u32 v1, {sT1}, v1
v_lshrrev_b32 v2, 1, v1
v_xor_b32 v2, v2, v0
v_and_b32 v2, 7, v2
v_mul_u32_u24 v1, 896, v1
v_lshl_add_u32 v1, v2, 4, v1
s_mul_i32 {sT1}, {sTB}, {128*896}
v_add_u32 {v(vX)}, {sT1}, v1''')
k.I(f'''v_lshrrev_b32 v3, 5, v0
s_lshl_b32 {sT1}, {sWave}, 1
v_add_u32 v24, {sT1}, v3
v_and_b32 v25, 3, v24
v_lshlrev_b32 v25, 2, v25
v_and_b32 v26, 31, v0
v_xor_b32 v25, v25, v26
v_mul_u32_u24 v24, {sStr}, v24
v_lshl_add_u32 v24, v25, 4, v24
v_lshrrev_b32 v26, 4, v25
v_mul_u32_u24 v26, {sE}, v26
v_add3_u32 {v(vW)}, v24, v26, {sB0}
v_lshrrev_b32 v25, 2, v25
v_cmp_ne_u32 {sMask}, {sA0}, v25
s_mov_b32 s10, {2048*896}
s_mov_b32 s11, 0x20000
s_mov_b32 s15, 0x20000
s_mul_i32 s14, {sStr}, 448
s_lshl_b32 {sStr}, {sStr}, 4''')
k.force_wait(lg=0)
if TS: k.I(f's_mov_b32 s{sTS}, s100')
k.I(f'''s_mov_b32 s8, s{P(0)}
s_mov_b32 s9, s{P(0)+1}
s_cmp_lt_u32 {sRole}, 8
s_cselect_b32 s12, s{P(5)}, s{P(1)}
s_cselect_b32 s13, s{P(5)+1}, s{P(1)+1}''')
emit_list(s1_dmas(0,True))
k.I(f's_load_dword {sTag}, s[{P(11)}:{P(11)+1}], {WS_EPOCH}')
srd(sG,8,896)
if ROT0: k.I(f's_add_u32 {sT1}, {sWave}, {sRot}\ns_sub_u32 {sT2}, {sT1}, 7\ns_cmp_ge_u32 {sT1}, 7\ns_cselect_b32 {sT1}, {sT2}, {sT1}')
else: k.I(f's_add_u32 {sT1}, {sWave}, {sRot}\ns_sub_u32 {sT2}, {sT1}, 6\ns_cmp_ge_u32 {sT1}, 7\ns_cselect_b32 {sT1}, {sT2}, {sT1}\ns_cmp_eq_u32 {sWave}, 0\ns_cselect_b32 {sT1}, 0, {sT1}')
k.I(f's_lshl_b32 {sT1}, {sT1}, 7\nv_lshlrev_b32 v1, 1, v0\nbuffer_load_ushort v32, v1, {sG}, {sT1} offen')
k.I('s_barrier')
S1=s1_dmas(1,True)
NPRE=int(OPT.get('npre','2'))
emit_list(S1[:NPRE]); S1=S1[NPRE:]
srd(sWS,11,0x10000000); srd(sW2,7,1792*896); srd(sWO,3,448*896)
k.I(f'''s_lshl_b32 {sT0}, {sI}, 3
s_add_u32 {sT0}, {sT0}, {sWave}
s_mul_i32 {sT1}, {sT0}, 49
s_mul_i32 {sT2}, {sT0}, 13
v_min_u32 v1, 48, v0
v_min_u32 v2, 12, v0
v_add_lshl_u32 v144, v1, {sT1}, 7
v_add_lshl_u32 v145, v2, {sT2}, 7
s_and_b32 {sT0}, s2, 7
s_mul_i32 {sT3}, {sT0}, 7
s_add_u32 {sT1}, {sT1}, {sT3}
s_lshl_b32 {sT3}, {sT0}, 1
s_add_u32 {sT2}, {sT2}, {sT3}
v_min_u32 v1, 6, v0
v_min_u32 v2, 1, v0
v_add_lshl_u32 v150, v1, {sT1}, 7
v_add_lshl_u32 v151, v2, {sT2}, 7''')
def pf(a):
    return [(f'buffer_load_dword v146, {v(a)}, {sW2}, 0 offen','pf'),(f'buffer_load_dword v147, {v(a+1)}, {sWO}, 0 offen','pf')]
k.I(f's_lshl_b32 {sT0}, s2, 3\ns_add_u32 {sT0}, {sT0}, {sWave}\ns_and_b32 {sT0}, {sT0}, 1023\ns_lshl_b32 {sT0}, {sT0}, 7\ns_add_u32 {sT0}, {sT0}, {WS_FA}\nv_mov_b32 v33, {sT0}')
if 'nompf' not in OPT: S1=S1+pf(150)
if 'notouch' not in OPT: S1=S1+[(f'buffer_load_dword v33, v33, {sWS}, 0 offen','pf')]
PFG=int(OPT.get('pfg','18'))
L2PF = pf(144) if 'l2pf' in OPT else []
k.I(f'''s_mov_b32 s40, {f2u(LOG2E)}
s_mov_b32 s41, {f2u(LOG2E)}
s_mov_b32 s42, {f2u(LOG2E)}
s_mov_b32 s43, {f2u(-LOG2E)}
s_mov_b32 s58, 0
s_mov_b32 s59, -1
v_lshlrev_b32 {v(vL16)}, 4, {v(vLane)}''')
k.I(f'''v_and_b32 v1, 31, v0
v_bfe_u32 v2, v0, 1, 3
v_xor_b32 v2, v2, v3
v_lshlrev_b32 v2, 4, v2
v_lshl_add_u32 v1, v1, 7, v2
s_and_b32 {sT0}, {sWave}, 3
s_lshl_b32 {sT0}, {sT0}, 12
s_cmp_lt_u32 {sRole}, 14
s_cselect_b32 {sT0}, {sT0}, 0
s_add_u32 {sT0}, {sT0}, {XR}
v_add_u32 {v(vB)}, {sT0}, v1
v_xor_b32 {v(vB+1)}, 32, {v(vB)}
v_xor_b32 {v(vB+2)}, 64, {v(vB)}
v_xor_b32 {v(vB+3)}, 96, {v(vB)}''')
k.I(f'''v_bfe_u32 v28, v0, 2, 2
v_lshl_add_u32 v27, v3, 3, v28
v_lshlrev_b32 v27, 9, v27
v_lshlrev_b32 v28, 6, v28
v_bfe_u32 v29, v0, 4, 1
v_and_b32 v26, 3, v0
v_lshl_add_u32 v29, v29, 2, v26''')
k.I(f's_cmp_ge_u32 {sRole}, 14\ns_cbranch_scc1 L_Q')
st_q=k.state()
srd(sOUT,9,2048*896)
def s2_setup():
    t0,t1,t2,t3='s84','s85','s86','s87'
    T=f'''s_sub_u32 {t1}, {sI}, 4
s_mul_i32 {t2}, {t1}, 37
s_lshr_b32 {t2}, {t2}, 8
s_mul_i32 {t3}, {t2}, 7
s_sub_u32 {sCT}, {t1}, {t3}
s_and_b32 {t0}, s2, 7
s_lshl_b32 {sT64}, {t0}, 2
s_add_u32 {sT64}, {sT64}, {t2}
s_lshl_b32 {sRa}, {t2}, 1
s_add_u32 {sRa}, {sRa}, {sCT}
s_mul_i32 {t0}, {sRa}, 43
s_lshr_b32 {t0}, {t0}, 8
s_mul_i32 {t0}, {t0}, 6
s_sub_u32 {sRb}, {sRa}, {t0}
s_mul_i32 {sW2b}, {sWave}, {224*896}
s_mul_i32 {sWOb}, {sWave}, {56*896}
s_lshl_b32 {sL4}, {sWave}, 12
s_lshl_b32 {sL2k}, {sWave}, 11
s_add_u32 {sL2k}, {sL2k}, {XR}
v_lshrrev_b32 v1, 3, v0
v_lshlrev_b32 v2, 1, v1
v_and_b32 v2, 4, v2
v_and_b32 v3, 7, v0
v_xor_b32 v2, v2, v3
v_mul_u32_u24 v1, 896, v1
v_lshl_add_u32 v1, v2, 4, v1
s_lshl_b32 {t0}, {sCT}, 7
v_add_u32 {v(vW2)}, {t0}, v1
v_lshrrev_b32 v1, 5, v0
v_lshlrev_b32 v1, 9, v1
v_bfe_u32 v2, v0, 2, 2
v_lshl_add_u32 v1, v2, 7, v1
v_lshrrev_b32 v2, 1, v2
v_lshl_add_u32 v1, v2, 6, v1
v_bfe_u32 v2, v0, 4, 1
v_lshl_add_u32 v1, v2, 5, v1
v_and_b32 v2, 3, v0
v_lshl_add_u32 v1, v2, 3, v1
v_xor_b32 v2, 64, v1
v_add_u32 {v(vS2)}, {sL4}, v1
v_add_u32 {v(vS2+1)}, {sL4}, v2
v_add_u32 {v(vS2+2)}, 0x10000, {v(vS2)}
v_add_u32 {v(vS2+3)}, 0x10000, {v(vS2+1)}
v_add_u32 {v(vS2+4)}, {sL2k}, v1
v_add_u32 {v(vS2+5)}, {sL2k}, v2'''
    return T.split('\n')
def tags():
    k.force_wait(lg=0)
    k.I(f'''s_lshr_b32 {sT16}, {sTag}, 16
    s_add_u32 {sT16}, {sT16}, 0x2a5b
    s_and_b32 {sT16}, {sT16}, 0x3fff
    s_lshl_b32 {sTagH}, {sT16}, 16
    s_mul_i32 {sTag}, {sTag}, 1664525
    s_add_u32 {sTag}, {sTag}, 1013904223
    s_lshr_b32 {sTag}, {sTag}, 16
    s_or_b32 {sTag}, {sTag}, {sTagH}''')
    stamp_init(); stamp(8)
def a_addr(t, colexpr_v):
    k.I(f'''v_xor_b32 {v(vA+t)}, {v(colexpr_v)}, v28
    v_add_u32 {v(vA+t)}, {v(vA+t)}, v27
    v_add_u32 {v(vA+4+t)}, 0x10000, {v(vA+t)}''')
def spread(L, g0, g1, ex):
    n=g1-g0;
    for i in range(n):
        ex.setdefault(g0+i,[]).extend(L[i*len(L)//n:(i+1)*len(L)//n])
k.I(f's_cmp_ge_u32 {sRole}, 8\ns_cbranch_scc1 L_KV')
st_kv=k.state()

k.c('F role')
srd(sM,6,1792*2)
k.I(f'''s_mul_i32 {sT0}, {sRole}, 448
s_lshl_b32 {sT1}, {sWave}, 6
s_add_u32 {sT1}, {sT1}, {sT0}
v_and_b32 v1, 31, v0
v_lshlrev_b32 v2, 1, v1
buffer_load_ushort v148, v2, {sM}, {sT1} offen
s_lshl_b32 {sT1}, {sWave}, 7
s_add_u32 {sT1}, {sT1}, {MISC}
v_lshl_add_u32 v149, v1, 2, {sT1}
s_and_b32 {sT1}, {sT0}, 127
s_lshr_b32 {sA1}, {sWave}, 2
s_lshl_b32 {sT2}, {sA1}, 9
s_lshl_b32 {sA1}, {sA1}, 8
s_add_u32 {sA1}, {sT1}, {sA1}
s_add_u32 {sT2}, {sT2}, {MISC}
v_lshl_add_u32 v142, v3, 4, {sT2}''')
for t in range(4):
    k.I(f'v_lshl_add_u32 v26, v29, 3, {sA1}\nv_add_u32 v26, {64*t}, v26')
    a_addr(t,26)
tags()
FSET=f'''v_mov_b32 {v(vC)}, 0.5
v_mov_b32 {v(vC+1)}, 0.5
v_mov_b32 {v(vC+2)}, 1.0
v_mov_b32 {v(vC+3)}, 1.0
s_lshl_b32 {sA2}, {sTB}, 2
s_and_b32 s84, {sWave}, 3
s_add_u32 {sA2}, {sA2}, s84
s_mul_i32 {sA2}, {sA2}, 112
s_mul_i32 s84, {sRole}, 14
s_add_u32 {sA2}, {sA2}, s84
s_and_b32 s84, {sWave}, 4
s_lshl_b32 s84, s84, 1
s_add_u32 {sA2}, {sA2}, s84
s_lshl_b32 {sA2}, {sA2}, 10
s_add_u32 {sA2}, {sA2}, {WS_ACT}
s_add_u32 {sA3}, {sA2}, 4096
s_lshl_b32 {sA0}, {sTB}, 3
s_add_u32 {sA0}, {sA0}, {sRole}
s_lshl_b32 {sA0}, {sA0}, 7
s_lshl_b32 s84, {sWave}, 2
s_add_u32 {sA0}, {sA0}, s84
s_add_u32 {sA0}, {sA0}, {WS_FA}'''.split('\n')
k.I(f's_cmp_ge_u32 {sWave}, 4\ns_cbranch_scc1 L_F3')
st_f3=k.state()

BI=104
def bias_reads(t):
    return [f'ds_read_b128 {v(BI+16*(t&1)+4*q,4)}, v142 offset:{128*t+32*q}' for q in range(4)]
def mish_tile(t, T, U, O):
    L=[]
    for hh in range(2):
        a=ACC+16*t+8*hh; b=BI+16*(t&1)+8*hh
        for i in range(0,8,2): L.append(f'v_pk_fma_f32 {v(a+i,2)}, {v(a+i,2)}, {sL2}, {v(b+i,2)}')
        for i in range(8): L.append(f'v_exp_f32 {v(T+i)}, {v(a+i)}')
        for i in range(0,8,2): L.append(f'v_pk_fma_f32 {v(U+i,2)}, {v(T+i,2)}, {v(vC,2)}, {v(vC+2,2)}')
        for i in range(0,8,2): L.append(f'v_pk_fma_f32 {v(U+i,2)}, {v(U+i,2)}, {v(T+i,2)}, {v(vC+2,2)}')
        for i in range(8): L.append(f'v_rcp_f32 {v(U+i)}, {v(U+i)}')
        for i in range(0,8,2): L.append(f'v_pk_fma_f32 {v(U+i,2)}, {v(a+i,2)}, {v(U+i,2)}, {v(a+i,2)} neg_lo:[1,0,0] neg_hi:[1,0,0]')
        for i in range(0,8,2): L.append(f'v_cvt_pk_bf16_f32 {v(O+4*hh+i//2)}, {v(U+i)}, {v(U+i+1)}')
    return L

def f_role(NT):
    ex={6:[f'v_lshlrev_b32 v148, 16, v148', f'v_mul_f32 v148, s40, v148', 'ds_write_b32 v149, v148'],
        25:bias_reads(0), 26:bias_reads(1)}
    spread(s2_setup()+FSET, 7, 17, ex)
    gemm1(NT,1,{7:s2_dmas(R3(0,3)),8:s2_dmas(R3(3,6))},S1,extra=ex)
    stamp(2)
    T=168;U=176;O=184
    def tile(t):
        L=mish_tile(t,T,U,O)
        n=len(L)//2
        st=lambda hh: f'buffer_store_dwordx4 {v(O+4*hh,4)}, {v(vL16)}, {sWS}, {sA2 if t<2 else sA3} offen offset:{(2*(t&1)+hh)*1024} sc1'
        if 'noact' in OPT: st=lambda hh: 's_nop 0'
        return L[:n]+[st(0)]+L[n:n+6]+(bias_reads(t+2) if t+2<NT else [])+L[n+6:]+[st(1)]
    if NT==4:
        wait_ks(R3(0,3)); emit_list(s2_reads(R3(0,3)))
        L=tile(0); emit_list(interleave(L[:30], s2_dmas(R3(6,9)))); k.waitcnt(lg=0)
        emit_list(interleave(L[30:], s2_dmas(R3(9,12))))
        wait_ks(R3(3,6)); emit_list(s2_reads(R3(3,6)))
        L=tile(1); emit_list(L[:20]); k.waitcnt(lg=0)
        emit_list(interleave(L[20:], s2_dmas(R3(12,15))))
        for t in range(2,4): emit_list(tile(t))
    else:
        emit_list(s2_dmas(R3(6,9)))
        wait_ks(R3(0,3)); emit_list(s2_reads(R3(0,3))); k.waitcnt(lg=0); emit_list(s2_dmas(R3(9,12)))
        wait_ks(R3(3,6)); emit_list(s2_reads(R3(3,6))); k.waitcnt(lg=0); emit_list(s2_dmas(R3(12,15)))
        for t in range(3): emit_list(tile(t))
    stamp(9)
    wait_ks(R3(6,9)); emit_list(s2_reads(R3(6,9)))
    k.force_wait(vm=0)
    flag_store(sA0)
    k.waitcnt(lg=0)
    stamp(3)

f_role(4)

k.label('L_S2'); k.reset_state(); k.nop(2)
k.c('stage 2: k-steps 0-8 in regs, 9-17 in flight to LDS')
k.I(f'''s_lshr_b32 {sT1}, {sT64}, 1
s_lshl_b32 {sA1}, {sT1}, 3
s_add_u32 {sA1}, {sA1}, {sWave}
s_lshl_b32 {sA1}, {sA1}, 7
s_and_b32 {sT2}, {sT64}, 1
s_lshl_b32 {sT2}, {sT2}, 3
s_add_u32 {sA1}, {sA1}, {sT2}
s_add_u32 {sA1}, {sA1}, {WS_FA}
v_and_b32 v1, 1, v0
v_lshlrev_b32 v1, 2, v1
s_mul_i32 {sA0}, {sT64}, 224
s_mul_i32 {sT2}, {sWave}, 14
s_add_u32 {sA0}, {sA0}, {sT2}
s_lshl_b32 {sA0}, {sA0}, 10
s_add_u32 {sA0}, {sA0}, {WS_ACT}
s_lshl_b32 {sA3}, {sT64}, 9
s_add_u32 {sA3}, {sA3}, {WS_G}
s_lshl_b32 {sT2}, {sWave}, 1
s_lshl_b32 {sH0}, {sT64}, 5
s_add_u32 {sH0}, {sH0}, {sT2}
s_lshl_b32 {sH0}, {sH0}, 11
s_add_u32 {sH0}, {sH0}, {WS_O}
s_add_u32 {sB0}, {sH0}, 32768''')
AD=ACC+48; OAD=20
for i in range(6): k.I(f'v_mov_b32 {v(AD+i)}, {v(vS2+i)}')
k.I(f'''v_lshrrev_b32 v2, 5, v0
v_mul_u32_u24 v2, 7, v2
v_bfe_u32 v3, v0, 2, 2
v_add_u32 v2, v2, v3
v_bfe_u32 v3, v2, 1, 1
v_lshlrev_b32 v2, 7, v2
v_lshl_add_u32 v2, v3, 6, v2
v_bfe_u32 v3, v0, 4, 1
v_lshl_add_u32 v2, v3, 5, v2
v_and_b32 v3, 3, v0
v_lshl_add_u32 v2, v3, 3, v2
v_xor_b32 v3, 64, v2
v_add_u32 {v(OAD+0)}, {sL4}, v2
v_add_u32 {v(OAD+1)}, {sL4}, v3
v_add_u32 {v(OAD+2)}, {sL2k}, v2
v_add_u32 {v(OAD+3)}, {sL2k}, v3''')
poll([f'buffer_load_dword v2, v1, {sWS}, {sA1} offen sc1'],[(2,sTag,0)],'fa')
stamp(6)
bufs=[168,172,176,180,184,188,8,12,16,144,148,152,156,160]
free=list(bufs); where={}
def act_load(ks):
    b0=free.pop(0); b1=free.pop(0); where[(ks,0)]=b0; where[(ks,1)]=b1
    return kidx(ks,sT0,sT1)+f'''
s_lshl_b32 {sT0}, {sT0}, 10
s_add_u32 {sT0}, {sT0}, {sA0}
s_add_u32 {sT1}, {sT0}, {112*1024}
buffer_load_dwordx4 {v(b0,4)}, {v(vL16)}, {sWS}, {sT0} offen sc1
buffer_load_dwordx4 {v(b1,4)}, {v(vL16)}, {sWS}, {sT1} offen sc1'''
fl1=f'buffer_load_dword v2, v1, {sWS}, {sA1} offen offset:16 sc1'
nl=0; ok1=False
CHK1=int(OPT.get('chk1','2'))
def fill(cur):
    global nl, ok1
    while len(free)>=2 and nl<14:
        if nl>=8 and not ok1:
            if cur<CHK1: return
            check_or_poll([fl1],[(2,sTag,0)],'fa1'); ok1=True
        t_=act_load(nl); nl+=1
        if 'noactld' not in OPT: k.I(t_)
fill(-1)
k.I(fl1)
emit_list(s2_dmas(R3(15,18)))
emit_list(s2_reads(R3(9,15),AD,OAD))
k.waitcnt(lg=0)
def acc2(tt,ct): return ACC+32*tt+16*ct
ob={}; oloads=[]; ochecks=[]
OKS=int(OPT.get('oks','10'))
for ks in range(14):
    for tt in range(2):
        for ct in range(2):
            d=v(acc2(tt,ct),16)
            k.I(f'v_mfma_f32_32x32x16_bf16 {d}, {v(wreg(ks,ct),4)}, {v(where[(ks,tt)],4)}, {"0" if ks==0 else d}')
    if ks>=1:
        free += [b for b in [where[(ks-1,0)],where[(ks-1,1)],wreg(ks-1,0),wreg(ks-1,1)] if not 144<=b<168]
    if ks==8:
        wait_ks(R3(15,18)); emit_list(s2_reads(R3(15,18),AD,OAD))
    fill(ks)
    if ks==OKS:
        assert nl==14
        k.I('v_and_b32 v1, 31, v0\nv_lshlrev_b32 v1, 3, v1')
        oloads=[f'buffer_load_dwordx2 v[2:3], v1, {sWS}, {sA3} offen sc1', f'buffer_load_dwordx2 v[4:5], v1, {sWS}, {sA3} offen offset:256 sc1']
        ochecks=[(3,sTag,0),(5,sTag,0)]
        for q in range(4):
            for tt in range(2):
                b=free.pop(0); ob[(q,tt)]=b
                oloads.append(f'buffer_load_dwordx4 {v(b,4)}, {v(vL16)}, {sWS}, {sH0 if tt==0 else sB0} offen offset:{q*1024} sc1')
                ochecks.append((b+3,sT16,1))
        emit_list(oloads[:2] if 'spec' not in OPT else oloads)
stamp(10)
a0=free.pop(0); a1=free.pop(0); a2=free.pop(0); a3=free.pop(0); a4=free.pop(0)
k.I(f'''v_and_b32 {v(a2)}, 31, v0
v_lshrrev_b32 {v(a2+1)}, 5, v0
v_and_b32 {v(a2+2)}, 7, v0
v_xor_b32 {v(a2+1)}, {v(a2+1)}, {v(a2+2)}
v_lshlrev_b32 {v(a2+1)}, 4, {v(a2+1)}
v_lshl_or_b32 {v(a2+2)}, {v(a2)}, 7, {v(a2+1)}
v_add_u32 {v(a0)}, {sL4}, {v(a2+2)}
v_xor_b32 {v(a0+1)}, 32, {v(a0)}
v_xor_b32 {v(a0+2)}, 64, {v(a0)}
v_xor_b32 {v(a0+3)}, 96, {v(a0)}
v_lshrrev_b32 {v(a2)}, 4, {v(a2)}
v_mul_u32_u24 {v(a2)}, {16384-2048}, {v(a2)}
v_add3_u32 {v(a1)}, {v(a2)}, {v(a2+2)}, {sL2k}
v_xor_b32 {v(a1+1)}, 32, {v(a1)}
v_xor_b32 {v(a1+2)}, 64, {v(a1)}
v_xor_b32 {v(a1+3)}, 96, {v(a1)}''')
for q in range(4): k.I(f'v_add_u32 {v(a2+q)}, 0x10000, {v(a0+q)}')
u1,u2,u3=a4,a4+1,a4+2
k.I(f'''v_lshrrev_b32 {v(u1)}, 3, v0
v_and_b32 {v(u2)}, 3, v0
v_lshlrev_b32 {v(u2)}, 1, {v(u2)}
v_xor_b32 {v(u2)}, {v(u2)}, {v(u1)}
v_lshlrev_b32 {v(u2)}, 4, {v(u2)}
v_lshl_or_b32 {v(u2)}, {v(u1)}, 7, {v(u2)}
v_bfe_u32 {v(u3)}, v0, 2, 1
s_and_b32 {sT0}, {sWave}, 3
s_lshl_b32 {sT0}, {sT0}, 10
s_lshr_b32 {sT1}, {sWave}, 2
s_lshl_b32 {sT1}, {sT1}, 16
s_add_u32 {sT0}, {sT0}, {sT1}
v_lshl_add_u32 {v(a3)}, {v(u3)}, 15, {sT0}
v_add_u32 {v(a3)}, {v(a3)}, {v(u2)}
s_and_b32 {sT0}, {sWave}, 1
s_lshl_b32 {sT0}, {sT0}, 10
s_and_b32 {sT1}, {sWave}, 2
s_lshl_b32 {sT1}, {sT1}, 13
s_add_u32 {sT0}, {sT0}, {sT1}
s_add_u32 {sT0}, {sT0}, {XR}
v_add_u32 {v(u2)}, {sT0}, {v(u2)}
s_lshr_b32 {sT1}, {sWave}, 2
v_and_b32 {v(u3)}, {sT1}, {v(u3)}
v_cmp_eq_u32 vcc, 1, {v(u3)}
v_mov_b32 {v(a3+2)}, 4096
v_mov_b32 {v(a3+3)}, 2048
v_cndmask_b32 {v(a3)}, {v(a3)}, {v(u2)}, vcc
v_cndmask_b32 {v(a3+2)}, {v(a3+2)}, {v(a3+3)}, vcc
v_xor_b32 {v(a3+1)}, 16, {v(a3)}
v_and_b32 {v(u2)}, 7, v0
v_mul_u32_u24 {v(u1)}, 896, {v(u1)}
v_lshl_add_u32 {v(u1)}, {v(u2)}, 4, {v(u1)}
s_lshl_b32 {sA0}, {sT64}, 3
s_add_u32 {sA0}, {sA0}, {sWave}
s_mul_i32 {sA0}, {sA0}, {8*896}
s_lshl_b32 {sT1}, {sCT}, 7
s_add_u32 {sA0}, {sA0}, {sT1}''')
check_or_poll(oloads[:2],ochecks[:2],'fg')
for tt in range(2):
    for i in range(0,32,2):
        k.I(f'v_pk_mul_f32 {v(ACC+32*tt+i,2)}, {v(ACC+32*tt+i,2)}, {v(2+2*tt,2)} op_sel_hi:[1,0]')
k.I(f'''s_lshr_b32 {sT1}, {sT64}, 1
s_lshl_b32 {sT1}, {sT1}, 4
s_lshl_b32 {sT2}, {sWave}, 1
s_add_u32 {sT1}, {sT1}, {sT2}
s_lshl_b32 {sA2}, {sT1}, 7
s_add_u32 {sA2}, {sA2}, {WS_FO}
v_and_b32 v1, 1, v0
v_lshlrev_b32 v1, 7, v1''')
if 'spec' not in OPT:
    poll([f'buffer_load_dword v2, v1, {sWS}, {sA2} offen sc1'],[(2,sTag,0)],'foh'); poll(oloads[2:],ochecks[2:],'fo')
else: check_or_poll(oloads[2:],ochecks[2:],'fo', None if 'nohint' in OPT else ([f'buffer_load_dword v2, v1, {sWS}, {sA2} offen sc1'],[(2,sTag,0)]))
stamp(11)
for b in ob.values(): k.I(f'v_and_b32 {v(b+3)}, 0xffff, {v(b+3)}')
def wr(tt,ct):
    t=2*tt+ct
    for q in range(4):
        a,off = [(a0,0),(a0,32768),(a2,0),(a1,0)][t]
        k.I(f'ds_write_b128 {v(a+q)}, {v(acc2(tt,ct)+4*q,4)} offset:{off}')
tl=[(0,0),(0,1),(1,0),(1,1)]
for i,(tt,ct) in enumerate(tl):
    for q in range(4):
        d=v(acc2(tt,ct),16)
        k.I(f'v_mfma_f32_32x32x16_bf16 {d}, {v(wreg(14+q,ct),4)}, {v(ob[(q,tt)],4)}, {d}')
    if i>=1: wr(*tl[i-1])
stamp(12)
wr(1,1)
k.waitcnt(lg=0); stamp(13); k.I('s_barrier')
RB=ACC
for s in range(8):
    for c in range(2):
        k.I(f'ds_read_b128 {v(RB+8*s+4*c,4)}, {v(a3+c)}')
    if s<7: k.I(f'v_add_u32 {v(a3)}, {v(a3)}, {v(a3+2)}\nv_add_u32 {v(a3+1)}, {v(a3+1)}, {v(a3+2)}')
for s in range(1,8):
    for i in range(0,8,2): k.I(f'v_pk_add_f32 {v(RB+i,2)}, {v(RB+i,2)}, {v(RB+8*s+i,2)}')
for i in range(4): k.I(f'v_cvt_pk_bf16_f32 {v(a0+i)}, {v(RB+2*i)}, {v(RB+2*i+1)}')
k.I(f'buffer_store_dwordx4 {v(a0,4)}, {v(u1)}, {sOUT}, {sA0} offen')
stamp(15)
dump_stamps()
k.I('s_endpgm')

k.label('L_F3'); k.set_state(st_f3)
f_role(3)
k.I('s_branch L_S2')

RV=[0,1,2,3,4,5,6,8,9,10,11,12,13,14]
def wphi_lane(dst, base_sgpr):
    k.I(f'''v_and_b32 v30, 3, v0
    v_bfe_u32 v31, v0, 3, 2
    v_lshl_add_u32 v30, v31, 2, v30
    v_lshrrev_b32 v31, 3, v30
    v_sub_u32 v30, v30, v31
    v_bfe_u32 v31, v0, 2, 1
    v_mul_u32_u24 v31, 14, v31
    v_add_u32 v30, v30, v31
    v_min_u32 v30, 27, v30
    v_lshlrev_b32 v30, 1, v30
    v_mul_u32_u24 v31, 224, v3
    v_add3_u32 {v(dst)}, v30, v31, {base_sgpr}''')
def wphi_reads(dst16, addr, off):
    return [f'ds_read_u16 {v(dst16+8*s+j)}, {v(addr)} offset:{off+(16*s+(j&3)+8*(j>>2))*56}' for s in range(2) for j in range(8)]
def wphi_pack(src16,dst8):
    L=[f'v_lshl_or_b32 {v(dst8+i)}, {v(src16+2*i+1)}, 16, {v(src16+2*i)}' for i in range(8)]
    L+=[f'v_cndmask_b32 {v(dst8+i)}, {v(dst8+i)}, 0, {sHi}' for i in (6,7)]
    return L
def feat(a, wp, PK, Pp):
    L=[f'v_cvt_pk_bf16_f32 {v(PK+i)}, {v(a+2*i)}, {v(a+2*i+1)}' for i in range(8)]
    L.append(f'v_mfma_f32_32x32x16_bf16 {v(Pp,16)}, {v(wp,4)}, {v(PK,4)}, 0')
    L.append(f'v_mfma_f32_32x32x16_bf16 {v(Pp,16)}, {v(wp+4,4)}, {v(PK+4,4)}, {v(Pp,16)}')
    return L
def feat2(Pp, E, S, norm, O):
    L=[]; A=L.append
    A(f'v_max_f32 {v(S)}, {v(Pp+RV[0])}, {v(Pp+RV[1])}')
    A(f'v_max_f32 {v(S+1)}, -{v(Pp+RV[0])}, -{v(Pp+RV[1])}')
    for i in range(2,14,2):
        A(f'v_max3_f32 {v(S)}, {v(S)}, {v(Pp+RV[i])}, {v(Pp+RV[i+1])}')
        A(f'v_max3_f32 {v(S+1)}, {v(S+1)}, -{v(Pp+RV[i])}, -{v(Pp+RV[i+1])}')
    A(f'v_permlane32_swap_b32 {v(S)}, {v(S+1)}')
    A(f'v_max_f32 {v(S)}, {v(S)}, {v(S+1)}')
    A(f'v_mul_f32 {v(S)}, s43, {v(S)}')
    A(f'v_mov_b32 {v(S+1)}, {v(S)}')
    A(f'v_permlane32_swap_b32 {v(S)}, {v(S+1)}')
    for i,r in enumerate(RV):
        h=r&1
        A(f'v_pk_fma_f32 {v(E+2*i,2)}, {v(Pp+r-h,2)}, {sLn}, {v(S,2)} op_sel:[{h},0,0] op_sel_hi:[{h},1,1]')
    for r in range(28): A(f'v_exp_f32 {v(E+r)}, {v(E+r)}')
    if norm:
        A(f'v_pk_add_f32 {v(S,2)}, {v(E,2)}, {v(E+2,2)}')
        A(f'v_pk_add_f32 {v(S+2,2)}, {v(E+4,2)}, {v(E+6,2)}')
        for r in range(4,14):
            s=S+2*(r&1)
            A(f'v_pk_add_f32 {v(s,2)}, {v(s,2)}, {v(E+2*r,2)}')
        A(f'v_pk_add_f32 {v(S,2)}, {v(S,2)}, {v(S+2,2)}')
        A(f'v_permlane32_swap_b32 {v(S)}, {v(S+1)}')
        A(f'v_add_f32 {v(S)}, {v(S)}, {v(S+1)}')
        A(f'v_rcp_f32 {v(S)}, {v(S)}')
        A(f'v_mov_b32 {v(S+1)}, {v(S)}')
        A(f'v_permlane32_swap_b32 {v(S)}, {v(S+1)}')
        for r in range(14): A(f'v_pk_mul_f32 {v(E+2*r,2)}, {v(E+2*r,2)}, {v(S,2)}')
    for sg in range(2):
        for s in range(2):
            for j in range(4):
                i=7*s+2*j
                A(f'v_cvt_pk_bf16_f32 {v(O+8*sg+4*s+j)}, {v(E+2*i+sg)}, {v(E+2*i+2+sg) if j<3 else "0"}')
    return L

k.label('L_KV'); k.set_state(st_kv)
k.c('KV role')
srd(sM,2,16*1568)
k.I(f'''s_sub_u32 {sRole}, {sRole}, 8
s_lshl_b32 {sT0}, {sRole}, 2
s_lshr_b32 {sH0}, 0xDA8630, {sT0}
s_and_b32 {sH0}, {sH0}, 15
s_lshl_b32 {sT2}, {sRole}, 7
s_mul_i32 {sA1}, {sH0}, 56
s_sub_u32 {sA1}, {sA1}, {sT2}
s_mul_i32 {sA2}, {sH0}, 1568
s_add_u32 {sA2}, {sA2}, {sLW}''')
k.I(f's_lshr_b32 {sT1}, {sWave}, 2\ns_mul_i32 {sT2}, {sT1}, 3136\ns_add_u32 {sT2}, {sT2}, {MISC}')
wphi_lane(148, sT2)
k.I(f'v_min_u32 v29, 6, v29')
for t,(o0,o1) in enumerate([(0,112),(56,312),(256,368)]):
    k.I(f's_mul_i32 {sT2}, {sT1}, {o1-o0}\ns_add_u32 {sT2}, {sT2}, {sA1}\ns_add_u32 {sT2}, {sT2}, {o0}\nv_lshl_add_u32 v26, v29, 3, {sT2}')
    a_addr(t,26)
tags()
PHI=[0,16384,98304]; VV=[131072,131072+64,147456]
WA=240; RA=20
t0,t1,t2,t3='s84','s85','s86','s87'
KSET=f'''v_and_b32 v1, 5, v0
v_and_b32 v2, 2, v0
v_lshl_or_b32 v1, v2, 2, v1
v_bfe_u32 v2, v0, 3, 1
v_lshl_or_b32 v1, v2, 1, v1
v_lshrrev_b32 v2, 5, v0
v_xor_b32 v1, v1, v2
v_and_b32 v2, 31, v0
v_lshlrev_b32 v2, 7, v2
v_lshl_or_b32 v1, v1, 3, v2
s_and_b32 {t0}, {sWave}, 3
s_lshl_b32 {t0}, {t0}, 12
v_add_u32 {v(WA)}, {t0}, v1'''.split('\n')
KSET+=[f'v_xor_b32 {v(WA+c)}, {16*c}, {v(WA)}' for c in range(1,8)]
KSET+=[f'v_add_u32 {v(WA+8+c)}, {XR}, {v(WA+c)}' for c in range(8)]
KSET+=f'''v_bfe_u32 v1, v0, 2, 2
v_lshrrev_b32 v2, 5, v0
v_lshl_add_u32 v3, v2, 3, v1
v_lshlrev_b32 v3, 7, v3
v_and_b32 v20, 1, v1
v_lshl_or_b32 v20, v2, 1, v20
v_lshrrev_b32 v1, 1, v1
v_lshl_or_b32 v20, v1, 3, v20
v_bfe_u32 v1, v0, 4, 1
v_and_b32 v2, 3, v0
v_lshl_add_u32 v1, v1, 2, v2
v_xor_b32 v20, v20, v1
v_lshl_add_u32 v20, v20, 3, v3
s_lshr_b32 {t0}, {sWave}, 1
s_and_b32 {t1}, {sWave}, 1
s_lshl_b32 {t1}, {t1}, 6
s_and_b32 {t2}, {t0}, 1
s_lshl_b32 {sA0}, {t2}, 6
s_lshl_b32 {t2}, {t2}, 14
s_lshr_b32 {t3}, {t0}, 1
s_mul_i32 {sA1}, {t3}, 98304
s_add_u32 {t2}, {t2}, {sA1}
s_lshl_b32 {t3}, {t3}, 14
s_add_u32 {t3}, {t3}, 131072
v_xor_b32 v22, {sA0}, v20
v_xor_b32 v20, {t1}, v20
v_xor_b32 v21, 32, v20
v_xor_b32 v23, 32, v22
v_add_u32 v20, {t2}, v20
v_add_u32 v21, {t2}, v21
v_add_u32 v22, {t3}, v22
v_add_u32 v23, {t3}, v23
s_add_u32 {sA0}, {sH0}, {t0}
s_lshl_b32 {sA0}, {sA0}, 1
s_and_b32 {t1}, {sWave}, 1
s_add_u32 {sA0}, {sA0}, {t1}
s_lshl_b32 {sA0}, {sA0}, 6
s_add_u32 {sA0}, {sA0}, {sTB}
s_lshl_b32 {sA0}, {sA0}, 9
s_add_u32 {sA0}, {sA0}, {WS_P1}
s_add_u32 {sA1}, {sA0}, 16384
v_lshrrev_b32 v1, 5, v0
v_and_b32 v2, 31, v0
v_lshlrev_b32 v2, 4, v2
v_lshl_or_b32 v143, v1, 13, v2'''.split('\n')
WP=120
PK=64;Pp=72;E=88;S=116;O=160;PK2=24;Pp2=176
r0=wphi_reads(64,148,0); r1=wphi_reads(80,148,1568)
ex={12:r0[:8],13:r0[8:],16:r1[:8],17:r1[8:], 20:wphi_pack(64,WP), 21:wphi_pack(80,WP+8)}
spread(s2_setup(), 4, 11, ex); spread(KSET, 18, 27, ex)
gemm1(3,1,{7:s2_dmas(R3(0,3)),8:s2_dmas([3,4])},S1+[dma(vL16, sM, sA2, sLW, MISC, 's1')],extra=ex)
stamp(2)
def wr_tile(src, base, n):
    hi = 4 if (base&64) else 0; b=base&~64
    if b>=XR: hi+=8; b-=XR
    return [f'ds_write_b64 {v(WA+hi+q)}, {v(src+2*q,2)} offset:{b}' for q in range(n)]
def v_tile(t, arr, tmp):
    a=ACC+16*t
    L=[f'v_cndmask_b32 {v(a+12)}, {v(a+12)}, 1.0, {sHi}']
    L+=[f'v_cvt_pk_bf16_f32 {v(tmp+i)}, {v(a+2*i)}, {v(a+2*i+1)}' for i in range(8)]
    return L+wr_tile(tmp, arr, 4)
emit_list(feat(ACC, WP, PK, Pp))
k.I(f's_cmp_ge_u32 {sWave}, 4\ns_cbranch_scc1 L_KV1')
st=k.state()
emit_list(feat(ACC+16, WP+8, PK2, Pp2))
emit_list(v_tile(2,VV[0],152))
emit_list(feat2(Pp,E,S,True,O)+wr_tile(O,PHI[0],8))
L=feat2(Pp2,E,S,True,O)
emit_list(L[:24]); k.waitcnt(lg=0)
emit_list(L[24:]+wr_tile(O,PHI[1],8))
k.force_wait(lg=0)
k.label('L_KV2'); k.nop(2)
k.I('s_barrier')
stamp(3)
k.I(f's_cmp_ge_u32 {sWave}, 6\ns_cbranch_scc1 L_KV3')
KA=64; KB=96; KD=176
for ks in range(8):
    for i in range(2):
        k.I(f'ds_read_b64_tr_b16 {v(KA+4*ks+2*i,2)}, {v(RA+i)} offset:{2048*ks+512*i}')
        k.I(f'ds_read_b64_tr_b16 {v(KB+4*ks+2*i,2)}, {v(RA+2+i)} offset:{2048*ks+512*i}')
    if ks>=2: k.I(f'v_mfma_f32_32x32x16_bf16 {v(KD,16)}, {v(KA+4*(ks-2),4)}, {v(KB+4*(ks-2),4)}, {"0" if ks==2 else v(KD,16)}')
for ks in (6,7): k.I(f'v_mfma_f32_32x32x16_bf16 {v(KD,16)}, {v(KA+4*ks,4)}, {v(KB+4*ks,4)}, {v(KD,16)}')
for s in range(2):
    for j in range(4): k.I(f'v_cvt_pk_bf16_f32 {v(O+4*s+j)}, {v(KD+8*s+2*j)}, {v(KD+8*s+2*j+1) if j<3 else "0"}')
    k.I(f'v_or_b32 {v(O+4*s+3)}, {sTagH}, {v(O+4*s+3)}')
    k.I(f'buffer_store_dwordx4 {v(O+4*s,4)}, v143, {sWS}, {sA0 if s==0 else sA1} offen sc1')
k.label('L_KV3'); k.nop(4)
k.I('s_barrier')
stamp(4)
k.vm=[(set(),'k4')]
emit_list(s2_dmas([5,6,7,8]))
wait_ks([4]); emit_list(s2_reads(R3(0,5))); k.waitcnt(lg=0); emit_list(s2_dmas([9,10,11,12,13]))
wait_ks([5,6,7,8]); emit_list(s2_reads([5,6,7,8])); k.waitcnt(lg=0); emit_list(s2_dmas([14]))
stamp(9)
k.I('s_branch L_S2')
k.label('L_KV1'); k.set_state(st)
emit_list(v_tile(1,VV[1],152)+v_tile(2,VV[2],24))
emit_list(feat2(Pp,E,S,True,O)+wr_tile(O,PHI[2],8))
k.force_wait(lg=0)
k.I('s_branch L_KV2')

k.label('L_Q'); k.set_state(st_q)
k.c('Q role')
srd(sM,2,16*1568)
k.I(f'''s_sub_u32 {sRole}, {sRole}, 14
s_lshl_b32 {sH0}, {sRole}, 3
s_add_u32 {sH0}, {sH0}, {sWave}
s_mul_i32 {sA1}, {sH0}, 56
s_sub_u32 {sA1}, {sA1}, {sB0}
s_lshl_b32 {sA0}, {sA0}, 6
s_mul_i32 {sA2}, {sH0}, 1568
s_lshl_b32 {sA3}, {sWave}, 11
s_add_u32 {sT2}, {sA3}, {MISC}''')
wphi_lane(148, sT2)
k.I(f'''v_lshl_add_u32 v26, v29, 3, {sA1}
v_mov_b32 v1, {sA0}
v_cmp_eq_u32 vcc, 7, v29
v_cndmask_b32 v26, v26, v1, vcc''')
a_addr(0,26)
k.I(f'''v_and_b32 v2, 3, v0
v_lshlrev_b32 v2, 6, v2
v_xor_b32 v2, v2, v1
v_lshl_add_u32 v9, v0, 9, v2
s_mul_i32 {sT1}, {sWave}, 43
s_lshr_b32 {sT1}, {sT1}, 7
s_mul_i32 {sT1}, {sT1}, 3
s_sub_u32 {sT1}, {sWave}, {sT1}
s_lshl_b32 {sT1}, {sT1}, 15
v_add_u32 v9, {sT1}, v9''')
tags()
def gate(s):
    lab=newlab('g')
    if s==0: k.I('v_mov_b32 v34, v32\nv_mov_b32 v35, 0')
    k.I(f's_cmp_lg_u32 {sWave}, {s}\ns_cbranch_scc1 {lab}')
    k.I('ds_write_b64 v9, v[34:35]')
    k.label(lab)
WP=128; EQ=24
r0=wphi_reads(48,148,0)
QSET=f'''v_and_b32 v1, 3, v0
v_bfe_u32 v2, v0, 3, 1
v_lshl_add_u32 v1, v2, 2, v1
s_and_b32 s84, {sTB}, 1
s_lshl_b32 s85, s84, 1
v_bfe_u32 v3, v0, 2, 1
v_add_u32 v3, s85, v3
v_mul_u32_u24 v3, 7, v3
v_add_u32 v3, v3, v1
v_mov_b32 v2, 28
v_cmp_eq_u32 vcc, 7, v1
v_cndmask_b32 v3, v3, v2, vcc
v_lshrrev_b32 v2, 4, v0
v_lshlrev_b32 v2, 9, v2
v_lshl_add_u32 v20, v3, 4, v2
s_mul_i32 s84, s84, 7
s_sub_u32 s84, 14, s84
v_cmp_eq_u32 s[86:87], s84, v1
v_mov_b32 v21, 0x3f803f80
v_mov_b32 v22, 0x3f80'''.split('\n')
ex={12:r0[:8],13:r0[8:],16:wphi_pack(48,WP),18:QSET}
gemm1(1,4,{},S1+[dma(vL16, sM, sA2, sA3, MISC, 's1'), dma(vL16, sM, (sA2,1024), sA3, MISC+1024, 's1')],masked=True,pre_barrier=gate,extra=ex)
stamp(2)
PK=88;E=136;S=164;GG=168
PP=[96,112]
emit_list(feat(ACC, WP, PK, PP[0]))
for t in range(4): k.I(f'v_mul_f32 {v(GG+t)}, s43, {v(ACC+16*t+12)}')
for t in range(4): k.I(f'v_exp_f32 {v(GG+t)}, {v(GG+t)}')
for t in range(4): k.I(f'v_add_f32 {v(GG+t)}, 1.0, {v(GG+t)}')
for t in range(4): k.I(f'v_rcp_f32 {v(GG+t)}, {v(GG+t)}')
for t in range(4): k.I(f'v_mov_b32 {v(172+t)}, {v(GG+t)}')
for t in range(4): k.I(f'v_permlane32_swap_b32 {v(172+t)}, {v(GG+t)}')
k.I(f's_cmp_lg_u32 {sH0}, 0\ns_cbranch_scc1 L_Q1')
st=k.state()
k.I(f'''v_cndmask_b32 v2, {v(GG)}, {v(GG+1)}, {sHi}
v_cndmask_b32 v10, {v(GG+2)}, {v(GG+3)}, {sHi}
s_mov_b32 {sT0}, {f2u(LN2)}
v_sub_f32 v2, 1.0, v2
v_sub_f32 v10, 1.0, v10
v_mul_f32 v2, {sT0}, v2
v_mul_f32 v10, {sT0}, v10
v_mov_b32 v3, {sTag}
v_mov_b32 v11, {sTag}
v_lshlrev_b32 v1, 3, v0
s_lshl_b32 {sA0}, {sTB}, 10
s_add_u32 {sA0}, {sA0}, {WS_G}
buffer_store_dwordx2 v[2:3], v1, {sWS}, {sA0} offen sc1
buffer_store_dwordx2 v[10:11], v1, {sWS}, {sA0} offen offset:512 sc1''')
k.label('L_Q1'); k.set_state(st)
for t in range(4):
    if t<3: emit_list(feat(ACC+16*t+16, WP, PK, PP[(t+1)&1]))
    emit_list(feat2(PP[t&1], E, S, False, EQ+16*t))
stamp(3)
k.I(f'''s_lshl_b32 {sA2}, {sH0}, 12
s_add_u32 {sA2}, {sA2}, {WS_P2}
s_cmp_ge_u32 {sWave}, 4
s_cbranch_scc1 L_Q2''')
st=k.state()
k.I(f'''s_lshl_b32 {sA1}, {sTB}, 8
s_add_u32 {sA1}, {sA1}, {sA2}
s_add_u32 {sA3}, {sA1}, 16384
s_lshl_b32 {sA0}, {sH0}, 3
s_lshr_b32 {sT0}, {sTB}, 1
s_add_u32 {sA0}, {sA0}, {sT0}
s_lshl_b32 {sA0}, {sA0}, 13
s_add_u32 {sA0}, {sA0}, {WS_P1}
s_add_u32 {sT1}, {sA0}, 4096
s_add_u32 {sT2}, {sA0}, {4*65536}
s_add_u32 {sT3}, {sT2}, 4096''')
R0=96
poll([f'buffer_load_dwordx4 {v(R0+4*i,4)}, v20, {sWS}, {[sA0,sT1,sT2,sT3][i>>1]} offen offset:{(i&1)*2048} sc1' for i in range(8)],
     [(R0+4*i+3,sT16,1) for i in range(8)],'p1')
stamp(6)
def red(R0,U0,o):
    L=[];A=L.append
    for i in range(4):
        for j in range(4):
            A(f'v_lshlrev_b32 {v(U0+8*i+2*j)}, 16, {v(R0+4*i+j)}')
            A(f'v_and_b32 {v(U0+8*i+2*j+1)}, 0xffff0000, {v(R0+4*i+j)}')
    for j in range(0,8,2):
        A(f'v_pk_add_f32 {v(U0+j,2)}, {v(U0+j,2)}, {v(U0+8+j,2)}')
        A(f'v_pk_add_f32 {v(U0+16+j,2)}, {v(U0+16+j,2)}, {v(U0+24+j,2)}')
    for j in range(0,8,2): A(f'v_pk_add_f32 {v(U0+j,2)}, {v(U0+j,2)}, {v(U0+16+j,2)}')
    for j in range(4): A(f'v_permlane32_swap_b32 {v(U0+j)}, {v(U0+4+j)}')
    for j in range(0,4,2): A(f'v_pk_add_f32 {v(U0+j,2)}, {v(U0+j,2)}, {v(U0+4+j,2)}')
    for j in range(2): A(f'v_permlane16_swap_b32 {v(U0+j)}, {v(U0+2+j)}')
    A(f'v_pk_add_f32 {v(U0,2)}, {v(U0,2)}, {v(U0+2,2)}')
    L+=f'''v_cvt_pk_bf16_f32 {v(o)}, {v(U0)}, {v(U0+1)}
v_mov_b32 {v(o+1)}, {v(o)}
v_permlane16_swap_b32 {v(o)}, {v(o+1)}
v_mov_b32 {v(o+2)}, {v(o)}
v_mov_b32 {v(o+3)}, {v(o+1)}
v_permlane32_swap_b32 {v(o)}, {v(o+2)}
v_permlane32_swap_b32 {v(o+1)}, {v(o+3)}
v_and_b32 {v(o+3)}, 0xffff, {v(o+3)}
v_cndmask_b32 {v(o)}, {v(o)}, v21, s[86:87]
v_cndmask_b32 {v(o+1)}, {v(o+1)}, v21, s[86:87]
v_cndmask_b32 {v(o+2)}, {v(o+2)}, v21, s[86:87]
v_cndmask_b32 {v(o+3)}, {v(o+3)}, v22, s[86:87]
v_or_b32 {v(o+3)}, {sTagH}, {v(o+3)}'''.split('\n')
    return L
for a,b in zip(red(R0,ACC,8),red(R0+16,ACC+32,12)): k.I(a); k.I(b)
k.I(f'''s_mov_b64 exec, 0xffff
buffer_store_dwordx4 v[8:11], {v(vL16)}, {sWS}, {sA1} offen sc1
buffer_store_dwordx4 v[12:15], {v(vL16)}, {sWS}, {sA3} offen sc1
s_mov_b64 exec, -1''')
k.label('L_Q2'); k.nop(2)
stamp(7)
KV=136
k.I(f'''s_lshl_b32 {sA0}, {sTB}, 6
s_add_u32 {sA0}, {sA0}, {sH0}
s_lshl_b32 {sA0}, {sA0}, 11
s_add_u32 {sA0}, {sA0}, {WS_O}
s_mov_b32 {sT1}, {f2u(1e-6)}''')
poll([f'buffer_load_dwordx4 {v(KV+4*i,4)}, {v(vL16)}, {sWS}, {sA2} offen offset:{i*1024} sc1' for i in range(4)],
     [(KV+4*i+3,sT16,1) for i in range(4)],'p2')
stamp(4)
def nacc(t,sg): return ACC+32*(t&1)+16*sg
def omf(t):
    for sg in range(2):
        for s in range(2):
            d=v(nacc(t,sg),16)
            k.I(f'v_mfma_f32_32x32x16_bf16 {d}, {v(KV+8*sg+4*s,4)}, {v(EQ+16*t+8*sg+4*s,4)}, {"0" if s==0 else d}')
omf(0); omf(1)
for t in range(4):
    p=nacc(t,0); n=nacc(t,1)
    k.I(f'''v_rcp_f32 v8, {v(p+15)}
    v_rcp_f32 v10, {v(n+15)}
    v_fma_f32 v12, {v(p+7)}, v8, {sT1}
    v_fma_f32 v12, {v(n+7)}, v10, v12
    v_rcp_f32 v12, v12
    v_mul_f32 v12, v12, {v(GG+t)}
    v_mul_f32 v8, v8, v12
    v_mul_f32 v10, v10, v12''')
    X=96
    for i in range(0,16,2): k.I(f'v_pk_mul_f32 {v(X+i,2)}, {v(p+i,2)}, v[8:9] op_sel_hi:[1,0]')
    for i in range(0,16,2): k.I(f'v_pk_fma_f32 {v(X+i,2)}, {v(n+i,2)}, v[10:11], {v(X+i,2)} op_sel_hi:[1,0,1]')
    if t<2: omf(t+2)
    o=112+8*(t&1)
    for s in range(2):
        for j in range(4): k.I(f'v_cvt_pk_bf16_f32 {v(o+4*s+j)}, {v(X+8*s+2*j)}, {v(X+8*s+2*j+1) if j<3 else "0"}')
        k.I(f'v_or_b32 {v(o+4*s+3)}, {sTagH}, {v(o+4*s+3)}')
        k.I(f'buffer_store_dwordx4 {v(o+4*s,4)}, {v(vL16)}, {sWS}, {sA0} offen offset:{1024*s} sc1')
    k.I(f's_add_u32 {sA0}, {sA0}, 32768')
k.I(f'''s_lshl_b32 {sA0}, {sTB}, 4
s_add_u32 {sA0}, {sA0}, {sH0}
s_lshl_b32 {sA0}, {sA0}, 7
s_add_u32 {sA0}, {sA0}, {WS_FO}''')
flag_store(sA0)
stamp(5)
k.I(f's_cmp_lg_u32 s2, 0\ns_cbranch_scc1 L_Qend\ns_cmp_lg_u32 {sWave}, 0\ns_cbranch_scc1 L_Qend')
k.I('v_lshlrev_b32 v1, 7, v0')
k.I(f's_mov_b32 {sA0}, {WS_FA}\ns_mov_b32 {sA1}, {WS_FA+8192}\ns_mov_b32 {sT0}, {WS_FO}\ns_mov_b32 {sT1}, {WS_FO+8192}\ns_mov_b32 {sT2}, {WS_FO+16384}\ns_mov_b32 {sT3}, {WS_FO+24576}')
poll([f'buffer_load_dword {v(8+i)}, v1, {sWS}, {s} offen sc1' for i,s in enumerate([sA0,sA1,sT0,sT1,sT2,sT3])],[(8+i,sTag,0) for i in range(6)],'ep')
k.I(f's_mov_b32 {sA0}, {WS_EPOCH}')
flag_store(sA0)
k.label('L_Qend'); k.nop(2)
stamp(15)
dump_stamps()
k.label('L_end')
k.I('s_endpgm')
k.label('L_codeend')
k.raw(f""".section .rodata,"a"
.p2align 6
.amdhsa_kernel {NAME}_kernel
  .amdhsa_next_free_vgpr 256
  .amdhsa_next_free_sgpr 102
  .amdhsa_accum_offset 256
  .amdhsa_group_segment_fixed_size 0
  .amdhsa_kernarg_size 96
  .amdhsa_user_sgpr_count 2
  .amdhsa_user_sgpr_kernarg_segment_ptr 1
  .amdhsa_system_sgpr_workgroup_id_x 1
.end_amdhsa_kernel""")
open(OUT,'w').write(k.text())
print('instructions', k.nins)
```

```python
import sys, struct
from emit import K, interleave
NAME = "gated_mix__linear_kernel_hedgehog__dense_activation_mish__prompt"
TS = '--ts' in sys.argv
CLK = 's_memtime' if '--cyc' in sys.argv else 's_memrealtime'
OPT = {a[2:].split('=')[0]:(a.split('=')[1] if '=' in a else '1') for a in sys.argv[1:] if a.startswith('--')}
OUT = [a for a in sys.argv[1:] if not a.startswith('--')][0]

def f2u(x): return struct.unpack('<I', struct.pack('<f', x))[0]
LOG2E = 1.4426950408889634; LN2 = 0.6931471805599453

WB=int(OPT.get('wb','0'),0)
WS_EPOCH=0; WS_FA=WB+0x20000; WS_FO=WB+0x24000; WS_G=WB+0x2C000; WS_P2=WB+0x30000; WS_P1=WB+0x100000; WS_O=WB+0x500000; WS_ACT=WB+0x800000; WS_TS=0xF000000
WR=0; XR=96*1024; MISC=144*1024; LDS_BYTES=160*1024
SPIN=200000

sRot='s3'; sR6='s6'; sR7='s7'
sX='s[8:11]'; sW='s[12:15]'; sWS='s[16:19]'; sW2='s[20:23]'; sWO='s[24:27]'; sOUT='s[28:31]'; sM='s[32:35]'; sG='s[36:39]'
sL2='s[40:41]'
sLn='s[42:43]'
sWave='s44'; sTB='s45'; sRole='s46'; sT64='s47'; sCT='s48'; sTag='s49'; sTagH='s50'
sLW='s51'
sT0='s52'; sT1='s53'; sT2='s54'; sT3='s55'
sMask='s[56:57]'; sHi='s[58:59]'
sW2b='s60'; sWOb='s61'; sL4='s62'; sL2k='s63'
sSpin='s88'; sH0='s89'; sA0='s90'; sA1='s91'
sTS=92
sI='s94'; sStr='s95'; sB0='s96'; sE='s97'; sA2='s98'; sA3='s99'
sRa='s4'; sRb='s5'
sT16='s80'
P = lambda i: 64+2*i

def v(a,n=1): return f'v{a}' if n==1 else f'v[{a}:{a+n-1}]'

k=K()
nlab=[0]
def newlab(p):
    nlab[0]+=1; return f'L_{p}_{nlab[0]}'

def srd(dst, ptr, size):
    d=int(dst[2:dst.index(':')])
    k.I(f's_mov_b32 s{d}, s{P(ptr)}\ns_mov_b32 s{d+1}, s{P(ptr)+1}\ns_mov_b32 s{d+2}, {size}\ns_mov_b32 s{d+3}, 0x20000')

NSTAMP=16
def tsreg(i): return sTS+i if i<2 else 64+i-2
def stamp(i):
    if 'gts' in OPT and i not in (1,2,15): return
    gstamp(i)
def gstamp(i):
    if not TS: return
    k.I(CLK+' s[100:101]'); k.force_wait(lg=0); k.I(f's_mov_b32 s{tsreg(i)}, s100')
def stamp_init():
    if not TS: return
    for i in range(1,NSTAMP): k.I(f's_mov_b32 s{tsreg(i)}, 0')
def dump_stamps():
    if 'padto' in OPT:
        lab=newlab('pad'); k.label(lab)
        k.I('s_memrealtime s[100:101]'); k.force_wait(lg=0)
        k.I(f's_sub_u32 {sT0}, s100, s{sTS}\ns_cmp_lt_u32 {sT0}, {OPT["padto"]}\ns_cbranch_scc1 {lab}')
        return
    if not TS: return
    k.I('s_mov_b64 exec, 1')
    k.I(f's_lshl_b32 {sT0}, s2, 3\ns_add_u32 {sT0}, {sT0}, {sWave}\ns_lshl_b32 {sT0}, {sT0}, 7\ns_add_u32 {sT0}, {sT0}, {WS_TS}\nv_mov_b32 v1, 0\nv_mov_b32 v3, 0')
    for i in range(NSTAMP):
        k.I(f'v_mov_b32 v2, s{tsreg(i)}')
        k.I(f'buffer_store_dwordx2 v[2:3], v1, {sWS}, {sT0} offen offset:{8*i}')

vLane=0; vW=4; vX=5; vW2=6; vL16=7
vA=8; vB=16; vC=20
WREG=24
FB=152; FA=160; ACC=192
vPF=143
vS2=136

def dma(voff, srd_, soff, ldsbase, ldsconst, tag, masked=False, pre='', post=''):
    L=[]
    if pre: L.append(pre)
    L.append(f's_add_u32 m0, {ldsbase}, {ldsconst}')
    so=sT0
    if isinstance(soff,int): L.append(f's_mov_b32 {sT0}, {soff}')
    elif isinstance(soff,str): so=soff
    else: L.append(f's_add_u32 {sT0}, {soff[0]}, {soff[1]}')
    if masked: L.append(f's_mov_b64 exec, {sMask}')
    L.append(f'buffer_load_dwordx4 {v(voff)}, {srd_}, {so} offen lds')
    if masked: L.append('s_mov_b64 exec, -1')
    if post: L.append(post)
    return ('\n'.join(L), tag)

ROT0 = 'rot7' in OPT
def chunk_expr(s, dst, tmp):
    if ROT0: return f's_add_u32 {dst}, {sRot}, {s}\ns_sub_u32 {tmp}, {dst}, 7\ns_cmp_ge_u32 {dst}, 7\ns_cselect_b32 {dst}, {tmp}, {dst}'
    if s==0: return f's_mov_b32 {dst}, 0'
    return f's_add_u32 {dst}, {sRot}, {s}\ns_sub_u32 {tmp}, {dst}, 6\ns_cmp_ge_u32 {dst}, 7\ns_cselect_b32 {dst}, {tmp}, {dst}'
def s1_dmas(s, masked=False):
    slot=s%3; L=[]
    pre=chunk_expr(s,sR6,sR7)+f'\ns_mul_i32 {sR7}, {sR6}, {sStr}\ns_lshl_b32 {sR7}, {sR7}, 2\ns_lshl_b32 {sR6}, {sR6}, 7'
    for m in range(2): L.append(dma(vX, sX, (sR6,64*m*896) if m else sR6, sLW, XR+slot*16384+m*8192, f's{s}', pre=pre if m==0 else ''))
    for m in range(4): L.append(dma(vW, sW, sR7, sLW, WR+slot*32768+m*8192, f's{s}', masked, post=f's_add_u32 {sR7}, {sR7}, {sStr}' if m<3 else ''))
    return L

PSLOT=[1,2,0,1,2,0]
def ks_lds(ks):
    p,i=divmod(ks,3); s=PSLOT[p]
    if i<2: return ('W', WR+s*32768+i*2048)
    return ('X', s*16384)
def kidx(ks, dst, tmp):
    if 'norot2' in OPT: return f's_mov_b32 {dst}, {ks}'
    if ks<8: return f's_add_u32 {dst}, {sRa}, {ks}\ns_and_b32 {dst}, {dst}, 7'
    return f's_add_u32 {dst}, {sRb}, {ks}\ns_sub_u32 {tmp}, {dst}, 6\ns_cmp_ge_u32 {dst}, 14\ns_cselect_b32 {dst}, {tmp}, {dst}'
def s2_dma_ks(ks):
    L=[]; kind,off=ks_lds(ks)
    base = sL4 if kind=='W' else sL2k
    tag=f'k{ks}'
    if ks<14:
        pre=kidx(ks,sT1,sT2)+f'\ns_mul_i32 {sT1}, {sT1}, {16*896}\ns_add_u32 {sT1}, {sT1}, {sW2b}'
        a=dma(vW2, sW2, sT1, base, off, tag, pre=pre); b=dma(vW2, sW2, (sT1,8*896), base, off+1024, tag)
        return [(a[0]+'\n'+b[0],tag)]
    hd,s=divmod(ks-14,2)
    return [dma(vW2, sWO, (sWOb,(28*hd+14*s+8*h)*896), base, off+1024*h, tag) for h in range(2)]
def s2_dmas(kss): return [] if 'now2' in OPT else [d for ks in kss for d in s2_dma_ks(ks)]
def wait_ks(kss):
    for ks in kss: k.wait_tag(f'k{ks}')
def wreg(ks,ct): return WREG+8*ks+4*ct
def s2_reads(kss, base=None, obase=None):
    base = vS2 if base is None else base
    L=[]
    for ks in kss:
        kind,off=ks_lds(ks)
        if ks<14:
            if kind=='W':
                a=base
                if off>=65536: a+=2; off-=65536
            else: a=base+4
            st=1024
        else:
            a = obase if kind=='W' else obase+2
            st=512
        for ct in range(2):
            for i in range(2):
                L.append(f'ds_read_b64_tr_b16 {v(wreg(ks,ct)+2*i,2)}, {v(a+ct)} offset:{off+st*i}')
    return L
R3=lambda a,b: list(range(a,b))

def emit_list(L):
    for x in L:
        if callable(x): x()
        elif isinstance(x,tuple): k.I(x[0],x[1])
        else: k.I(x)

def gemm1(NA, NB, tail, first, masked=False, pre_barrier=None, extra=None):
    extra = extra or {}
    extra.setdefault(PFG,[]).extend(L2PF)
    if NB==1: fa=lambda b,t: FA+16*b+4*t; fb=lambda b,t: FB+4*b
    else:     fa=lambda b,t: FB+4*b;      fb=lambda b,t: FA+16*b+4*t
    def reads(g):
        s,ks=divmod(g,4); slot=s%3; b=g&1; A=[];B=[]
        for t in range(NB):
            B.append(f'ds_read_b128 {v(fb(b,t),4)}, {v(vB+ks)} offset:{slot*16384+t*4096}')
        for t in range(NA):
            a=vA+t+(4 if slot==2 else 0); off=(slot&1)*32768+ks*8192
            A.append([f'ds_read_b64_tr_b16 {v(fa(b,t)+2*i,2)}, {v(a)} offset:{off+2048*i}' for i in range(2)])
        if NB==1: return B+[x for l in A for x in l]
        return A[0]+B
    def mfmas(g):
        b=g&1; L=[]
        for ta in range(NA):
            for tb in range(NB):
                d=v(ACC+16*(ta*NB+tb),16)
                c = '0' if g==0 else d
                L.append(f'v_mfma_f32_32x32x16_bf16 {d}, {v(fa(b,ta),4)}, {v(fb(b,tb),4)}, {c}')
        return L
    emit_list(first)
    if pre_barrier: pre_barrier(0)
    k.wait_tag('s0'); k.force_wait(lg=0); k.I('s_barrier')
    stamp(1)
    emit_list(reads(0))
    pend=s1_dmas(2,masked)
    for g in range(28):
        M=mfmas(g)
        if (g+1)%4==0:
            s=(g+1)//4
            if pre_barrier and s<7: pre_barrier(s)
            k.force_wait(lg=0)
            k.I(M[0]); M=M[1:]
            if s<7: k.wait_tag(f's{s}')
            k.I('s_barrier')
            if 'gts' in OPT and s<7: gstamp(8+s)
            n=s+2
            pend = s1_dmas(n,masked) if n<7 else list(tail.get(n,[]))
        ex = reads(g+1) if g+1<28 else []
        nd = (2 if g<19 else 1) if g<27 else 0
        d=pend[:nd]; pend=pend[nd:]
        if (g+2)%4==0 and g<27: d+=pend; pend=[]
        emit_list(interleave(M, ex+d+extra.get(g,[])))

def cmp_all(checks):
    first=True
    for r,s,hi in checks:
        dst = 'vcc' if first else sMask
        if hi: k.I(f'v_cmp_ne_u16_sdwa {dst}, {v(r)}, {s} src0_sel:WORD_1 src1_sel:WORD_0')
        else: k.I(f'v_cmp_ne_u32 {dst}, {s}, {v(r)}')
        if not first: k.I(f's_or_b64 vcc, vcc, {sMask}')
        first=False
    k.nop(1)
def poll(loads, checks, name):
    lab=newlab(name); done=newlab(name+'d')
    k.I(f's_mov_b32 {sSpin}, {SPIN}')
    k.nop(2)
    k.label(lab)
    for l in loads: k.I(l)
    k.force_wait(vm=0)
    cmp_all(checks)
    k.I(f's_cmp_eq_u64 vcc, 0\ns_cbranch_scc1 {done}')
    if 'sleep' in OPT: k.I(f's_sleep {OPT["sleep"]}')
    k.I(f's_sub_u32 {sSpin}, {sSpin}, 1\ns_cmp_lg_u32 {sSpin}, 0\ns_cbranch_scc1 {lab}')
    k.label(done)
def check_or_poll(loads, checks, name, hint=None):
    done=newlab(name+'ok')
    cmp_all(checks)
    k.I(f's_cmp_eq_u64 vcc, 0\ns_cbranch_scc1 {done}')
    st=k.state()
    if hint: poll(hint[0],hint[1],name+'h')
    poll(loads,checks,name)
    k.label(done); k.set_state(st)

def flag_store(soff_sgpr):
    k.I(f'v_mov_b32 v1, {sTag}\nv_mov_b32 v2, 0\ns_mov_b64 exec, 1')
    k.I(f'buffer_store_dword v1, v2, {sWS}, {soff_sgpr} offen sc1')
    k.I('s_mov_b64 exec, -1')

k.raw(f'; @launch grid=(256,1,1) block=(512,1,1) lds={LDS_BYTES}')
k.raw('.amdgcn_target "amdgcn-amd-amdhsa--gfx950"\n.text')
k.raw(f'.globl {NAME}_kernel\n.p2align 8\n.type {NAME}_kernel,@function\n{NAME}_kernel:')
k.I('s_cmp_ge_u32 s2, 256\ns_cbranch_scc1 L_end')
k.I('s_load_dwordx16 s[64:79], s[0:1], 0\ns_load_dwordx8 s[80:87], s[0:1], 64')
if TS or 'padto' in OPT: k.I(CLK+' s[100:101]')
k.I('s_getpc_b64 s[4:5]'); k.label('L_pc')
k.I(f'''v_lshrrev_b32 v1, 6, v0
s_lshr_b32 {sI}, s2, 3
v_and_b32 v2, 1, v0
v_readfirstlane_b32 {sWave}, v1
v_lshl_add_u32 v2, v1, 1, v2
s_lshl_b32 {sT0}, {sI}, 4
v_add_lshl_u32 v2, v2, {sT0}, 7
v_min_u32 v2, L_codeend-L_pc-4, v2
v_and_b32 v0, 63, v0''')
if 'nocpf' not in OPT: k.I(f'global_load_dword {v(vPF)}, v2, s[4:5]','cpf')
NR = 7 if ROT0 else 6
k.I(f'''s_and_b32 {sT0}, s2, 7
s_lshr_b32 {sT3}, {sT0}, 1
s_lshl_b32 {sT1}, {sT3}, 4
s_sub_u32 {sT1}, {sT1}, 16
s_mul_i32 {sT2}, {sT3}, 12
s_add_u32 {sT2}, {sT2}, 60
s_cmp_lt_u32 {sI}, 16
s_cselect_b32 {sT1}, {sT2}, {sT1}
s_lshl_b32 {sT2}, {sT3}, 2
s_add_u32 {sT2}, {sT2}, 112
s_cmp_lt_u32 {sI}, 4
s_cselect_b32 {sT1}, {sT2}, {sT1}
s_add_u32 {sT1}, {sT1}, {sI}
s_lshr_b32 {sRole}, {sT1}, 3
s_and_b32 {sT1}, {sT1}, 7
s_and_b32 {sTB}, s2, 1
s_lshl_b32 {sTB}, {sTB}, 3
s_add_u32 {sTB}, {sTB}, {sT1}
s_lshl_b32 {sLW}, {sWave}, 10
s_mul_i32 {sT1}, {sRole}, 448
s_and_b32 {sT1}, {sT1}, 0xffffff80
s_lshl_b32 {sT2}, {sRole}, 7
s_sub_u32 {sT2}, {sT2}, 128
s_mul_i32 {sT3}, {sRole}, 384
s_sub_u32 {sT3}, {sT3}, {14*384}
s_cmp_lt_u32 {sRole}, 14
s_cselect_b32 {sB0}, {sT2}, {sT3}
s_cselect_b32 {sE}, 640, 0
s_cmp_lt_u32 {sRole}, 8
s_cselect_b32 {sB0}, {sT1}, {sB0}
s_cselect_b32 {sE}, 0, {sE}
s_movk_i32 {sStr}, 2688
s_cselect_b32 {sStr}, 3584, {sStr}
s_cmp_eq_u32 {sRole}, 14
s_cselect_b32 {sA0}, 7, 8
s_cmp_eq_u32 {sRole}, 15
s_cselect_b32 {sA0}, 0, {sA0}
s_add_u32 {sRot}, {sRole}, {sTB}
s_mul_i32 {sT1}, {sRot}, {37 if ROT0 else 43}
s_lshr_b32 {sT1}, {sT1}, 8
s_mul_i32 {sT1}, {sT1}, {NR}
s_sub_u32 {sRot}, {sRot}, {sT1}''')
if 'norot' in OPT: k.I(f's_mov_b32 {sRot}, 0')
k.I(f'''v_lshrrev_b32 v1, 3, v0
s_lshl_b32 {sT1}, {sWave}, 3
v_add_u32 v1, {sT1}, v1
v_lshrrev_b32 v2, 1, v1
v_xor_b32 v2, v2, v0
v_and_b32 v2, 7, v2
v_mul_u32_u24 v1, 896, v1
v_lshl_add_u32 v1, v2, 4, v1
s_mul_i32 {sT1}, {sTB}, {128*896}
v_add_u32 {v(vX)}, {sT1}, v1''')
k.I(f'''v_lshrrev_b32 v3, 5, v0
s_lshl_b32 {sT1}, {sWave}, 1
v_add_u32 v24, {sT1}, v3
v_and_b32 v25, 3, v24
v_lshlrev_b32 v25, 2, v25
v_and_b32 v26, 31, v0
v_xor_b32 v25, v25, v26
v_mul_u32_u24 v24, {sStr}, v24
v_lshl_add_u32 v24, v25, 4, v24
v_lshrrev_b32 v26, 4, v25
v_mul_u32_u24 v26, {sE}, v26
v_add3_u32 {v(vW)}, v24, v26, {sB0}
v_lshrrev_b32 v25, 2, v25
v_cmp_ne_u32 {sMask}, {sA0}, v25
s_mov_b32 s10, {2048*896}
s_mov_b32 s11, 0x20000
s_mov_b32 s15, 0x20000
s_mul_i32 s14, {sStr}, 448
s_lshl_b32 {sStr}, {sStr}, 4''')
k.force_wait(lg=0)
if TS or 'padto' in OPT: k.I(f's_mov_b32 s{sTS}, s100')
k.I(f'''s_mov_b32 s8, s{P(0)}
s_mov_b32 s9, s{P(0)+1}
s_cmp_lt_u32 {sRole}, 8
s_cselect_b32 s12, s{P(5)}, s{P(1)}
s_cselect_b32 s13, s{P(5)+1}, s{P(1)+1}''')
emit_list(s1_dmas(0,True))
k.I(f's_load_dword {sTag}, s[{P(11)}:{P(11)+1}], {WS_EPOCH}')
srd(sG,8,896)
if ROT0: k.I(f's_add_u32 {sT1}, {sWave}, {sRot}\ns_sub_u32 {sT2}, {sT1}, 7\ns_cmp_ge_u32 {sT1}, 7\ns_cselect_b32 {sT1}, {sT2}, {sT1}')
else: k.I(f's_add_u32 {sT1}, {sWave}, {sRot}\ns_sub_u32 {sT2}, {sT1}, 6\ns_cmp_ge_u32 {sT1}, 7\ns_cselect_b32 {sT1}, {sT2}, {sT1}\ns_cmp_eq_u32 {sWave}, 0\ns_cselect_b32 {sT1}, 0, {sT1}')
k.I(f's_lshl_b32 {sT1}, {sT1}, 7\nv_lshlrev_b32 v1, 1, v0\nbuffer_load_ushort v32, v1, {sG}, {sT1} offen')
k.I('s_barrier')
S1=s1_dmas(1,True)
NPRE=int(OPT.get('npre','2'))
emit_list(S1[:NPRE]); S1=S1[NPRE:]
srd(sWS,11,0x10000000); srd(sW2,7,1792*896); srd(sWO,3,448*896)
k.I(f'''s_lshl_b32 {sT0}, {sI}, 3
s_add_u32 {sT0}, {sT0}, {sWave}
s_mul_i32 {sT1}, {sT0}, 49
s_mul_i32 {sT2}, {sT0}, 13
v_min_u32 v1, 48, v0
v_min_u32 v2, 12, v0
v_add_lshl_u32 v144, v1, {sT1}, 7
v_add_lshl_u32 v145, v2, {sT2}, 7
s_and_b32 {sT0}, s2, 7
s_mul_i32 {sT3}, {sT0}, 7
s_add_u32 {sT1}, {sT1}, {sT3}
s_lshl_b32 {sT3}, {sT0}, 1
s_add_u32 {sT2}, {sT2}, {sT3}
v_min_u32 v1, 6, v0
v_min_u32 v2, 1, v0
v_add_lshl_u32 v150, v1, {sT1}, 7
v_add_lshl_u32 v151, v2, {sT2}, 7''')
def pf(a):
    return [(f'buffer_load_dword v146, {v(a)}, {sW2}, 0 offen','pf'),(f'buffer_load_dword v147, {v(a+1)}, {sWO}, 0 offen','pf')]
k.I(f's_lshl_b32 {sT0}, s2, 3\ns_add_u32 {sT0}, {sT0}, {sWave}\ns_and_b32 {sT0}, {sT0}, 1023\ns_lshl_b32 {sT0}, {sT0}, 7\ns_add_u32 {sT0}, {sT0}, {WS_FA}\nv_mov_b32 v33, {sT0}')
if 'nompf' not in OPT: S1=S1+pf(150)
if 'notouch' not in OPT: S1=S1+[(f'buffer_load_dword v33, v33, {sWS}, 0 offen','pf')]
PFG=int(OPT.get('pfg','18'))
L2PF = pf(144) if 'l2pf' in OPT else []
k.I(f'''s_mov_b32 s40, {f2u(LOG2E)}
s_mov_b32 s41, {f2u(LOG2E)}
s_mov_b32 s42, {f2u(LOG2E)}
s_mov_b32 s43, {f2u(-LOG2E)}
s_mov_b32 s58, 0
s_mov_b32 s59, -1
v_lshlrev_b32 {v(vL16)}, 4, {v(vLane)}''')
k.I(f'''v_and_b32 v1, 31, v0
v_bfe_u32 v2, v0, 1, 3
v_xor_b32 v2, v2, v3
v_lshlrev_b32 v2, 4, v2
v_lshl_add_u32 v1, v1, 7, v2
s_and_b32 {sT0}, {sWave}, 3
s_lshl_b32 {sT0}, {sT0}, 12
s_cmp_lt_u32 {sRole}, 14
s_cselect_b32 {sT0}, {sT0}, 0
s_add_u32 {sT0}, {sT0}, {XR}
v_add_u32 {v(vB)}, {sT0}, v1
v_xor_b32 {v(vB+1)}, 32, {v(vB)}
v_xor_b32 {v(vB+2)}, 64, {v(vB)}
v_xor_b32 {v(vB+3)}, 96, {v(vB)}''')
k.I(f'''v_bfe_u32 v28, v0, 2, 2
v_lshl_add_u32 v27, v3, 3, v28
v_lshlrev_b32 v27, 9, v27
v_lshlrev_b32 v28, 6, v28
v_bfe_u32 v29, v0, 4, 1
v_and_b32 v26, 3, v0
v_lshl_add_u32 v29, v29, 2, v26''')
k.I(f's_cmp_ge_u32 {sRole}, 14\ns_cbranch_scc1 L_Q')
st_q=k.state()
srd(sOUT,9,2048*896)
def s2_setup():
    t0,t1,t2,t3='s84','s85','s86','s87'
    T=f'''s_sub_u32 {t1}, {sI}, 4
s_mul_i32 {t2}, {t1}, 37
s_lshr_b32 {t2}, {t2}, 8
s_mul_i32 {t3}, {t2}, 7
s_sub_u32 {sCT}, {t1}, {t3}
s_and_b32 {t0}, s2, 7
s_lshl_b32 {sT64}, {t0}, 2
s_add_u32 {sT64}, {sT64}, {t2}
s_lshl_b32 {sRa}, {t2}, 1
s_add_u32 {sRa}, {sRa}, {sCT}
s_mul_i32 {t0}, {sRa}, 43
s_lshr_b32 {t0}, {t0}, 8
s_mul_i32 {t0}, {t0}, 6
s_sub_u32 {sRb}, {sRa}, {t0}
s_mul_i32 {sW2b}, {sWave}, {224*896}
s_mul_i32 {sWOb}, {sWave}, {56*896}
s_lshl_b32 {sL4}, {sWave}, 12
s_lshl_b32 {sL2k}, {sWave}, 11
s_add_u32 {sL2k}, {sL2k}, {XR}
v_lshrrev_b32 v1, 3, v0
v_lshlrev_b32 v2, 1, v1
v_and_b32 v2, 4, v2
v_and_b32 v3, 7, v0
v_xor_b32 v2, v2, v3
v_mul_u32_u24 v1, 896, v1
v_lshl_add_u32 v1, v2, 4, v1
s_lshl_b32 {t0}, {sCT}, 7
v_add_u32 {v(vW2)}, {t0}, v1
v_lshrrev_b32 v1, 5, v0
v_lshlrev_b32 v1, 9, v1
v_bfe_u32 v2, v0, 2, 2
v_lshl_add_u32 v1, v2, 7, v1
v_lshrrev_b32 v2, 1, v2
v_lshl_add_u32 v1, v2, 6, v1
v_bfe_u32 v2, v0, 4, 1
v_lshl_add_u32 v1, v2, 5, v1
v_and_b32 v2, 3, v0
v_lshl_add_u32 v1, v2, 3, v1
v_xor_b32 v2, 64, v1
v_add_u32 {v(vS2)}, {sL4}, v1
v_add_u32 {v(vS2+1)}, {sL4}, v2
v_add_u32 {v(vS2+2)}, 0x10000, {v(vS2)}
v_add_u32 {v(vS2+3)}, 0x10000, {v(vS2+1)}
v_add_u32 {v(vS2+4)}, {sL2k}, v1
v_add_u32 {v(vS2+5)}, {sL2k}, v2'''
    return T.split('\n')
def tags():
    k.force_wait(lg=0)
    k.I(f'''s_lshr_b32 {sT16}, {sTag}, 16
    s_add_u32 {sT16}, {sT16}, 0x2a5b
    s_and_b32 {sT16}, {sT16}, 0x3fff
    s_lshl_b32 {sTagH}, {sT16}, 16
    s_mul_i32 {sTag}, {sTag}, 1664525
    s_add_u32 {sTag}, {sTag}, 1013904223
    s_lshr_b32 {sTag}, {sTag}, 16
    s_or_b32 {sTag}, {sTag}, {sTagH}''')
    stamp_init(); stamp(8)
def a_addr(t, colexpr_v):
    k.I(f'''v_xor_b32 {v(vA+t)}, {v(colexpr_v)}, v28
    v_add_u32 {v(vA+t)}, {v(vA+t)}, v27
    v_add_u32 {v(vA+4+t)}, 0x10000, {v(vA+t)}''')
def spread(L, g0, g1, ex):
    n=g1-g0;
    for i in range(n):
        ex.setdefault(g0+i,[]).extend(L[i*len(L)//n:(i+1)*len(L)//n])
k.I(f's_cmp_ge_u32 {sRole}, 8\ns_cbranch_scc1 L_KV')
st_kv=k.state()

k.c('F role')
srd(sM,6,1792*2)
k.I(f'''s_mul_i32 {sT0}, {sRole}, 448
s_lshl_b32 {sT1}, {sWave}, 6
s_add_u32 {sT1}, {sT1}, {sT0}
v_and_b32 v1, 31, v0
v_lshlrev_b32 v2, 1, v1
buffer_load_ushort v148, v2, {sM}, {sT1} offen
s_lshl_b32 {sT1}, {sWave}, 7
s_add_u32 {sT1}, {sT1}, {MISC}
v_lshl_add_u32 v149, v1, 2, {sT1}
s_and_b32 {sT1}, {sT0}, 127
s_lshr_b32 {sA1}, {sWave}, 2
s_lshl_b32 {sT2}, {sA1}, 9
s_lshl_b32 {sA1}, {sA1}, 8
s_add_u32 {sA1}, {sT1}, {sA1}
s_add_u32 {sT2}, {sT2}, {MISC}
v_lshl_add_u32 v142, v3, 4, {sT2}''')
for t in range(4):
    k.I(f'v_lshl_add_u32 v26, v29, 3, {sA1}\nv_add_u32 v26, {64*t}, v26')
    a_addr(t,26)
tags()
FSET=f'''v_mov_b32 {v(vC)}, 0.5
v_mov_b32 {v(vC+1)}, 0.5
v_mov_b32 {v(vC+2)}, 1.0
v_mov_b32 {v(vC+3)}, 1.0
s_lshl_b32 {sA2}, {sTB}, 2
s_and_b32 s84, {sWave}, 3
s_add_u32 {sA2}, {sA2}, s84
s_mul_i32 {sA2}, {sA2}, 112
s_mul_i32 s84, {sRole}, 14
s_add_u32 {sA2}, {sA2}, s84
s_and_b32 s84, {sWave}, 4
s_lshl_b32 s84, s84, 1
s_add_u32 {sA2}, {sA2}, s84
s_lshl_b32 {sA2}, {sA2}, 10
s_add_u32 {sA2}, {sA2}, {WS_ACT}
s_add_u32 {sA3}, {sA2}, 4096
s_lshl_b32 {sA0}, {sTB}, 3
s_add_u32 {sA0}, {sA0}, {sRole}
s_lshl_b32 {sA0}, {sA0}, 7
s_lshl_b32 s84, {sWave}, 2
s_add_u32 {sA0}, {sA0}, s84
s_add_u32 {sA0}, {sA0}, {WS_FA}'''.split('\n')
k.I(f's_cmp_ge_u32 {sWave}, 4\ns_cbranch_scc1 L_F3')
st_f3=k.state()

BI=104
def bias_reads(t):
    return [f'ds_read_b128 {v(BI+16*(t&1)+4*q,4)}, v142 offset:{128*t+32*q}' for q in range(4)]
def mish_tile(t, T, U, O):
    L=[]
    for hh in range(2):
        a=ACC+16*t+8*hh; b=BI+16*(t&1)+8*hh
        for i in range(0,8,2): L.append(f'v_pk_fma_f32 {v(a+i,2)}, {v(a+i,2)}, {sL2}, {v(b+i,2)}')
        for i in range(8): L.append(f'v_exp_f32 {v(T+i)}, {v(a+i)}')
        for i in range(0,8,2): L.append(f'v_pk_fma_f32 {v(U+i,2)}, {v(T+i,2)}, {v(vC,2)}, {v(vC+2,2)}')
        for i in range(0,8,2): L.append(f'v_pk_fma_f32 {v(U+i,2)}, {v(U+i,2)}, {v(T+i,2)}, {v(vC+2,2)}')
        for i in range(8): L.append(f'v_rcp_f32 {v(U+i)}, {v(U+i)}')
        for i in range(0,8,2): L.append(f'v_pk_fma_f32 {v(U+i,2)}, {v(a+i,2)}, {v(U+i,2)}, {v(a+i,2)} neg_lo:[1,0,0] neg_hi:[1,0,0]')
        for i in range(0,8,2): L.append(f'v_cvt_pk_bf16_f32 {v(O+4*hh+i//2)}, {v(U+i)}, {v(U+i+1)}')
    return L

def f_role(NT):
    ex={6:[f'v_lshlrev_b32 v148, 16, v148', f'v_mul_f32 v148, s40, v148', 'ds_write_b32 v149, v148'],
        25:bias_reads(0), 26:bias_reads(1)}
    spread(s2_setup()+FSET, 7, 17, ex)
    gemm1(NT,1,{7:s2_dmas(R3(0,3)),8:s2_dmas(R3(3,6))},S1,extra=ex)
    stamp(2)
    T=168;U=176;O=184
    def tile(t):
        L=mish_tile(t,T,U,O)
        n=len(L)//2
        st=lambda hh: f'buffer_store_dwordx4 {v(O+4*hh,4)}, {v(vL16)}, {sWS}, {sA2 if t<2 else sA3} offen offset:{(2*(t&1)+hh)*1024} sc1'
        if 'noact' in OPT: st=lambda hh: 's_nop 0'
        return L[:n]+[st(0)]+L[n:n+6]+(bias_reads(t+2) if t+2<NT else [])+L[n+6:]+[st(1)]
    if NT==4:
        wait_ks(R3(0,3)); emit_list(s2_reads(R3(0,3)))
        L=tile(0); emit_list(interleave(L[:30], s2_dmas(R3(6,9)))); k.waitcnt(lg=0)
        emit_list(interleave(L[30:], s2_dmas(R3(9,12))))
        wait_ks(R3(3,6)); emit_list(s2_reads(R3(3,6)))
        L=tile(1); emit_list(L[:20]); k.waitcnt(lg=0)
        emit_list(interleave(L[20:], s2_dmas(R3(12,15))))
        for t in range(2,4): emit_list(tile(t))
    else:
        emit_list(s2_dmas(R3(6,9)))
        wait_ks(R3(0,3)); emit_list(s2_reads(R3(0,3))); k.waitcnt(lg=0); emit_list(s2_dmas(R3(9,12)))
        wait_ks(R3(3,6)); emit_list(s2_reads(R3(3,6))); k.waitcnt(lg=0); emit_list(s2_dmas(R3(12,15)))
        for t in range(3): emit_list(tile(t))
    stamp(9)
    wait_ks(R3(6,9)); emit_list(s2_reads(R3(6,9)))
    k.force_wait(vm=0)
    flag_store(sA0)
    k.waitcnt(lg=0)
    stamp(3)

f_role(4)

k.label('L_S2'); k.reset_state(); k.nop(2)
k.c('stage 2: k-steps 0-8 in regs, 9-17 in flight to LDS')
k.I(f'''s_lshr_b32 {sT1}, {sT64}, 1
s_lshl_b32 {sA1}, {sT1}, 3
s_add_u32 {sA1}, {sA1}, {sWave}
s_lshl_b32 {sA1}, {sA1}, 7
s_and_b32 {sT2}, {sT64}, 1
s_lshl_b32 {sT2}, {sT2}, 3
s_add_u32 {sA1}, {sA1}, {sT2}
s_add_u32 {sA1}, {sA1}, {WS_FA}
v_and_b32 v1, 1, v0
v_lshlrev_b32 v1, 2, v1
s_mul_i32 {sA0}, {sT64}, 224
s_mul_i32 {sT2}, {sWave}, 14
s_add_u32 {sA0}, {sA0}, {sT2}
s_lshl_b32 {sA0}, {sA0}, 10
s_add_u32 {sA0}, {sA0}, {WS_ACT}
s_lshl_b32 {sA3}, {sT64}, 9
s_add_u32 {sA3}, {sA3}, {WS_G}
s_lshl_b32 {sT2}, {sWave}, 1
s_lshl_b32 {sH0}, {sT64}, 5
s_add_u32 {sH0}, {sH0}, {sT2}
s_lshl_b32 {sH0}, {sH0}, 11
s_add_u32 {sH0}, {sH0}, {WS_O}
s_add_u32 {sB0}, {sH0}, 32768''')
AD=ACC+48; OAD=20
for i in range(6): k.I(f'v_mov_b32 {v(AD+i)}, {v(vS2+i)}')
k.I(f'''v_lshrrev_b32 v2, 5, v0
v_mul_u32_u24 v2, 7, v2
v_bfe_u32 v3, v0, 2, 2
v_add_u32 v2, v2, v3
v_bfe_u32 v3, v2, 1, 1
v_lshlrev_b32 v2, 7, v2
v_lshl_add_u32 v2, v3, 6, v2
v_bfe_u32 v3, v0, 4, 1
v_lshl_add_u32 v2, v3, 5, v2
v_and_b32 v3, 3, v0
v_lshl_add_u32 v2, v3, 3, v2
v_xor_b32 v3, 64, v2
v_add_u32 {v(OAD+0)}, {sL4}, v2
v_add_u32 {v(OAD+1)}, {sL4}, v3
v_add_u32 {v(OAD+2)}, {sL2k}, v2
v_add_u32 {v(OAD+3)}, {sL2k}, v3''')
poll([f'buffer_load_dword v2, v1, {sWS}, {sA1} offen sc1'],[(2,sTag,0)],'fa')
stamp(6)
bufs=[168,172,176,180,184,188,8,12,16,144,148,152,156,160]
free=list(bufs); where={}
def act_load(ks):
    b0=free.pop(0); b1=free.pop(0); where[(ks,0)]=b0; where[(ks,1)]=b1
    return kidx(ks,sT0,sT1)+f'''
s_lshl_b32 {sT0}, {sT0}, 10
s_add_u32 {sT0}, {sT0}, {sA0}
s_add_u32 {sT1}, {sT0}, {112*1024}
buffer_load_dwordx4 {v(b0,4)}, {v(vL16)}, {sWS}, {sT0} offen sc1
buffer_load_dwordx4 {v(b1,4)}, {v(vL16)}, {sWS}, {sT1} offen sc1'''
fl1=f'buffer_load_dword v2, v1, {sWS}, {sA1} offen offset:16 sc1'
nl=0; ok1=False
CHK1=int(OPT.get('chk1','2'))
def fill(cur):
    global nl, ok1
    while len(free)>=2 and nl<14:
        if nl>=8 and not ok1:
            if cur<CHK1: return
            check_or_poll([fl1],[(2,sTag,0)],'fa1'); ok1=True
        t_=act_load(nl); nl+=1
        if 'noactld' not in OPT: k.I(t_)
fill(-1)
k.I(fl1)
emit_list(s2_dmas(R3(15,18)))
emit_list(s2_reads(R3(9,15),AD,OAD))
k.waitcnt(lg=0)
def acc2(tt,ct): return ACC+32*tt+16*ct
ob={}; oloads=[]; ochecks=[]
OKS=int(OPT.get('oks','10'))
for ks in range(14):
    for tt in range(2):
        for ct in range(2):
            d=v(acc2(tt,ct),16)
            k.I(f'v_mfma_f32_32x32x16_bf16 {d}, {v(wreg(ks,ct),4)}, {v(where[(ks,tt)],4)}, {"0" if ks==0 else d}')
    if ks>=1:
        free += [b for b in [where[(ks-1,0)],where[(ks-1,1)],wreg(ks-1,0),wreg(ks-1,1)] if not 144<=b<168]
    if ks==8:
        wait_ks(R3(15,18)); emit_list(s2_reads(R3(15,18),AD,OAD))
    fill(ks)
    if ks==OKS:
        assert nl==14
        k.I('v_and_b32 v1, 31, v0\nv_lshlrev_b32 v1, 3, v1')
        oloads=[f'buffer_load_dwordx2 v[2:3], v1, {sWS}, {sA3} offen sc1', f'buffer_load_dwordx2 v[4:5], v1, {sWS}, {sA3} offen offset:256 sc1']
        ochecks=[(3,sTag,0),(5,sTag,0)]
        for q in range(4):
            for tt in range(2):
                b=free.pop(0); ob[(q,tt)]=b
                oloads.append(f'buffer_load_dwordx4 {v(b,4)}, {v(vL16)}, {sWS}, {sH0 if tt==0 else sB0} offen offset:{q*1024} sc1')
                ochecks.append((b+3,sT16,1))
        emit_list(oloads[:2] if 'spec' not in OPT else oloads)
stamp(10)
a0=free.pop(0); a1=free.pop(0); a2=free.pop(0); a3=free.pop(0); a4=free.pop(0)
k.I(f'''v_and_b32 {v(a2)}, 31, v0
v_lshrrev_b32 {v(a2+1)}, 5, v0
v_and_b32 {v(a2+2)}, 7, v0
v_xor_b32 {v(a2+1)}, {v(a2+1)}, {v(a2+2)}
v_lshlrev_b32 {v(a2+1)}, 4, {v(a2+1)}
v_lshl_or_b32 {v(a2+2)}, {v(a2)}, 7, {v(a2+1)}
v_add_u32 {v(a0)}, {sL4}, {v(a2+2)}
v_xor_b32 {v(a0+1)}, 32, {v(a0)}
v_xor_b32 {v(a0+2)}, 64, {v(a0)}
v_xor_b32 {v(a0+3)}, 96, {v(a0)}
v_lshrrev_b32 {v(a2)}, 4, {v(a2)}
v_mul_u32_u24 {v(a2)}, {16384-2048}, {v(a2)}
v_add3_u32 {v(a1)}, {v(a2)}, {v(a2+2)}, {sL2k}
v_xor_b32 {v(a1+1)}, 32, {v(a1)}
v_xor_b32 {v(a1+2)}, 64, {v(a1)}
v_xor_b32 {v(a1+3)}, 96, {v(a1)}''')
for q in range(4): k.I(f'v_add_u32 {v(a2+q)}, 0x10000, {v(a0+q)}')
u1,u2,u3=a4,a4+1,a4+2
k.I(f'''v_lshrrev_b32 {v(u1)}, 3, v0
v_and_b32 {v(u2)}, 3, v0
v_lshlrev_b32 {v(u2)}, 1, {v(u2)}
v_xor_b32 {v(u2)}, {v(u2)}, {v(u1)}
v_lshlrev_b32 {v(u2)}, 4, {v(u2)}
v_lshl_or_b32 {v(u2)}, {v(u1)}, 7, {v(u2)}
v_bfe_u32 {v(u3)}, v0, 2, 1
s_and_b32 {sT0}, {sWave}, 3
s_lshl_b32 {sT0}, {sT0}, 10
s_lshr_b32 {sT1}, {sWave}, 2
s_lshl_b32 {sT1}, {sT1}, 16
s_add_u32 {sT0}, {sT0}, {sT1}
v_lshl_add_u32 {v(a3)}, {v(u3)}, 15, {sT0}
v_add_u32 {v(a3)}, {v(a3)}, {v(u2)}
s_and_b32 {sT0}, {sWave}, 1
s_lshl_b32 {sT0}, {sT0}, 10
s_and_b32 {sT1}, {sWave}, 2
s_lshl_b32 {sT1}, {sT1}, 13
s_add_u32 {sT0}, {sT0}, {sT1}
s_add_u32 {sT0}, {sT0}, {XR}
v_add_u32 {v(u2)}, {sT0}, {v(u2)}
s_lshr_b32 {sT1}, {sWave}, 2
v_and_b32 {v(u3)}, {sT1}, {v(u3)}
v_cmp_eq_u32 vcc, 1, {v(u3)}
v_mov_b32 {v(a3+2)}, 4096
v_mov_b32 {v(a3+3)}, 2048
v_cndmask_b32 {v(a3)}, {v(a3)}, {v(u2)}, vcc
v_cndmask_b32 {v(a3+2)}, {v(a3+2)}, {v(a3+3)}, vcc
v_xor_b32 {v(a3+1)}, 16, {v(a3)}
v_and_b32 {v(u2)}, 7, v0
v_mul_u32_u24 {v(u1)}, 896, {v(u1)}
v_lshl_add_u32 {v(u1)}, {v(u2)}, 4, {v(u1)}
s_lshl_b32 {sA0}, {sT64}, 3
s_add_u32 {sA0}, {sA0}, {sWave}
s_mul_i32 {sA0}, {sA0}, {8*896}
s_lshl_b32 {sT1}, {sCT}, 7
s_add_u32 {sA0}, {sA0}, {sT1}''')
check_or_poll(oloads[:2],ochecks[:2],'fg')
for tt in range(2):
    for i in range(0,32,2):
        k.I(f'v_pk_mul_f32 {v(ACC+32*tt+i,2)}, {v(ACC+32*tt+i,2)}, {v(2+2*tt,2)} op_sel_hi:[1,0]')
k.I(f'''s_lshr_b32 {sT1}, {sT64}, 1
s_lshl_b32 {sT1}, {sT1}, 4
s_lshl_b32 {sT2}, {sWave}, 1
s_add_u32 {sT1}, {sT1}, {sT2}
s_lshl_b32 {sA2}, {sT1}, 7
s_add_u32 {sA2}, {sA2}, {WS_FO}
v_and_b32 v1, 1, v0
v_lshlrev_b32 v1, 7, v1''')
if 'spec' not in OPT:
    poll([f'buffer_load_dword v2, v1, {sWS}, {sA2} offen sc1'],[(2,sTag,0)],'foh'); poll(oloads[2:],ochecks[2:],'fo')
else: check_or_poll(oloads[2:],ochecks[2:],'fo', None if 'nohint' in OPT else ([f'buffer_load_dword v2, v1, {sWS}, {sA2} offen sc1'],[(2,sTag,0)]))
stamp(11)
for b in ob.values(): k.I(f'v_and_b32 {v(b+3)}, 0xffff, {v(b+3)}')
def wr(tt,ct):
    t=2*tt+ct
    for q in range(4):
        a,off = [(a0,0),(a0,32768),(a2,0),(a1,0)][t]
        k.I(f'ds_write_b128 {v(a+q)}, {v(acc2(tt,ct)+4*q,4)} offset:{off}')
tl=[(0,0),(0,1),(1,0),(1,1)]
for i,(tt,ct) in enumerate(tl):
    for q in range(4):
        d=v(acc2(tt,ct),16)
        k.I(f'v_mfma_f32_32x32x16_bf16 {d}, {v(wreg(14+q,ct),4)}, {v(ob[(q,tt)],4)}, {d}')
    if i>=1: wr(*tl[i-1])
stamp(12)
wr(1,1)
k.waitcnt(lg=0); stamp(13); k.I('s_barrier')
RB=ACC
for s in range(8):
    for c in range(2):
        k.I(f'ds_read_b128 {v(RB+8*s+4*c,4)}, {v(a3+c)}')
    if s<7: k.I(f'v_add_u32 {v(a3)}, {v(a3)}, {v(a3+2)}\nv_add_u32 {v(a3+1)}, {v(a3+1)}, {v(a3+2)}')
for s in range(1,8):
    for i in range(0,8,2): k.I(f'v_pk_add_f32 {v(RB+i,2)}, {v(RB+i,2)}, {v(RB+8*s+i,2)}')
for i in range(4): k.I(f'v_cvt_pk_bf16_f32 {v(a0+i)}, {v(RB+2*i)}, {v(RB+2*i+1)}')
k.I(f'buffer_store_dwordx4 {v(a0,4)}, {v(u1)}, {sOUT}, {sA0} offen {OPT.get("outfl","").replace("+"," ")}')
stamp(15)
dump_stamps()
k.I('s_endpgm')

k.label('L_F3'); k.set_state(st_f3)
f_role(3)
k.I('s_branch L_S2')

RV=[0,1,2,3,4,5,6,8,9,10,11,12,13,14]
def wphi_lane(dst, base_sgpr):
    k.I(f'''v_and_b32 v30, 3, v0
    v_bfe_u32 v31, v0, 3, 2
    v_lshl_add_u32 v30, v31, 2, v30
    v_lshrrev_b32 v31, 3, v30
    v_sub_u32 v30, v30, v31
    v_bfe_u32 v31, v0, 2, 1
    v_mul_u32_u24 v31, 14, v31
    v_add_u32 v30, v30, v31
    v_min_u32 v30, 27, v30
    v_lshlrev_b32 v30, 1, v30
    v_mul_u32_u24 v31, 224, v3
    v_add3_u32 {v(dst)}, v30, v31, {base_sgpr}''')
def wphi_reads(dst16, addr, off):
    return [f'ds_read_u16 {v(dst16+8*s+j)}, {v(addr)} offset:{off+(16*s+(j&3)+8*(j>>2))*56}' for s in range(2) for j in range(8)]
def wphi_pack(src16,dst8):
    L=[f'v_lshl_or_b32 {v(dst8+i)}, {v(src16+2*i+1)}, 16, {v(src16+2*i)}' for i in range(8)]
    L+=[f'v_cndmask_b32 {v(dst8+i)}, {v(dst8+i)}, 0, {sHi}' for i in (6,7)]
    return L
def feat(a, wp, PK, Pp):
    L=[f'v_cvt_pk_bf16_f32 {v(PK+i)}, {v(a+2*i)}, {v(a+2*i+1)}' for i in range(8)]
    L.append(f'v_mfma_f32_32x32x16_bf16 {v(Pp,16)}, {v(wp,4)}, {v(PK,4)}, 0')
    L.append(f'v_mfma_f32_32x32x16_bf16 {v(Pp,16)}, {v(wp+4,4)}, {v(PK+4,4)}, {v(Pp,16)}')
    return L
def feat2(Pp, E, S, norm, O):
    L=[]; A=L.append
    A(f'v_max_f32 {v(S)}, {v(Pp+RV[0])}, {v(Pp+RV[1])}')
    A(f'v_max_f32 {v(S+1)}, -{v(Pp+RV[0])}, -{v(Pp+RV[1])}')
    for i in range(2,14,2):
        A(f'v_max3_f32 {v(S)}, {v(S)}, {v(Pp+RV[i])}, {v(Pp+RV[i+1])}')
        A(f'v_max3_f32 {v(S+1)}, {v(S+1)}, -{v(Pp+RV[i])}, -{v(Pp+RV[i+1])}')
    A(f'v_permlane32_swap_b32 {v(S)}, {v(S+1)}')
    A(f'v_max_f32 {v(S)}, {v(S)}, {v(S+1)}')
    A(f'v_mul_f32 {v(S)}, s43, {v(S)}')
    A(f'v_mov_b32 {v(S+1)}, {v(S)}')
    A(f'v_permlane32_swap_b32 {v(S)}, {v(S+1)}')
    for i,r in enumerate(RV):
        h=r&1
        A(f'v_pk_fma_f32 {v(E+2*i,2)}, {v(Pp+r-h,2)}, {sLn}, {v(S,2)} op_sel:[{h},0,0] op_sel_hi:[{h},1,1]')
    for r in range(28): A(f'v_exp_f32 {v(E+r)}, {v(E+r)}')
    if norm:
        A(f'v_pk_add_f32 {v(S,2)}, {v(E,2)}, {v(E+2,2)}')
        A(f'v_pk_add_f32 {v(S+2,2)}, {v(E+4,2)}, {v(E+6,2)}')
        for r in range(4,14):
            s=S+2*(r&1)
            A(f'v_pk_add_f32 {v(s,2)}, {v(s,2)}, {v(E+2*r,2)}')
        A(f'v_pk_add_f32 {v(S,2)}, {v(S,2)}, {v(S+2,2)}')
        A(f'v_permlane32_swap_b32 {v(S)}, {v(S+1)}')
        A(f'v_add_f32 {v(S)}, {v(S)}, {v(S+1)}')
        A(f'v_rcp_f32 {v(S)}, {v(S)}')
        A(f'v_mov_b32 {v(S+1)}, {v(S)}')
        A(f'v_permlane32_swap_b32 {v(S)}, {v(S+1)}')
        for r in range(14): A(f'v_pk_mul_f32 {v(E+2*r,2)}, {v(E+2*r,2)}, {v(S,2)}')
    for sg in range(2):
        for s in range(2):
            for j in range(4):
                i=7*s+2*j
                A(f'v_cvt_pk_bf16_f32 {v(O+8*sg+4*s+j)}, {v(E+2*i+sg)}, {v(E+2*i+2+sg) if j<3 else "0"}')
    return L

k.label('L_KV'); k.set_state(st_kv)
k.c('KV role')
srd(sM,2,16*1568)
k.I(f'''s_sub_u32 {sRole}, {sRole}, 8
s_lshl_b32 {sT0}, {sRole}, 2
s_lshr_b32 {sH0}, 0xDA8630, {sT0}
s_and_b32 {sH0}, {sH0}, 15
s_lshl_b32 {sT2}, {sRole}, 7
s_mul_i32 {sA1}, {sH0}, 56
s_sub_u32 {sA1}, {sA1}, {sT2}
s_mul_i32 {sA2}, {sH0}, 1568
s_add_u32 {sA2}, {sA2}, {sLW}''')
k.I(f's_lshr_b32 {sT1}, {sWave}, 2\ns_mul_i32 {sT2}, {sT1}, 3136\ns_add_u32 {sT2}, {sT2}, {MISC}')
wphi_lane(148, sT2)
k.I(f'v_min_u32 v29, 6, v29')
for t,(o0,o1) in enumerate([(0,112),(56,312),(256,368)]):
    k.I(f's_mul_i32 {sT2}, {sT1}, {o1-o0}\ns_add_u32 {sT2}, {sT2}, {sA1}\ns_add_u32 {sT2}, {sT2}, {o0}\nv_lshl_add_u32 v26, v29, 3, {sT2}')
    a_addr(t,26)
tags()
PHI=[0,16384,98304]; VV=[131072,131072+64,147456]
WA=240; RA=20
t0,t1,t2,t3='s84','s85','s86','s87'
KSET=f'''v_and_b32 v1, 5, v0
v_and_b32 v2, 2, v0
v_lshl_or_b32 v1, v2, 2, v1
v_bfe_u32 v2, v0, 3, 1
v_lshl_or_b32 v1, v2, 1, v1
v_lshrrev_b32 v2, 5, v0
v_xor_b32 v1, v1, v2
v_and_b32 v2, 31, v0
v_lshlrev_b32 v2, 7, v2
v_lshl_or_b32 v1, v1, 3, v2
s_and_b32 {t0}, {sWave}, 3
s_lshl_b32 {t0}, {t0}, 12
v_add_u32 {v(WA)}, {t0}, v1'''.split('\n')
KSET+=[f'v_xor_b32 {v(WA+c)}, {16*c}, {v(WA)}' for c in range(1,8)]
KSET+=[f'v_add_u32 {v(WA+8+c)}, {XR}, {v(WA+c)}' for c in range(8)]
KSET+=f'''v_bfe_u32 v1, v0, 2, 2
v_lshrrev_b32 v2, 5, v0
v_lshl_add_u32 v3, v2, 3, v1
v_lshlrev_b32 v3, 7, v3
v_and_b32 v20, 1, v1
v_lshl_or_b32 v20, v2, 1, v20
v_lshrrev_b32 v1, 1, v1
v_lshl_or_b32 v20, v1, 3, v20
v_bfe_u32 v1, v0, 4, 1
v_and_b32 v2, 3, v0
v_lshl_add_u32 v1, v1, 2, v2
v_xor_b32 v20, v20, v1
v_lshl_add_u32 v20, v20, 3, v3
s_lshr_b32 {t0}, {sWave}, 1
s_and_b32 {t1}, {sWave}, 1
s_lshl_b32 {t1}, {t1}, 6
s_and_b32 {t2}, {t0}, 1
s_lshl_b32 {sA0}, {t2}, 6
s_lshl_b32 {t2}, {t2}, 14
s_lshr_b32 {t3}, {t0}, 1
s_mul_i32 {sA1}, {t3}, 98304
s_add_u32 {t2}, {t2}, {sA1}
s_lshl_b32 {t3}, {t3}, 14
s_add_u32 {t3}, {t3}, 131072
v_xor_b32 v22, {sA0}, v20
v_xor_b32 v20, {t1}, v20
v_xor_b32 v21, 32, v20
v_xor_b32 v23, 32, v22
v_add_u32 v20, {t2}, v20
v_add_u32 v21, {t2}, v21
v_add_u32 v22, {t3}, v22
v_add_u32 v23, {t3}, v23
s_add_u32 {sA0}, {sH0}, {t0}
s_lshl_b32 {sA0}, {sA0}, 1
s_and_b32 {t1}, {sWave}, 1
s_add_u32 {sA0}, {sA0}, {t1}
s_lshl_b32 {sA0}, {sA0}, 6
s_add_u32 {sA0}, {sA0}, {sTB}
s_lshl_b32 {sA0}, {sA0}, 9
s_add_u32 {sA0}, {sA0}, {WS_P1}
s_add_u32 {sA1}, {sA0}, 16384
v_lshrrev_b32 v1, 5, v0
v_and_b32 v2, 31, v0
v_lshlrev_b32 v2, 4, v2
v_lshl_or_b32 v143, v1, 13, v2'''.split('\n')
WP=120
PK=64;Pp=72;E=88;S=116;O=160;PK2=24;Pp2=176
r0=wphi_reads(64,148,0); r1=wphi_reads(80,148,1568)
ex={12:r0[:8],13:r0[8:],16:r1[:8],17:r1[8:], 20:wphi_pack(64,WP), 21:wphi_pack(80,WP+8)}
spread(s2_setup(), 4, 11, ex); spread(KSET, 18, 27, ex)
gemm1(3,1,{7:s2_dmas(R3(0,3)),8:s2_dmas([3,4])},S1+[dma(vL16, sM, sA2, sLW, MISC, 's1')],extra=ex)
stamp(2)
def wr_tile(src, base, n):
    hi = 4 if (base&64) else 0; b=base&~64
    if b>=XR: hi+=8; b-=XR
    return [f'ds_write_b64 {v(WA+hi+q)}, {v(src+2*q,2)} offset:{b}' for q in range(n)]
def v_tile(t, arr, tmp):
    a=ACC+16*t
    L=[f'v_cndmask_b32 {v(a+12)}, {v(a+12)}, 1.0, {sHi}']
    L+=[f'v_cvt_pk_bf16_f32 {v(tmp+i)}, {v(a+2*i)}, {v(a+2*i+1)}' for i in range(8)]
    return L+wr_tile(tmp, arr, 4)
emit_list(feat(ACC, WP, PK, Pp))
k.I(f's_cmp_ge_u32 {sWave}, 4\ns_cbranch_scc1 L_KV1')
st=k.state()
emit_list(feat(ACC+16, WP+8, PK2, Pp2))
emit_list(v_tile(2,VV[0],152))
emit_list(feat2(Pp,E,S,True,O)+wr_tile(O,PHI[0],8))
L=feat2(Pp2,E,S,True,O)
emit_list(L[:24]); k.waitcnt(lg=0)
emit_list(L[24:]+wr_tile(O,PHI[1],8))
k.force_wait(lg=0)
k.label('L_KV2'); k.nop(2)
k.I('s_barrier')
stamp(3)
k.I(f's_cmp_ge_u32 {sWave}, 6\ns_cbranch_scc1 L_KV3')
KA=64; KB=96; KD=176
for ks in range(8):
    for i in range(2):
        k.I(f'ds_read_b64_tr_b16 {v(KA+4*ks+2*i,2)}, {v(RA+i)} offset:{2048*ks+512*i}')
        k.I(f'ds_read_b64_tr_b16 {v(KB+4*ks+2*i,2)}, {v(RA+2+i)} offset:{2048*ks+512*i}')
    if ks>=2: k.I(f'v_mfma_f32_32x32x16_bf16 {v(KD,16)}, {v(KA+4*(ks-2),4)}, {v(KB+4*(ks-2),4)}, {"0" if ks==2 else v(KD,16)}')
for ks in (6,7): k.I(f'v_mfma_f32_32x32x16_bf16 {v(KD,16)}, {v(KA+4*ks,4)}, {v(KB+4*ks,4)}, {v(KD,16)}')
for s in range(2):
    for j in range(4): k.I(f'v_cvt_pk_bf16_f32 {v(O+4*s+j)}, {v(KD+8*s+2*j)}, {v(KD+8*s+2*j+1) if j<3 else "0"}')
    k.I(f'v_or_b32 {v(O+4*s+3)}, {sTagH}, {v(O+4*s+3)}')
    k.I(f'buffer_store_dwordx4 {v(O+4*s,4)}, v143, {sWS}, {sA0 if s==0 else sA1} offen sc1')
k.label('L_KV3'); k.nop(4)
k.I('s_barrier')
stamp(4)
k.vm=[(set(),'k4')]
emit_list(s2_dmas([5,6,7,8]))
wait_ks([4]); emit_list(s2_reads(R3(0,5))); k.waitcnt(lg=0); emit_list(s2_dmas([9,10,11,12,13]))
wait_ks([5,6,7,8]); emit_list(s2_reads([5,6,7,8])); k.waitcnt(lg=0); emit_list(s2_dmas([14]))
stamp(9)
k.I('s_branch L_S2')
k.label('L_KV1'); k.set_state(st)
emit_list(v_tile(1,VV[1],152)+v_tile(2,VV[2],24))
emit_list(feat2(Pp,E,S,True,O)+wr_tile(O,PHI[2],8))
k.force_wait(lg=0)
k.I('s_branch L_KV2')

k.label('L_Q'); k.set_state(st_q)
k.c('Q role')
srd(sM,2,16*1568)
k.I(f'''s_sub_u32 {sRole}, {sRole}, 14
s_lshl_b32 {sH0}, {sRole}, 3
s_add_u32 {sH0}, {sH0}, {sWave}
s_mul_i32 {sA1}, {sH0}, 56
s_sub_u32 {sA1}, {sA1}, {sB0}
s_lshl_b32 {sA0}, {sA0}, 6
s_mul_i32 {sA2}, {sH0}, 1568
s_lshl_b32 {sA3}, {sWave}, 11
s_add_u32 {sT2}, {sA3}, {MISC}''')
wphi_lane(148, sT2)
k.I(f'''v_lshl_add_u32 v26, v29, 3, {sA1}
v_mov_b32 v1, {sA0}
v_cmp_eq_u32 vcc, 7, v29
v_cndmask_b32 v26, v26, v1, vcc''')
a_addr(0,26)
k.I(f'''v_and_b32 v2, 3, v0
v_lshlrev_b32 v2, 6, v2
v_xor_b32 v2, v2, v1
v_lshl_add_u32 v9, v0, 9, v2
s_mul_i32 {sT1}, {sWave}, 43
s_lshr_b32 {sT1}, {sT1}, 7
s_mul_i32 {sT1}, {sT1}, 3
s_sub_u32 {sT1}, {sWave}, {sT1}
s_lshl_b32 {sT1}, {sT1}, 15
v_add_u32 v9, {sT1}, v9''')
tags()
def gate(s):
    lab=newlab('g')
    if s==0: k.I('v_mov_b32 v34, v32\nv_mov_b32 v35, 0')
    k.I(f's_cmp_lg_u32 {sWave}, {s}\ns_cbranch_scc1 {lab}')
    k.I('ds_write_b64 v9, v[34:35]')
    k.label(lab)
WP=128; EQ=24
r0=wphi_reads(48,148,0)
QSET=f'''v_and_b32 v1, 3, v0
v_bfe_u32 v2, v0, 3, 1
v_lshl_add_u32 v1, v2, 2, v1
s_and_b32 s84, {sTB}, 1
s_lshl_b32 s85, s84, 1
v_bfe_u32 v3, v0, 2, 1
v_add_u32 v3, s85, v3
v_mul_u32_u24 v3, 7, v3
v_add_u32 v3, v3, v1
v_mov_b32 v2, 28
v_cmp_eq_u32 vcc, 7, v1
v_cndmask_b32 v3, v3, v2, vcc
v_lshrrev_b32 v2, 4, v0
v_lshlrev_b32 v2, 9, v2
v_lshl_add_u32 v20, v3, 4, v2
s_mul_i32 s84, s84, 7
s_sub_u32 s84, 14, s84
v_cmp_eq_u32 s[86:87], s84, v1
v_mov_b32 v21, 0x3f803f80
v_mov_b32 v22, 0x3f80'''.split('\n')
ex={12:r0[:8],13:r0[8:],16:wphi_pack(48,WP),18:QSET}
gemm1(1,4,{},S1+[dma(vL16, sM, sA2, sA3, MISC, 's1'), dma(vL16, sM, (sA2,1024), sA3, MISC+1024, 's1')],masked=True,pre_barrier=gate,extra=ex)
stamp(2)
PK=88;E=136;S=164;GG=168
PP=[96,112]
emit_list(feat(ACC, WP, PK, PP[0]))
for t in range(4): k.I(f'v_mul_f32 {v(GG+t)}, s43, {v(ACC+16*t+12)}')
for t in range(4): k.I(f'v_exp_f32 {v(GG+t)}, {v(GG+t)}')
for t in range(4): k.I(f'v_add_f32 {v(GG+t)}, 1.0, {v(GG+t)}')
for t in range(4): k.I(f'v_rcp_f32 {v(GG+t)}, {v(GG+t)}')
for t in range(4): k.I(f'v_mov_b32 {v(172+t)}, {v(GG+t)}')
for t in range(4): k.I(f'v_permlane32_swap_b32 {v(172+t)}, {v(GG+t)}')
k.I(f's_cmp_lg_u32 {sH0}, 0\ns_cbranch_scc1 L_Q1')
st=k.state()
k.I(f'''v_cndmask_b32 v2, {v(GG)}, {v(GG+1)}, {sHi}
v_cndmask_b32 v10, {v(GG+2)}, {v(GG+3)}, {sHi}
s_mov_b32 {sT0}, {f2u(LN2)}
v_sub_f32 v2, 1.0, v2
v_sub_f32 v10, 1.0, v10
v_mul_f32 v2, {sT0}, v2
v_mul_f32 v10, {sT0}, v10
v_mov_b32 v3, {sTag}
v_mov_b32 v11, {sTag}
v_lshlrev_b32 v1, 3, v0
s_lshl_b32 {sA0}, {sTB}, 10
s_add_u32 {sA0}, {sA0}, {WS_G}
buffer_store_dwordx2 v[2:3], v1, {sWS}, {sA0} offen sc1
buffer_store_dwordx2 v[10:11], v1, {sWS}, {sA0} offen offset:512 sc1''')
k.label('L_Q1'); k.set_state(st)
for t in range(4):
    if t<3: emit_list(feat(ACC+16*t+16, WP, PK, PP[(t+1)&1]))
    emit_list(feat2(PP[t&1], E, S, False, EQ+16*t))
stamp(3)
k.I(f'''s_lshl_b32 {sA2}, {sH0}, 12
s_add_u32 {sA2}, {sA2}, {WS_P2}
s_cmp_ge_u32 {sWave}, 4
s_cbranch_scc1 L_Q2''')
st=k.state()
k.I(f'''s_lshl_b32 {sA1}, {sTB}, 8
s_add_u32 {sA1}, {sA1}, {sA2}
s_add_u32 {sA3}, {sA1}, 16384
s_lshl_b32 {sA0}, {sH0}, 3
s_lshr_b32 {sT0}, {sTB}, 1
s_add_u32 {sA0}, {sA0}, {sT0}
s_lshl_b32 {sA0}, {sA0}, 13
s_add_u32 {sA0}, {sA0}, {WS_P1}
s_add_u32 {sT1}, {sA0}, 4096
s_add_u32 {sT2}, {sA0}, {4*65536}
s_add_u32 {sT3}, {sT2}, 4096''')
R0=96
poll([f'buffer_load_dwordx4 {v(R0+4*i,4)}, v20, {sWS}, {[sA0,sT1,sT2,sT3][i>>1]} offen offset:{(i&1)*2048} sc1' for i in range(8)],
     [(R0+4*i+3,sT16,1) for i in range(8)],'p1')
stamp(6)
def red(R0,U0,o):
    L=[];A=L.append
    for i in range(4):
        for j in range(4):
            A(f'v_lshlrev_b32 {v(U0+8*i+2*j)}, 16, {v(R0+4*i+j)}')
            A(f'v_and_b32 {v(U0+8*i+2*j+1)}, 0xffff0000, {v(R0+4*i+j)}')
    for j in range(0,8,2):
        A(f'v_pk_add_f32 {v(U0+j,2)}, {v(U0+j,2)}, {v(U0+8+j,2)}')
        A(f'v_pk_add_f32 {v(U0+16+j,2)}, {v(U0+16+j,2)}, {v(U0+24+j,2)}')
    for j in range(0,8,2): A(f'v_pk_add_f32 {v(U0+j,2)}, {v(U0+j,2)}, {v(U0+16+j,2)}')
    for j in range(4): A(f'v_permlane32_swap_b32 {v(U0+j)}, {v(U0+4+j)}')
    for j in range(0,4,2): A(f'v_pk_add_f32 {v(U0+j,2)}, {v(U0+j,2)}, {v(U0+4+j,2)}')
    for j in range(2): A(f'v_permlane16_swap_b32 {v(U0+j)}, {v(U0+2+j)}')
    A(f'v_pk_add_f32 {v(U0,2)}, {v(U0,2)}, {v(U0+2,2)}')
    L+=f'''v_cvt_pk_bf16_f32 {v(o)}, {v(U0)}, {v(U0+1)}
v_mov_b32 {v(o+1)}, {v(o)}
v_permlane16_swap_b32 {v(o)}, {v(o+1)}
v_mov_b32 {v(o+2)}, {v(o)}
v_mov_b32 {v(o+3)}, {v(o+1)}
v_permlane32_swap_b32 {v(o)}, {v(o+2)}
v_permlane32_swap_b32 {v(o+1)}, {v(o+3)}
v_and_b32 {v(o+3)}, 0xffff, {v(o+3)}
v_cndmask_b32 {v(o)}, {v(o)}, v21, s[86:87]
v_cndmask_b32 {v(o+1)}, {v(o+1)}, v21, s[86:87]
v_cndmask_b32 {v(o+2)}, {v(o+2)}, v21, s[86:87]
v_cndmask_b32 {v(o+3)}, {v(o+3)}, v22, s[86:87]
v_or_b32 {v(o+3)}, {sTagH}, {v(o+3)}'''.split('\n')
    return L
for a,b in zip(red(R0,ACC,8),red(R0+16,ACC+32,12)): k.I(a); k.I(b)
k.I(f'''s_mov_b64 exec, 0xffff
buffer_store_dwordx4 v[8:11], {v(vL16)}, {sWS}, {sA1} offen sc1
buffer_store_dwordx4 v[12:15], {v(vL16)}, {sWS}, {sA3} offen sc1
s_mov_b64 exec, -1''')
k.label('L_Q2'); k.nop(2)
stamp(7)
KV=136
k.I(f'''s_lshl_b32 {sA0}, {sTB}, 6
s_add_u32 {sA0}, {sA0}, {sH0}
s_lshl_b32 {sA0}, {sA0}, 11
s_add_u32 {sA0}, {sA0}, {WS_O}
s_mov_b32 {sT1}, {f2u(1e-6)}''')
poll([f'buffer_load_dwordx4 {v(KV+4*i,4)}, {v(vL16)}, {sWS}, {sA2} offen offset:{i*1024} sc1' for i in range(4)],
     [(KV+4*i+3,sT16,1) for i in range(4)],'p2')
stamp(4)
def nacc(t,sg): return ACC+32*(t&1)+16*sg
def omf(t):
    for sg in range(2):
        for s in range(2):
            d=v(nacc(t,sg),16)
            k.I(f'v_mfma_f32_32x32x16_bf16 {d}, {v(KV+8*sg+4*s,4)}, {v(EQ+16*t+8*sg+4*s,4)}, {"0" if s==0 else d}')
omf(0); omf(1)
for t in range(4):
    p=nacc(t,0); n=nacc(t,1)
    k.I(f'''v_rcp_f32 v8, {v(p+15)}
    v_rcp_f32 v10, {v(n+15)}
    v_fma_f32 v12, {v(p+7)}, v8, {sT1}
    v_fma_f32 v12, {v(n+7)}, v10, v12
    v_rcp_f32 v12, v12
    v_mul_f32 v12, v12, {v(GG+t)}
    v_mul_f32 v8, v8, v12
    v_mul_f32 v10, v10, v12''')
    X=96
    for i in range(0,16,2): k.I(f'v_pk_mul_f32 {v(X+i,2)}, {v(p+i,2)}, v[8:9] op_sel_hi:[1,0]')
    for i in range(0,16,2): k.I(f'v_pk_fma_f32 {v(X+i,2)}, {v(n+i,2)}, v[10:11], {v(X+i,2)} op_sel_hi:[1,0,1]')
    if t<2: omf(t+2)
    o=112+8*(t&1)
    for s in range(2):
        for j in range(4): k.I(f'v_cvt_pk_bf16_f32 {v(o+4*s+j)}, {v(X+8*s+2*j)}, {v(X+8*s+2*j+1) if j<3 else "0"}')
        k.I(f'v_or_b32 {v(o+4*s+3)}, {sTagH}, {v(o+4*s+3)}')
        k.I(f'buffer_store_dwordx4 {v(o+4*s,4)}, {v(vL16)}, {sWS}, {sA0} offen offset:{1024*s} sc1')
    k.I(f's_add_u32 {sA0}, {sA0}, 32768')
k.I(f'''s_lshl_b32 {sA0}, {sTB}, 4
s_add_u32 {sA0}, {sA0}, {sH0}
s_lshl_b32 {sA0}, {sA0}, 7
s_add_u32 {sA0}, {sA0}, {WS_FO}''')
flag_store(sA0)
stamp(5)
k.I(f's_cmp_lg_u32 s2, 0\ns_cbranch_scc1 L_Qend\ns_cmp_lg_u32 {sWave}, 0\ns_cbranch_scc1 L_Qend')
k.I('v_lshlrev_b32 v1, 7, v0')
k.I(f's_mov_b32 {sA0}, {WS_FA}\ns_mov_b32 {sA1}, {WS_FA+8192}\ns_mov_b32 {sT0}, {WS_FO}\ns_mov_b32 {sT1}, {WS_FO+8192}\ns_mov_b32 {sT2}, {WS_FO+16384}\ns_mov_b32 {sT3}, {WS_FO+24576}')
poll([f'buffer_load_dword {v(8+i)}, v1, {sWS}, {s} offen sc1' for i,s in enumerate([sA0,sA1,sT0,sT1,sT2,sT3])],[(8+i,sTag,0) for i in range(6)],'ep')
k.I(f's_mov_b32 {sA0}, {WS_EPOCH}')
flag_store(sA0)
k.label('L_Qend'); k.nop(2)
stamp(15)
dump_stamps()
k.label('L_end')
k.I('s_endpgm')
k.label('L_codeend')
k.raw(f""".section .rodata,"a"
.p2align 6
.amdhsa_kernel {NAME}_kernel
  .amdhsa_next_free_vgpr 256
  .amdhsa_next_free_sgpr 102
  .amdhsa_accum_offset 256
  .amdhsa_group_segment_fixed_size 0
  .amdhsa_kernarg_size 96
  .amdhsa_user_sgpr_count 2
  .amdhsa_user_sgpr_kernarg_segment_ptr 1
  .amdhsa_system_sgpr_workgroup_id_x 1
.end_amdhsa_kernel""")
open(OUT,'w').write(k.text())
print('instructions', k.nins)
```

```python
import sys, struct
from emit import K, interleave
NAME = "gated_mix__linear_kernel_hedgehog__dense_activation_mish__prompt"
TS = '--ts' in sys.argv
CLK = 's_memtime' if '--cyc' in sys.argv else 's_memrealtime'
OPT = {a[2:].split('=')[0]:(a.split('=')[1] if '=' in a else '1') for a in sys.argv[1:] if a.startswith('--')}
OUT = [a for a in sys.argv[1:] if not a.startswith('--')][0]

def f2u(x): return struct.unpack('<I', struct.pack('<f', x))[0]
LOG2E = 1.4426950408889634; LN2 = 0.6931471805599453

WB=int(OPT.get('wb','0'),0)
WS_EPOCH=0; WS_FA=WB+0x20000; WS_FO=WB+0x24000; WS_G=WB+0x2C000; WS_P2=WB+0x30000; WS_P1=WB+0x100000; WS_O=WB+0x500000; WS_ACT=WB+0x800000; WS_TS=0xF000000
WR=0; XR=96*1024; MISC=144*1024; LDS_BYTES=160*1024
SPIN=200000

sRot='s3'; sR6='s6'; sR7='s7'
sX='s[8:11]'; sW='s[12:15]'; sWS='s[16:19]'; sW2='s[20:23]'; sWO='s[24:27]'; sOUT='s[28:31]'; sM='s[32:35]'; sG='s[36:39]'
sL2='s[40:41]'
sLn='s[42:43]'
sWave='s44'; sTB='s45'; sRole='s46'; sT64='s47'; sCT='s48'; sTag='s49'; sTagH='s50'
sLW='s51'
sT0='s52'; sT1='s53'; sT2='s54'; sT3='s55'
sMask='s[56:57]'; sHi='s[58:59]'
sW2b='s60'; sWOb='s61'; sL4='s62'; sL2k='s63'
sSpin='s88'; sH0='s89'; sA0='s90'; sA1='s91'
sTS=92
sI='s94'; sStr='s95'; sB0='s96'; sE='s97'; sA2='s98'; sA3='s99'
sRa='s4'; sRb='s5'
sFA='s81'; sAC='s82'; sGB='s83'; sOB='s78'; sFO='s79'
sT16='s80'
P = lambda i: 64+2*i

def v(a,n=1): return f'v{a}' if n==1 else f'v[{a}:{a+n-1}]'

k=K()
nlab=[0]
def newlab(p):
    nlab[0]+=1; return f'L_{p}_{nlab[0]}'

def srd(dst, ptr, size):
    d=int(dst[2:dst.index(':')])
    k.I(f's_mov_b32 s{d}, s{P(ptr)}\ns_mov_b32 s{d+1}, s{P(ptr)+1}\ns_mov_b32 s{d+2}, {size}\ns_mov_b32 s{d+3}, 0x20000')

NSTAMP=16
def tsreg(i): return sTS+i if i<2 else 64+i-2
def stamp(i):
    if 'gts' in OPT and i not in (1,2,15): return
    if 's2ts' in OPT and i not in (2,6,10,11,15): return
    gstamp(i)
def gstamp(i):
    if not TS: return
    k.I(CLK+' s[100:101]'); k.force_wait(lg=0); k.I(f's_mov_b32 s{tsreg(i)}, s100')
def stamp_init():
    if not TS: return
    for i in range(1,NSTAMP): k.I(f's_mov_b32 s{tsreg(i)}, 0')
def dump_stamps():
    if 'padto' in OPT:
        lab=newlab('pad'); k.label(lab)
        k.I('s_memrealtime s[100:101]'); k.force_wait(lg=0)
        k.I(f's_sub_u32 {sT0}, s100, s{sTS}\ns_cmp_lt_u32 {sT0}, {OPT["padto"]}\ns_cbranch_scc1 {lab}')
        return
    if not TS: return
    k.I('s_mov_b64 exec, 1')
    k.I(f's_lshl_b32 {sT0}, s2, 3\ns_add_u32 {sT0}, {sT0}, {sWave}\ns_lshl_b32 {sT0}, {sT0}, 7\ns_add_u32 {sT0}, {sT0}, {WS_TS}\nv_mov_b32 v1, 0\nv_mov_b32 v3, 0')
    for i in range(NSTAMP):
        k.I(f'v_mov_b32 v2, s{tsreg(i)}')
        k.I(f'buffer_store_dwordx2 v[2:3], v1, {sWS}, {sT0} offen offset:{8*i}')

vLane=0; vW=4; vX=5; vW2=6; vL16=7
vA=8; vB=16; vC=20
WREG=24
FB=152; FA=160; ACC=192
vPF=143
vS2=136

def dma(voff, srd_, soff, ldsbase, ldsconst, tag, masked=False, pre='', post=''):
    L=[]
    if pre: L.append(pre)
    L.append(f's_add_u32 m0, {ldsbase}, {ldsconst}')
    so=sT0
    if isinstance(soff,int): L.append(f's_mov_b32 {sT0}, {soff}')
    elif isinstance(soff,str): so=soff
    else: L.append(f's_add_u32 {sT0}, {soff[0]}, {soff[1]}')
    if masked: L.append(f's_mov_b64 exec, {sMask}')
    L.append(f'buffer_load_dwordx4 {v(voff)}, {srd_}, {so} offen lds')
    if masked: L.append('s_mov_b64 exec, -1')
    if post: L.append(post)
    return ('\n'.join(L), tag)

ROT0 = 'rot7' in OPT
def chunk_expr(s, dst, tmp):
    if ROT0: return f's_add_u32 {dst}, {sRot}, {s}\ns_sub_u32 {tmp}, {dst}, 7\ns_cmp_ge_u32 {dst}, 7\ns_cselect_b32 {dst}, {tmp}, {dst}'
    if s==0: return f's_mov_b32 {dst}, 0'
    return f's_add_u32 {dst}, {sRot}, {s}\ns_sub_u32 {tmp}, {dst}, 6\ns_cmp_ge_u32 {dst}, 7\ns_cselect_b32 {dst}, {tmp}, {dst}'
def s1_dmas(s, masked=False):
    slot=s%3; L=[]
    pre=chunk_expr(s,sR6,sR7)+f'\ns_mul_i32 {sR7}, {sR6}, {sStr}\ns_lshl_b32 {sR7}, {sR7}, 2\ns_lshl_b32 {sR6}, {sR6}, 7'
    for m in range(2): L.append(dma(vX, sX, (sR6,64*m*896) if m else sR6, sLW, XR+slot*16384+m*8192, f's{s}', pre=pre if m==0 else ''))
    for m in range(4): L.append(dma(vW, sW, sR7, sLW, WR+slot*32768+m*8192, f's{s}', masked, post=f's_add_u32 {sR7}, {sR7}, {sStr}' if m<3 else ''))
    return L

PSLOT=[1,2,0,1,2,0]
def ks_lds(ks):
    p,i=divmod(ks,3); s=PSLOT[p]
    if i<2: return ('W', WR+s*32768+i*2048)
    return ('X', s*16384)
def kidx(ks, dst, tmp):
    if 'norot2' in OPT: return f's_mov_b32 {dst}, {ks}'
    if ks<8: return f's_add_u32 {dst}, {sRa}, {ks}\ns_and_b32 {dst}, {dst}, 7'
    return f's_add_u32 {dst}, {sRb}, {ks}\ns_sub_u32 {tmp}, {dst}, 6\ns_cmp_ge_u32 {dst}, 14\ns_cselect_b32 {dst}, {tmp}, {dst}'
def s2_dma_ks(ks, both=False):
    L=[]; kind,off=ks_lds(ks)
    base = sL4 if kind=='W' else sL2k
    dl = 16384 if kind=='W' else 8192
    tag=f'k{ks}'
    assert ks<14 or not both
    if ks<14:
        pre=kidx(ks,sT1,sT2)+f'\ns_mul_i32 {sT1}, {sT1}, {16*896}\ns_add_u32 {sT1}, {sT1}, {sW2b}'
        T=[dma(vW2, sW2, sT1, base, off, tag, pre=pre), dma(vW2, sW2, (sT1,8*896), base, off+1024, tag)]
        if both:
            m=lambda x: x & 0xffffffff
            T+=[dma(vW2, sW2, (sT1,m(-4*224*896)), base, m(off-dl), tag), dma(vW2, sW2, (sT1,m(8*896-4*224*896)), base, m(off+1024-dl), tag)]
        return [('\n'.join(t[0] for t in T),tag)]
    hd,s=divmod(ks-14,2)
    return [dma(vW2, sWO, (sWOb,(28*hd+14*s+8*h)*896), base, off+1024*h, tag) for h in range(2)]
def s2_dmas(kss, both=False): return [d for ks in kss for d in s2_dma_ks(ks,both)]
def wait_ks(kss):
    for ks in kss: k.wait_tag(f'k{ks}')
def wreg(ks,ct): return WREG+8*ks+4*ct
def s2_reads(kss, base=None, obase=None):
    base = vS2 if base is None else base
    L=[]
    for ks in kss:
        kind,off=ks_lds(ks)
        if ks<14:
            if kind=='W':
                a=base
                if off>=65536: a+=2; off-=65536
            else: a=base+4
            st=1024
        else:
            a = obase if kind=='W' else obase+2
            st=512
        for ct in range(2):
            for i in range(2):
                L.append(f'ds_read_b64_tr_b16 {v(wreg(ks,ct)+2*i,2)}, {v(a+ct)} offset:{off+st*i}')
    return L
R3=lambda a,b: list(range(a,b))

def emit_list(L):
    for x in L:
        if callable(x): x()
        elif isinstance(x,tuple): k.I(x[0],x[1])
        else: k.I(x)

def gemm1(NA, NB, tail, first, masked=False, pre_barrier=None, extra=None):
    extra = extra or {}
    if MPG>=0: extra.setdefault(MPG,[]).extend(MPF)
    if 'dose' in OPT:
        g0=int(OPT['dose']); stp=int(OPT.get('dstep','3')); nd_=-(-49//DL)
        for j in range(nd_):
            extra.setdefault(g0+stp*j,[]).append((f's_mov_b32 {sT0}, {j*DL*128}\nbuffer_load_dword v{146+(j&1)}, v144, {sW2}, {sT0} offen','pf'))
        extra.setdefault(g0+stp*nd_,[]).append((f'buffer_load_dword v150, v145, {sWO}, 0 offen','pf'))
    if NB==1: fa=lambda b,t: FA+16*b+4*t; fb=lambda b,t: FB+4*b
    else:     fa=lambda b,t: FB+4*b;      fb=lambda b,t: FA+16*b+4*t
    def reads(g):
        s,ks=divmod(g,4); slot=s%3; b=g&1; A=[];B=[]
        for t in range(NB):
            B.append(f'ds_read_b128 {v(fb(b,t),4)}, {v(vB+ks)} offset:{slot*16384+t*4096}')
        for t in range(NA):
            a=vA+t+(4 if slot==2 else 0); off=(slot&1)*32768+ks*8192
            A.append([f'ds_read_b64_tr_b16 {v(fa(b,t)+2*i,2)}, {v(a)} offset:{off+2048*i}' for i in range(2)])
        if NB==1: return B+[x for l in A for x in l]
        return A[0]+B
    def mfmas(g):
        b=g&1; L=[]
        for ta in range(NA):
            for tb in range(NB):
                d=v(ACC+16*(ta*NB+tb),16)
                c = '0' if g==0 else d
                L.append(f'v_mfma_f32_32x32x16_bf16 {d}, {v(fa(b,ta),4)}, {v(fb(b,tb),4)}, {c}')
        return L
    emit_list(first)
    if pre_barrier: pre_barrier(0)
    k.wait_tag('s0'); k.force_wait(lg=0); k.I('s_barrier')
    stamp(1)
    emit_list(reads(0))
    pend=s1_dmas(2,masked)
    for g in range(28):
        M=mfmas(g)
        if (g+1)%4==0:
            s=(g+1)//4
            if pre_barrier and s<7: pre_barrier(s)
            k.force_wait(lg=0)
            k.I(M[0]); M=M[1:]
            if s<7: k.wait_tag(f's{s}')
            k.I('s_barrier')
            if 'gts' in OPT and s<7: gstamp(8+s)
            n=s+2
            pend = s1_dmas(n,masked) if n<7 else list(tail.get(n,[]))
        ex = reads(g+1) if g+1<28 else []
        nd = (2 if g<19 else 1) if g<27 else 0
        d=pend[:nd]; pend=pend[nd:]
        if (g+2)%4==0 and g<27: d+=pend; pend=[]
        emit_list(interleave(M, ex+d+extra.get(g,[])))

def cmp_all(checks):
    first=True
    for r,s,hi in checks:
        dst = 'vcc' if first else sMask
        if hi: k.I(f'v_cmp_ne_u16_sdwa {dst}, {v(r)}, {s} src0_sel:WORD_1 src1_sel:WORD_0')
        else: k.I(f'v_cmp_ne_u32 {dst}, {s}, {v(r)}')
        if not first: k.I(f's_or_b64 vcc, vcc, {sMask}')
        first=False
    k.nop(1)
def poll(loads, checks, name):
    lab=newlab(name); done=newlab(name+'d')
    k.I(f's_mov_b32 {sSpin}, {SPIN}')
    k.nop(2)
    k.label(lab)
    for l in loads: k.I(l)
    k.force_wait(vm=0)
    cmp_all(checks)
    k.I(f's_cmp_eq_u64 vcc, 0\ns_cbranch_scc1 {done}')
    if 'sleep' in OPT: k.I(f's_sleep {OPT["sleep"]}')
    k.I(f's_sub_u32 {sSpin}, {sSpin}, 1\ns_cmp_lg_u32 {sSpin}, 0\ns_cbranch_scc1 {lab}')
    k.label(done)
def check_or_poll(loads, checks, name, hint=None):
    done=newlab(name+'ok')
    cmp_all(checks)
    k.I(f's_cmp_eq_u64 vcc, 0\ns_cbranch_scc1 {done}')
    st=k.state()
    if hint: poll(hint[0],hint[1],name+'h')
    poll(loads,checks,name)
    k.label(done); k.set_state(st)

def flag_store(soff_sgpr):
    k.I(f'v_mov_b32 v1, {sTag}\nv_mov_b32 v2, 0\ns_mov_b64 exec, 1')
    k.I(f'buffer_store_dword v1, v2, {sWS}, {soff_sgpr} offen sc1')
    k.I('s_mov_b64 exec, -1')

k.raw(f'; @launch grid=(256,1,1) block=(512,1,1) lds={LDS_BYTES}')
k.raw('.amdgcn_target "amdgcn-amd-amdhsa--gfx950"\n.text')
k.raw(f'.globl {NAME}_kernel\n.p2align 8\n.type {NAME}_kernel,@function\n{NAME}_kernel:')
k.I('s_cmp_ge_u32 s2, 256\ns_cbranch_scc1 L_end')
k.I('s_load_dwordx16 s[64:79], s[0:1], 0\ns_load_dwordx8 s[80:87], s[0:1], 64')
if TS or 'padto' in OPT: k.I(CLK+' s[100:101]')
k.I('s_getpc_b64 s[4:5]'); k.label('L_pc')
k.I(f'''v_lshrrev_b32 v1, 6, v0
s_lshr_b32 {sI}, s2, 3
v_and_b32 v2, 1, v0
v_readfirstlane_b32 {sWave}, v1
v_lshl_add_u32 v2, v1, 1, v2
s_lshl_b32 {sT0}, {sI}, 4
v_add_lshl_u32 v2, v2, {sT0}, 7
v_min_u32 v2, L_codeend-L_pc-4, v2
v_and_b32 v0, 63, v0''')
if 'nocpf' not in OPT: k.I(f'global_load_dword {v(vPF)}, v2, s[4:5]','cpf')
NR = 7 if ROT0 else 6
k.I(f'''s_and_b32 {sT0}, s2, 7
s_lshr_b32 {sT3}, {sT0}, 1
s_lshl_b32 {sT1}, {sT3}, 4
s_sub_u32 {sT1}, {sT1}, 16
s_mul_i32 {sT2}, {sT3}, 12
s_add_u32 {sT2}, {sT2}, 60
s_cmp_lt_u32 {sI}, 16
s_cselect_b32 {sT1}, {sT2}, {sT1}
s_lshl_b32 {sT2}, {sT3}, 2
s_add_u32 {sT2}, {sT2}, 112
s_cmp_lt_u32 {sI}, 4
s_cselect_b32 {sT1}, {sT2}, {sT1}
s_add_u32 {sT1}, {sT1}, {sI}
s_lshr_b32 {sRole}, {sT1}, 3
s_and_b32 {sT1}, {sT1}, 7
s_and_b32 {sTB}, s2, 1
s_lshl_b32 {sTB}, {sTB}, 3
s_add_u32 {sTB}, {sTB}, {sT1}
s_lshl_b32 {sLW}, {sWave}, 10
s_mul_i32 {sT1}, {sRole}, 448
s_and_b32 {sT1}, {sT1}, 0xffffff80
s_lshl_b32 {sT2}, {sRole}, 7
s_sub_u32 {sT2}, {sT2}, 128
s_mul_i32 {sT3}, {sRole}, 384
s_sub_u32 {sT3}, {sT3}, {14*384}
s_cmp_lt_u32 {sRole}, 14
s_cselect_b32 {sB0}, {sT2}, {sT3}
s_cselect_b32 {sE}, 640, 0
s_cmp_lt_u32 {sRole}, 8
s_cselect_b32 {sB0}, {sT1}, {sB0}
s_cselect_b32 {sE}, 0, {sE}
s_movk_i32 {sStr}, 2688
s_cselect_b32 {sStr}, 3584, {sStr}
s_cmp_eq_u32 {sRole}, 14
s_cselect_b32 {sA0}, 7, 8
s_cmp_eq_u32 {sRole}, 15
s_cselect_b32 {sA0}, 0, {sA0}
s_add_u32 {sRot}, {sRole}, {sTB}
s_mul_i32 {sT1}, {sRot}, {37 if ROT0 else 43}
s_lshr_b32 {sT1}, {sT1}, 8
s_mul_i32 {sT1}, {sT1}, {NR}
s_sub_u32 {sRot}, {sRot}, {sT1}''')
if 'norot' in OPT: k.I(f's_mov_b32 {sRot}, 0')
if OPT.get('rmod')=='2': k.I(f's_and_b32 {sRot}, {sRot}, 1\ns_mul_i32 {sRot}, {sRot}, 3')
if OPT.get('rmod')=='3': k.I(f's_sub_u32 {sT1}, {sRot}, 3\ns_cmp_ge_u32 {sRot}, 3\ns_cselect_b32 {sRot}, {sT1}, {sRot}\ns_lshl_b32 {sRot}, {sRot}, 1')
k.I(f'''v_lshrrev_b32 v1, 3, v0
s_lshl_b32 {sT1}, {sWave}, 3
v_add_u32 v1, {sT1}, v1
v_lshrrev_b32 v2, 1, v1
v_xor_b32 v2, v2, v0
v_and_b32 v2, 7, v2
v_mul_u32_u24 v1, 896, v1
v_lshl_add_u32 v1, v2, 4, v1
s_mul_i32 {sT1}, {sTB}, {128*896}
v_add_u32 {v(vX)}, {sT1}, v1''')
k.I(f'''v_lshrrev_b32 v3, 5, v0
s_lshl_b32 {sT1}, {sWave}, 1
v_add_u32 v24, {sT1}, v3
v_and_b32 v25, 3, v24
v_lshlrev_b32 v25, 2, v25
v_and_b32 v26, 31, v0
v_xor_b32 v25, v25, v26
v_mul_u32_u24 v24, {sStr}, v24
v_lshl_add_u32 v24, v25, 4, v24
v_lshrrev_b32 v26, 4, v25
v_mul_u32_u24 v26, {sE}, v26
v_add3_u32 {v(vW)}, v24, v26, {sB0}
v_lshrrev_b32 v25, 2, v25
v_cmp_ne_u32 {sMask}, {sA0}, v25
s_mov_b32 s10, {2048*896}
s_mov_b32 s11, 0x20000
s_mov_b32 s15, 0x20000
s_mul_i32 s14, {sStr}, 448
s_lshl_b32 {sStr}, {sStr}, 4''')
k.force_wait(lg=0)
if TS or 'padto' in OPT: k.I(f's_mov_b32 s{sTS}, s100')
k.I(f'''s_mov_b32 s8, s{P(0)}
s_mov_b32 s9, s{P(0)+1}
s_cmp_lt_u32 {sRole}, 8
s_cselect_b32 s12, s{P(5)}, s{P(1)}
s_cselect_b32 s13, s{P(5)+1}, s{P(1)+1}''')
emit_list(s1_dmas(0,True))
k.I(f's_load_dword {sTag}, s[{P(11)}:{P(11)+1}], {WS_EPOCH}')
srd(sG,8,896)
if ROT0: k.I(f's_add_u32 {sT1}, {sWave}, {sRot}\ns_sub_u32 {sT2}, {sT1}, 7\ns_cmp_ge_u32 {sT1}, 7\ns_cselect_b32 {sT1}, {sT2}, {sT1}')
else: k.I(f's_add_u32 {sT1}, {sWave}, {sRot}\ns_sub_u32 {sT2}, {sT1}, 6\ns_cmp_ge_u32 {sT1}, 7\ns_cselect_b32 {sT1}, {sT2}, {sT1}\ns_cmp_eq_u32 {sWave}, 0\ns_cselect_b32 {sT1}, 0, {sT1}')
k.I(f's_lshl_b32 {sT1}, {sT1}, 7\nv_lshlrev_b32 v1, 1, v0\nbuffer_load_ushort v32, v1, {sG}, {sT1} offen')
k.I('s_barrier')
S1=s1_dmas(1,True)
NPRE=int(OPT.get('npre','2'))
emit_list(S1[:NPRE]); S1=S1[NPRE:]
srd(sWS,11,0x10000000); srd(sW2,7,1792*896); srd(sWO,3,448*896)
DL=int(OPT.get('dl','10'))
k.I(f'''s_lshl_b32 {sT0}, {sI}, 3
s_add_u32 {sT0}, {sT0}, {sWave}
s_mul_i32 {sT1}, {sT0}, 49
s_mul_i32 {sT2}, {sT0}, 13
v_min_u32 v1, {DL-1}, v0
v_min_u32 v2, 12, v0
v_add_lshl_u32 v144, v1, {sT1}, 7
v_add_lshl_u32 v145, v2, {sT2}, 7
s_and_b32 {sT0}, s2, 7
s_mul_i32 {sT3}, {sT0}, 7
s_add_u32 {sT1}, {sT1}, {sT3}
s_lshl_b32 {sT3}, {sT0}, 1
s_add_u32 {sT2}, {sT2}, {sT3}
v_min_u32 v1, 6, v0
v_min_u32 v2, 1, v0
v_add_lshl_u32 v150, v1, {sT1}, 7
v_add_lshl_u32 v151, v2, {sT2}, 7''')
def pf(a):
    return [(f'buffer_load_dword v146, {v(a)}, {sW2}, 0 offen','pf'),(f'buffer_load_dword v147, {v(a+1)}, {sWO}, 0 offen','pf')]
k.I(f's_lshl_b32 {sT0}, s2, 3\ns_add_u32 {sT0}, {sT0}, {sWave}\ns_and_b32 {sT0}, {sT0}, 1023\ns_lshl_b32 {sT0}, {sT0}, 7\ns_add_u32 {sT0}, {sT0}, {WS_FA}\nv_mov_b32 v33, {sT0}')
MPF=([] if 'nompf' in OPT else pf(150))+([] if 'notouch' in OPT else [(f'buffer_load_dword v33, v33, {sWS}, 0 offen','pf')])
MPG=int(OPT.get('mpg','9'))
if MPG<0: S1=S1+MPF
PFG=int(OPT.get('pfg','18'))
L2PF = pf(144) if 'l2pf' in OPT else []
k.I(f'''s_mov_b32 s40, {f2u(LOG2E)}
s_mov_b32 s41, {f2u(LOG2E)}
s_mov_b32 s42, {f2u(LOG2E)}
s_mov_b32 s43, {f2u(-LOG2E)}
s_mov_b32 s58, 0
s_mov_b32 s59, -1
v_lshlrev_b32 {v(vL16)}, 4, {v(vLane)}''')
k.I(f'''v_and_b32 v1, 31, v0
v_bfe_u32 v2, v0, 1, 3
v_xor_b32 v2, v2, v3
v_lshlrev_b32 v2, 4, v2
v_lshl_add_u32 v1, v1, 7, v2
s_and_b32 {sT0}, {sWave}, 3
s_lshl_b32 {sT0}, {sT0}, 12
s_cmp_lt_u32 {sRole}, 14
s_cselect_b32 {sT0}, {sT0}, 0
s_add_u32 {sT0}, {sT0}, {XR}
v_add_u32 {v(vB)}, {sT0}, v1
v_xor_b32 {v(vB+1)}, 32, {v(vB)}
v_xor_b32 {v(vB+2)}, 64, {v(vB)}
v_xor_b32 {v(vB+3)}, 96, {v(vB)}''')
k.I(f'''v_bfe_u32 v28, v0, 2, 2
v_lshl_add_u32 v27, v3, 3, v28
v_lshlrev_b32 v27, 9, v27
v_lshlrev_b32 v28, 6, v28
v_bfe_u32 v29, v0, 4, 1
v_and_b32 v26, 3, v0
v_lshl_add_u32 v29, v29, 2, v26''')
k.I(f's_cmp_ge_u32 {sRole}, 14\ns_cbranch_scc1 L_Q')
st_q=k.state()
srd(sOUT,9,2048*896)
def s2_setup():
    t0,t1,t2,t3='s84','s85','s86','s87'
    T=f'''s_sub_u32 {t1}, {sI}, 4
s_mul_i32 {t2}, {t1}, 37
s_lshr_b32 {t2}, {t2}, 8
s_mul_i32 {t3}, {t2}, 7
s_sub_u32 {sCT}, {t1}, {t3}
s_and_b32 {t0}, s2, 7
s_lshl_b32 {sT64}, {t0}, 2
s_add_u32 {sT64}, {sT64}, {t2}
s_lshl_b32 {sRa}, {t2}, 1
s_add_u32 {sRa}, {sRa}, {sCT}
s_mul_i32 {t0}, {sRa}, 43
s_lshr_b32 {t0}, {t0}, 8
s_mul_i32 {t0}, {t0}, 6
s_sub_u32 {sRb}, {sRa}, {t0}
s_mul_i32 {sW2b}, {sWave}, {224*896}
s_mul_i32 {sWOb}, {sWave}, {56*896}
s_lshl_b32 {sL4}, {sWave}, 12
s_lshl_b32 {sL2k}, {sWave}, 11
s_add_u32 {sL2k}, {sL2k}, {XR}
v_lshrrev_b32 v1, 3, v0
v_lshlrev_b32 v2, 1, v1
v_and_b32 v2, 4, v2
v_and_b32 v3, 7, v0
v_xor_b32 v2, v2, v3
v_mul_u32_u24 v1, 896, v1
v_lshl_add_u32 v1, v2, 4, v1
s_lshl_b32 {t0}, {sCT}, 7
v_add_u32 {v(vW2)}, {t0}, v1
v_lshrrev_b32 v1, 5, v0
v_lshlrev_b32 v1, 9, v1
v_bfe_u32 v2, v0, 2, 2
v_lshl_add_u32 v1, v2, 7, v1
v_lshrrev_b32 v2, 1, v2
v_lshl_add_u32 v1, v2, 6, v1
v_bfe_u32 v2, v0, 4, 1
v_lshl_add_u32 v1, v2, 5, v1
v_and_b32 v2, 3, v0
v_lshl_add_u32 v1, v2, 3, v1
v_xor_b32 v2, 64, v1
v_add_u32 {v(vS2)}, {sL4}, v1
v_add_u32 {v(vS2+1)}, {sL4}, v2
v_add_u32 {v(vS2+2)}, 0x10000, {v(vS2)}
v_add_u32 {v(vS2+3)}, 0x10000, {v(vS2+1)}
v_add_u32 {v(vS2+4)}, {sL2k}, v1
v_add_u32 {v(vS2+5)}, {sL2k}, v2
s_lshr_b32 {t1}, {sT64}, 1
s_lshl_b32 {sFA}, {t1}, 3
s_add_u32 {sFA}, {sFA}, {sWave}
s_lshl_b32 {sFA}, {sFA}, 7
s_and_b32 {t2}, {sT64}, 1
s_lshl_b32 {t2}, {t2}, 3
s_add_u32 {sFA}, {sFA}, {t2}
s_add_u32 {sFA}, {sFA}, {WS_FA}
s_mul_i32 {sAC}, {sT64}, 224
s_mul_i32 {t2}, {sWave}, 14
s_add_u32 {sAC}, {sAC}, {t2}
s_lshl_b32 {sAC}, {sAC}, 10
s_add_u32 {sAC}, {sAC}, {WS_ACT}
s_lshl_b32 {sGB}, {sT64}, 9
s_add_u32 {sGB}, {sGB}, {WS_G}
s_lshl_b32 {t2}, {sWave}, 1
s_lshl_b32 {sOB}, {sT64}, 5
s_add_u32 {sOB}, {sOB}, {t2}
s_lshl_b32 {sOB}, {sOB}, 11
s_add_u32 {sOB}, {sOB}, {WS_O}
s_add_u32 {sB0}, {sOB}, 32768
s_lshl_b32 {t1}, {t1}, 4
s_add_u32 {t1}, {t1}, {t2}
s_lshl_b32 {sFO}, {t1}, 7
s_add_u32 {sFO}, {sFO}, {WS_FO}'''
    return T.split('\n')
fl0=f'v_and_b32 v4, 1, v0\nv_lshlrev_b32 v4, 2, v4\nbuffer_load_dword v5, v4, {sWS}, {sFA} offen sc1'
def tags():
    k.force_wait(lg=0)
    k.I(f'''s_lshr_b32 {sT16}, {sTag}, 16
    s_add_u32 {sT16}, {sT16}, 0x2a5b
    s_and_b32 {sT16}, {sT16}, 0x3fff
    s_lshl_b32 {sTagH}, {sT16}, 16
    s_mul_i32 {sTag}, {sTag}, 1664525
    s_add_u32 {sTag}, {sTag}, 1013904223
    s_lshr_b32 {sTag}, {sTag}, 16
    s_or_b32 {sTag}, {sTag}, {sTagH}''')
    stamp_init(); stamp(8)
def a_addr(t, colexpr_v):
    k.I(f'''v_xor_b32 {v(vA+t)}, {v(colexpr_v)}, v28
    v_add_u32 {v(vA+t)}, {v(vA+t)}, v27
    v_add_u32 {v(vA+4+t)}, 0x10000, {v(vA+t)}''')
def spread(L, g0, g1, ex):
    n=g1-g0;
    for i in range(n):
        ex.setdefault(g0+i,[]).extend(L[i*len(L)//n:(i+1)*len(L)//n])
k.I(f's_cmp_ge_u32 {sRole}, 8\ns_cbranch_scc1 L_KV')
st_kv=k.state()

k.c('F role')
srd(sM,6,1792*2)
k.I(f'''s_mul_i32 {sT0}, {sRole}, 448
s_lshl_b32 {sT1}, {sWave}, 6
s_add_u32 {sT1}, {sT1}, {sT0}
v_and_b32 v1, 31, v0
v_lshlrev_b32 v2, 1, v1
buffer_load_ushort v148, v2, {sM}, {sT1} offen
s_lshl_b32 {sT1}, {sWave}, 7
s_add_u32 {sT1}, {sT1}, {MISC}
v_lshl_add_u32 v149, v1, 2, {sT1}
s_and_b32 {sT1}, {sT0}, 127
s_lshr_b32 {sA1}, {sWave}, 2
s_lshl_b32 {sT2}, {sA1}, 9
s_lshl_b32 {sA1}, {sA1}, 8
s_add_u32 {sA1}, {sT1}, {sA1}
s_add_u32 {sT2}, {sT2}, {MISC}
v_lshl_add_u32 v142, v3, 4, {sT2}''')
for t in range(4):
    k.I(f'v_lshl_add_u32 v26, v29, 3, {sA1}\nv_add_u32 v26, {64*t}, v26')
    a_addr(t,26)
tags()
FSET=f'''v_mov_b32 {v(vC)}, 0.5
v_mov_b32 {v(vC+1)}, 0.5
v_mov_b32 {v(vC+2)}, 1.0
v_mov_b32 {v(vC+3)}, 1.0
s_lshl_b32 {sA2}, {sTB}, 2
s_and_b32 s84, {sWave}, 3
s_add_u32 {sA2}, {sA2}, s84
s_mul_i32 {sA2}, {sA2}, 112
s_mul_i32 s84, {sRole}, 14
s_add_u32 {sA2}, {sA2}, s84
s_and_b32 s84, {sWave}, 4
s_lshl_b32 s84, s84, 1
s_add_u32 {sA2}, {sA2}, s84
s_lshl_b32 {sA2}, {sA2}, 10
s_add_u32 {sA2}, {sA2}, {WS_ACT}
s_add_u32 {sA3}, {sA2}, 4096
s_lshl_b32 {sA0}, {sTB}, 3
s_add_u32 {sA0}, {sA0}, {sRole}
s_lshl_b32 {sA0}, {sA0}, 7
s_lshl_b32 s84, {sWave}, 2
s_add_u32 {sA0}, {sA0}, s84
s_add_u32 {sA0}, {sA0}, {WS_FA}'''.split('\n')
emit_list(s2_setup()+FSET)
k.I(f's_cmp_ge_u32 {sWave}, 4\ns_cbranch_scc1 L_F3')
st_f3=k.state()

BI=104
def bias_reads(t):
    return [f'ds_read_b128 {v(BI+16*(t&1)+4*q,4)}, v142 offset:{128*t+32*q}' for q in range(4)]
def mish_tile(t, T, U, O):
    L=[]
    for hh in range(2):
        a=ACC+16*t+8*hh; b=BI+16*(t&1)+8*hh
        for i in range(0,8,2): L.append(f'v_pk_fma_f32 {v(a+i,2)}, {v(a+i,2)}, {sL2}, {v(b+i,2)}')
        for i in range(8): L.append(f'v_exp_f32 {v(T+i)}, {v(a+i)}')
        for i in range(0,8,2): L.append(f'v_pk_fma_f32 {v(U+i,2)}, {v(T+i,2)}, {v(vC,2)}, {v(vC+2,2)}')
        for i in range(0,8,2): L.append(f'v_pk_fma_f32 {v(U+i,2)}, {v(U+i,2)}, {v(T+i,2)}, {v(vC+2,2)}')
        for i in range(8): L.append(f'v_rcp_f32 {v(U+i)}, {v(U+i)}')
        for i in range(0,8,2): L.append(f'v_pk_fma_f32 {v(U+i,2)}, {v(a+i,2)}, {v(U+i,2)}, {v(a+i,2)} neg_lo:[1,0,0] neg_hi:[1,0,0]')
        for i in range(0,8,2): L.append(f'v_cvt_pk_bf16_f32 {v(O+4*hh+i//2)}, {v(U+i)}, {v(U+i+1)}')
    return L

def f_role(NT):
    ex={6:[f'v_lshlrev_b32 v148, 16, v148', f'v_mul_f32 v148, s40, v148', 'ds_write_b32 v149, v148'],
        24:bias_reads(0)+bias_reads(1), 25:[lambda: wait_ks(R3(0,3))]+s2_reads(R3(0,3))[:6], 26:s2_reads(R3(0,3))[6:]}
    gemm1(NT,1,{7:s2_dmas(R3(0,3)),8:s2_dmas(R3(3,6))},S1,extra=ex)
    stamp(2)
    T=168;U=176;O=184
    def tile(t):
        L=mish_tile(t,T,U,O)
        n=len(L)//2
        st=lambda hh: f'buffer_store_dwordx4 {v(O+4*hh,4)}, {v(vL16)}, {sWS}, {sA2 if t<2 else sA3} offen offset:{(2*(t&1)+hh)*1024} sc1'
        if 'noact' in OPT: st=lambda hh: 's_nop 0'
        return L[:n]+[st(0)]+L[n:n+6]+(bias_reads(t+2) if t+2<NT else [])+L[n+6:]+[st(1)]
    if NT==4:
        for t in range(4): emit_list(tile(t))
        stamp(9)
        wait_ks(R3(3,6)); emit_list(s2_reads(R3(3,6)))
        k.force_wait(vm=0)
        flag_store(sA0)
        stamp(4)
        k.waitcnt(lg=0); emit_list(s2_dmas(R3(12,15)))
        k.I(fl0)
        k.I('s_barrier')
        emit_list(s2_reads(R3(6,9)))
    else:
        emit_list(s2_dmas(R3(6,12),True))
        wait_ks(R3(3,6)); emit_list(s2_reads(R3(3,6))); k.waitcnt(lg=0); emit_list(s2_dmas(R3(12,15)))
        stamp(5)
        BT=int(OPT.get('bt','1'))
        for t in range(3):
            if t==BT: wait_ks(R3(6,12)); k.I('s_barrier'); emit_list(s2_reads(R3(6,9)))
            emit_list(tile(t))
        k.I(fl0)
        stamp(9)
        k.force_wait(vm=0)
        flag_store(sA0)
        stamp(4)
        k.waitcnt(lg=0)
        k.I('s_branch L_S2b')
    k.waitcnt(lg=0)
    stamp(3)

f_role(4)

k.label('L_S2'); k.force_wait(vm=0); k.label('L_S2b'); k.reset_state(); k.nop(2)
k.c('stage 2: k-steps 0-8 in regs, 9-14 landed in LDS, first-half act flag value in v5')
AD=ACC+48; OAD=20
for i in range(6): k.I(f'v_mov_b32 {v(AD+i)}, {v(vS2+i)}')
k.I(f'''v_lshrrev_b32 v2, 5, v0
v_mul_u32_u24 v2, 7, v2
v_bfe_u32 v3, v0, 2, 2
v_add_u32 v2, v2, v3
v_bfe_u32 v3, v2, 1, 1
v_lshlrev_b32 v2, 7, v2
v_lshl_add_u32 v2, v3, 6, v2
v_bfe_u32 v3, v0, 4, 1
v_lshl_add_u32 v2, v3, 5, v2
v_and_b32 v3, 3, v0
v_lshl_add_u32 v2, v3, 3, v2
v_xor_b32 v3, 64, v2
v_add_u32 {v(OAD)}, {sL4}, v2
v_add_u32 {v(OAD+1)}, {sL4}, v3
v_add_u32 {v(OAD+2)}, {sL2k}, v2
v_add_u32 {v(OAD+3)}, {sL2k}, v3
v_lshlrev_b32 v1, 5, v4''')
emit_list(s2_reads(R3(9,15),AD,OAD))
check_or_poll([f'buffer_load_dword v5, v4, {sWS}, {sFA} offen sc1'],[(5,sTag,0)],'fa')
stamp(6)
LA=int(OPT.get('la','4'))
free=[168,172,176,180,184,188,8,12,16,144,148,152,156,160,164]; where={}
def act_load(ks):
    b0=free.pop(0); b1=free.pop(0)
    if ks<14:
        where[(ks,0)]=b0; where[(ks,1)]=b1
        return [kidx(ks,sA0,sA1)+f'''
s_lshl_b32 {sA0}, {sA0}, 10
s_add_u32 {sA0}, {sA0}, {sAC}
s_add_u32 {sA1}, {sA0}, {112*1024}
buffer_load_dwordx4 {v(b0,4)}, {v(vL16)}, {sWS}, {sA0} offen sc1''', f'buffer_load_dwordx4 {v(b1,4)}, {v(vL16)}, {sWS}, {sA1} offen sc1']
    tt,q=divmod(2*(ks-14),4); L=[]
    for b in (b0,b1):
        ob[(q,tt)]=b
        L.append(f'buffer_load_dwordx4 {v(b,4)}, {v(vL16)}, {sWS}, {sOB if tt==0 else sB0} offen offset:{q*1024} sc1'); q+=1
    oloads.extend(L)
    return L
ob={}; oloads=[]
fl1=f'buffer_load_dword v2, v4, {sWS}, {sFA} offen offset:16 sc1'
hload=f'buffer_load_dword v3, v1, {sWS}, {sFO} offen sc1'
FD=int(OPT.get('fd','2'))
for ks in range(LA): emit_list(act_load(ks))
if 8-LA-FD<0: k.I(fl1)
k.waitcnt(lg=0)
S2T={0:4,2:5,4:7,6:8,7:9,8:12,10:13,12:14}
if 's2ts' in OPT: gstamp(3)
def acc2(tt,ct): return ACC+32*tt+16*ct
wo_d=s2_dmas(R3(15,18))
post=[]
for ks in range(14):
    M=[]
    for tt in range(2):
        for ct in range(2):
            d=v(acc2(tt,ct),16)
            M.append(f'v_mfma_f32_32x32x16_bf16 {d}, {v(wreg(ks,ct),4)}, {v(where[(ks,tt)],4)}, {"0" if ks==0 else d}')
    if ks>=2:
        free += [b for b in [where[(ks-2,0)],where[(ks-2,1)],wreg(ks-2,0),wreg(ks-2,1)] if not 144<=b<168]
    if ks==3: free=[b for b in free if not 144<=b<168]
    n=ks+LA
    if n==8: check_or_poll([fl1],[(2,sTag,0)],'fa1')
    if n==14: check_or_poll([hload],[(3,sTag,0)],'foh')
    X=act_load(n) if n<18 else []
    if n+FD==8: X.append(fl1)
    if n+FD==14: X.append(hload)
    if 1<=ks<7: X.append(wo_d[ks-1])
    if ks==10:
        assert all(not 144<=where[(j,t)]<168 for j in range(9,14) for t in range(2))
        X+= [lambda: wait_ks(R3(15,18))]+s2_reads(R3(15,18),AD,OAD)
    if ks==6:
        a0=free.pop(0); a1=free.pop(0); a2=free.pop(0); a3=free.pop(0); a4=free.pop(0)
        u1,u2,u3=a4,a4+1,a4+2
        t0,t1='s84','s85'
        post=f'''v_and_b32 {v(a2)}, 31, v0
v_lshrrev_b32 {v(a2+1)}, 5, v0
v_and_b32 {v(a2+2)}, 7, v0
v_xor_b32 {v(a2+1)}, {v(a2+1)}, {v(a2+2)}
v_lshlrev_b32 {v(a2+1)}, 4, {v(a2+1)}
v_lshl_or_b32 {v(a2+2)}, {v(a2)}, 7, {v(a2+1)}
v_add_u32 {v(a0)}, {sL4}, {v(a2+2)}
v_xor_b32 {v(a0+1)}, 32, {v(a0)}
v_xor_b32 {v(a0+2)}, 64, {v(a0)}
v_xor_b32 {v(a0+3)}, 96, {v(a0)}
v_lshrrev_b32 {v(a2)}, 4, {v(a2)}
v_mul_u32_u24 {v(a2)}, {16384-2048}, {v(a2)}
v_add3_u32 {v(a1)}, {v(a2)}, {v(a2+2)}, {sL2k}
v_xor_b32 {v(a1+1)}, 32, {v(a1)}
v_xor_b32 {v(a1+2)}, 64, {v(a1)}
v_xor_b32 {v(a1+3)}, 96, {v(a1)}
v_add_u32 {v(a2)}, 0x10000, {v(a0)}
v_add_u32 {v(a2+1)}, 0x10000, {v(a0+1)}
v_add_u32 {v(a2+2)}, 0x10000, {v(a0+2)}
v_add_u32 {v(a2+3)}, 0x10000, {v(a0+3)}
v_lshrrev_b32 {v(u1)}, 3, v0
v_lshlrev_b32 {v(a4+3)}, 3, {v(u1)}
v_and_b32 {v(u2)}, 3, v0
v_lshlrev_b32 {v(u2)}, 1, {v(u2)}
v_xor_b32 {v(u2)}, {v(u2)}, {v(u1)}
v_lshlrev_b32 {v(u2)}, 4, {v(u2)}
v_lshl_or_b32 {v(u2)}, {v(u1)}, 7, {v(u2)}
v_bfe_u32 {v(u3)}, v0, 2, 1
s_and_b32 {t0}, {sWave}, 3
s_lshl_b32 {t0}, {t0}, 10
s_lshr_b32 {t1}, {sWave}, 2
s_lshl_b32 {t1}, {t1}, 16
s_add_u32 {t0}, {t0}, {t1}
v_lshl_add_u32 {v(a3)}, {v(u3)}, 15, {t0}
v_add_u32 {v(a3)}, {v(a3)}, {v(u2)}
s_and_b32 {t0}, {sWave}, 1
s_lshl_b32 {t0}, {t0}, 10
s_and_b32 {t1}, {sWave}, 2
s_lshl_b32 {t1}, {t1}, 13
s_add_u32 {t0}, {t0}, {t1}
s_add_u32 {t0}, {t0}, {XR}
v_add_u32 {v(u2)}, {t0}, {v(u2)}
s_lshr_b32 {t1}, {sWave}, 2
v_and_b32 {v(u3)}, {t1}, {v(u3)}
v_cmp_eq_u32 s[86:87], 1, {v(u3)}
v_mov_b32 {v(a3+2)}, 4096
v_mov_b32 {v(a3+3)}, 2048
v_cndmask_b32 {v(a3)}, {v(a3)}, {v(u2)}, s[86:87]
v_cndmask_b32 {v(a3+2)}, {v(a3+2)}, {v(a3+3)}, s[86:87]
v_xor_b32 {v(a3+1)}, 16, {v(a3)}
v_and_b32 {v(u2)}, 7, v0
v_mul_u32_u24 {v(u1)}, 896, {v(u1)}
v_lshl_add_u32 {v(u1)}, {v(u2)}, 4, {v(u1)}
s_lshl_b32 {sA2}, {sT64}, 3
s_add_u32 {sA2}, {sA2}, {sWave}
s_lshl_b32 {sGB}, {sA2}, 6
s_add_u32 {sGB}, {sGB}, {WS_G}
s_mul_i32 {sA2}, {sA2}, {8*896}
s_lshl_b32 {t1}, {sCT}, 7
s_add_u32 {sA2}, {sA2}, {t1}'''.split('\n')
    if ks>=6 and post:
        X+=post[:16]; post=post[16:]
    gload=f'buffer_load_dwordx2 v[4:5], {v(a4+3)}, {sWS}, {sGB} offen sc1' if ks>=6 else None
    if ks==13: assert not post; X.append(gload)
    emit_list(interleave(M,X))
    if 's2ts' in OPT and ks in S2T: gstamp(S2T[ks])
for n in range(14+LA,18): emit_list(act_load(n))
stamp(10)
def wr(tt,ct):
    t=2*tt+ct
    a,off = [(a0,0),(a0,32768),(a2,0),(a1,0)][t]
    return [f'ds_write_b128 {v(a+q)}, {v(acc2(tt,ct)+4*q,4)} offset:{off}' for q in range(4)]
k.waitcnt(lg=0)
for tt in range(2):
    check_or_poll(oloads[4*tt:4*tt+4],[(ob[(q,tt)]+3,sT16,1) for q in range(4)],f'fo{tt}')
    if tt==0: stamp(11)
    for q in range(4): k.I(f'v_and_b32 {v(ob[(q,tt)]+3)}, 0xffff, {v(ob[(q,tt)]+3)}')
    for ct in range(2):
        for q in range(4):
            d=v(acc2(tt,ct),16)
            k.I(f'v_mfma_f32_32x32x16_bf16 {d}, {v(wreg(14+q,ct),4)}, {v(ob[(q,tt)],4)}, {d}')
        if (tt,ct)!=(0,0): emit_list(wr(*divmod(2*tt+ct-1,2)))
stamp(12)
check_or_poll([gload],[(5,sTag,0)],'fg')
emit_list(wr(1,1))
k.waitcnt(lg=0); stamp(13); k.I('s_barrier')
RB=ACC
for s in range(8):
    for c in range(2):
        k.I(f'ds_read_b128 {v(RB+8*s+4*c,4)}, {v(a3+c)}')
    if s<7: k.I(f'v_add_u32 {v(a3)}, {v(a3)}, {v(a3+2)}\nv_add_u32 {v(a3+1)}, {v(a3+1)}, {v(a3+2)}')
for s in range(1,8):
    for i in range(0,8,2): k.I(f'v_pk_add_f32 {v(RB+i,2)}, {v(RB+i,2)}, {v(RB+8*s+i,2)}')
for i in range(0,8,2): k.I(f'v_pk_mul_f32 {v(RB+i,2)}, {v(RB+i,2)}, v[4:5] op_sel_hi:[1,0]')
for i in range(4): k.I(f'v_cvt_pk_bf16_f32 {v(a0+i)}, {v(RB+2*i)}, {v(RB+2*i+1)}')
k.I(f'buffer_store_dwordx4 {v(a0,4)}, {v(u1)}, {sOUT}, {sA2} offen {OPT.get("outfl","").replace("+"," ")}')
stamp(15)
dump_stamps()
k.I('s_endpgm')

k.label('L_F3'); k.set_state(st_f3)
f_role(3)

RV=[0,1,2,3,4,5,6,8,9,10,11,12,13,14]
def wphi_lane(dst, base_sgpr):
    k.I(f'''v_and_b32 v30, 3, v0
    v_bfe_u32 v31, v0, 3, 2
    v_lshl_add_u32 v30, v31, 2, v30
    v_lshrrev_b32 v31, 3, v30
    v_sub_u32 v30, v30, v31
    v_bfe_u32 v31, v0, 2, 1
    v_mul_u32_u24 v31, 14, v31
    v_add_u32 v30, v30, v31
    v_min_u32 v30, 27, v30
    v_lshlrev_b32 v30, 1, v30
    v_mul_u32_u24 v31, 224, v3
    v_add3_u32 {v(dst)}, v30, v31, {base_sgpr}''')
def wphi_reads(dst16, addr, off):
    return [f'ds_read_u16 {v(dst16+8*s+j)}, {v(addr)} offset:{off+(16*s+(j&3)+8*(j>>2))*56}' for s in range(2) for j in range(8)]
def wphi_pack(src16,dst8):
    L=[f'v_lshl_or_b32 {v(dst8+i)}, {v(src16+2*i+1)}, 16, {v(src16+2*i)}' for i in range(8)]
    L+=[f'v_cndmask_b32 {v(dst8+i)}, {v(dst8+i)}, 0, {sHi}' for i in (6,7)]
    return L
def feat(a, wp, PK, Pp):
    L=[f'v_cvt_pk_bf16_f32 {v(PK+i)}, {v(a+2*i)}, {v(a+2*i+1)}' for i in range(8)]
    L.append(f'v_mfma_f32_32x32x16_bf16 {v(Pp,16)}, {v(wp,4)}, {v(PK,4)}, 0')
    L.append(f'v_mfma_f32_32x32x16_bf16 {v(Pp,16)}, {v(wp+4,4)}, {v(PK+4,4)}, {v(Pp,16)}')
    return L
def feat2(Pp, E, S, norm, O):
    L=[]; A=L.append
    A(f'v_max_f32 {v(S)}, {v(Pp+RV[0])}, {v(Pp+RV[1])}')
    A(f'v_max_f32 {v(S+1)}, -{v(Pp+RV[0])}, -{v(Pp+RV[1])}')
    for i in range(2,14,2):
        A(f'v_max3_f32 {v(S)}, {v(S)}, {v(Pp+RV[i])}, {v(Pp+RV[i+1])}')
        A(f'v_max3_f32 {v(S+1)}, {v(S+1)}, -{v(Pp+RV[i])}, -{v(Pp+RV[i+1])}')
    A(f'v_permlane32_swap_b32 {v(S)}, {v(S+1)}')
    A(f'v_max_f32 {v(S)}, {v(S)}, {v(S+1)}')
    A(f'v_mul_f32 {v(S)}, s43, {v(S)}')
    A(f'v_mov_b32 {v(S+1)}, {v(S)}')
    A(f'v_permlane32_swap_b32 {v(S)}, {v(S+1)}')
    for i,r in enumerate(RV):
        h=r&1
        A(f'v_pk_fma_f32 {v(E+2*i,2)}, {v(Pp+r-h,2)}, {sLn}, {v(S,2)} op_sel:[{h},0,0] op_sel_hi:[{h},1,1]')
    for r in range(28): A(f'v_exp_f32 {v(E+r)}, {v(E+r)}')
    if norm:
        A(f'v_pk_add_f32 {v(S,2)}, {v(E,2)}, {v(E+2,2)}')
        A(f'v_pk_add_f32 {v(S+2,2)}, {v(E+4,2)}, {v(E+6,2)}')
        for r in range(4,14):
            s=S+2*(r&1)
            A(f'v_pk_add_f32 {v(s,2)}, {v(s,2)}, {v(E+2*r,2)}')
        A(f'v_pk_add_f32 {v(S,2)}, {v(S,2)}, {v(S+2,2)}')
        A(f'v_permlane32_swap_b32 {v(S)}, {v(S+1)}')
        A(f'v_add_f32 {v(S)}, {v(S)}, {v(S+1)}')
        A(f'v_rcp_f32 {v(S)}, {v(S)}')
        A(f'v_mov_b32 {v(S+1)}, {v(S)}')
        A(f'v_permlane32_swap_b32 {v(S)}, {v(S+1)}')
        for r in range(14): A(f'v_pk_mul_f32 {v(E+2*r,2)}, {v(E+2*r,2)}, {v(S,2)}')
    for sg in range(2):
        for s in range(2):
            for j in range(4):
                i=7*s+2*j
                A(f'v_cvt_pk_bf16_f32 {v(O+8*sg+4*s+j)}, {v(E+2*i+sg)}, {v(E+2*i+2+sg) if j<3 else "0"}')
    return L

k.label('L_KV'); k.set_state(st_kv)
k.c('KV role')
srd(sM,2,16*1568)
k.I(f'''s_sub_u32 {sRole}, {sRole}, 8
s_lshl_b32 {sT0}, {sRole}, 2
s_lshr_b32 {sH0}, 0xDA8630, {sT0}
s_and_b32 {sH0}, {sH0}, 15
s_lshl_b32 {sT2}, {sRole}, 7
s_mul_i32 {sA1}, {sH0}, 56
s_sub_u32 {sA1}, {sA1}, {sT2}
s_mul_i32 {sA2}, {sH0}, 1568
s_add_u32 {sA2}, {sA2}, {sLW}''')
k.I(f's_lshr_b32 {sT1}, {sWave}, 2\ns_mul_i32 {sT2}, {sT1}, 3136\ns_add_u32 {sT2}, {sT2}, {MISC}')
wphi_lane(148, sT2)
k.I(f'v_min_u32 v29, 6, v29')
for t,(o0,o1) in enumerate([(0,112),(56,312),(256,368)]):
    k.I(f's_mul_i32 {sT2}, {sT1}, {o1-o0}\ns_add_u32 {sT2}, {sT2}, {sA1}\ns_add_u32 {sT2}, {sT2}, {o0}\nv_lshl_add_u32 v26, v29, 3, {sT2}')
    a_addr(t,26)
tags()
PHI=[0,16384,98304]; VV=[131072,131072+64,147456]
WA=240; RA=20
t0,t1,t2,t3='s84','s85','s86','s87'
KSET=f'''v_and_b32 v1, 5, v0
v_and_b32 v2, 2, v0
v_lshl_or_b32 v1, v2, 2, v1
v_bfe_u32 v2, v0, 3, 1
v_lshl_or_b32 v1, v2, 1, v1
v_lshrrev_b32 v2, 5, v0
v_xor_b32 v1, v1, v2
v_and_b32 v2, 31, v0
v_lshlrev_b32 v2, 7, v2
v_lshl_or_b32 v1, v1, 3, v2
s_and_b32 {t0}, {sWave}, 3
s_lshl_b32 {t0}, {t0}, 12
v_add_u32 {v(WA)}, {t0}, v1'''.split('\n')
KSET+=[f'v_xor_b32 {v(WA+c)}, {16*c}, {v(WA)}' for c in range(1,8)]
KSET+=[f'v_add_u32 {v(WA+8+c)}, {XR}, {v(WA+c)}' for c in range(8)]
KSET+=f'''v_bfe_u32 v1, v0, 2, 2
v_lshrrev_b32 v2, 5, v0
v_lshl_add_u32 v3, v2, 3, v1
v_lshlrev_b32 v3, 7, v3
v_and_b32 v20, 1, v1
v_lshl_or_b32 v20, v2, 1, v20
v_lshrrev_b32 v1, 1, v1
v_lshl_or_b32 v20, v1, 3, v20
v_bfe_u32 v1, v0, 4, 1
v_and_b32 v2, 3, v0
v_lshl_add_u32 v1, v1, 2, v2
v_xor_b32 v20, v20, v1
v_lshl_add_u32 v20, v20, 3, v3
s_lshr_b32 {t0}, {sWave}, 1
s_and_b32 {t1}, {sWave}, 1
s_lshl_b32 {t1}, {t1}, 6
s_and_b32 {t2}, {t0}, 1
s_lshl_b32 {sA0}, {t2}, 6
s_lshl_b32 {t2}, {t2}, 14
s_lshr_b32 {t3}, {t0}, 1
s_mul_i32 {sA1}, {t3}, 98304
s_add_u32 {t2}, {t2}, {sA1}
s_lshl_b32 {t3}, {t3}, 14
s_add_u32 {t3}, {t3}, 131072
v_xor_b32 v22, {sA0}, v20
v_xor_b32 v20, {t1}, v20
v_xor_b32 v21, 32, v20
v_xor_b32 v23, 32, v22
v_add_u32 v20, {t2}, v20
v_add_u32 v21, {t2}, v21
v_add_u32 v22, {t3}, v22
v_add_u32 v23, {t3}, v23
s_add_u32 {sA0}, {sH0}, {t0}
s_lshl_b32 {sA0}, {sA0}, 1
s_and_b32 {t1}, {sWave}, 1
s_add_u32 {sA0}, {sA0}, {t1}
s_lshl_b32 {sA0}, {sA0}, 6
s_add_u32 {sA0}, {sA0}, {sTB}
s_lshl_b32 {sA0}, {sA0}, 9
s_add_u32 {sA0}, {sA0}, {WS_P1}
s_add_u32 {sA1}, {sA0}, 16384
v_lshrrev_b32 v1, 5, v0
v_and_b32 v2, 31, v0
v_lshlrev_b32 v2, 4, v2
v_lshl_or_b32 v143, v1, 13, v2'''.split('\n')
WP=120
PK=64;Pp=72;E=88;S=116;O=160;PK2=48;Pp2=176
r0=wphi_reads(64,148,0); r1=wphi_reads(80,148,1568)
ex={4:r0[:11],5:r0[11:]+r1[:6],6:r1[6:], 7:wphi_pack(64,WP), 8:wphi_pack(80,WP+8), 25:[lambda: wait_ks(R3(0,3))]+s2_reads(R3(0,3))[:6], 26:s2_reads(R3(0,3))[6:]}
emit_list(s2_setup()+KSET)
gemm1(3,1,{7:s2_dmas(R3(0,3)),8:s2_dmas([3,4])},S1+[dma(vL16, sM, sA2, sLW, MISC, 's1')],extra=ex)
stamp(2)
def wr_tile(src, base, n):
    hi = 4 if (base&64) else 0; b=base&~64
    if b>=XR: hi+=8; b-=XR
    return [f'ds_write_b64 {v(WA+hi+q)}, {v(src+2*q,2)} offset:{b}' for q in range(n)]
def v_tile(t, arr, tmp):
    a=ACC+16*t
    L=[f'v_cndmask_b32 {v(a+12)}, {v(a+12)}, 1.0, {sHi}']
    L+=[f'v_cvt_pk_bf16_f32 {v(tmp+i)}, {v(a+2*i)}, {v(a+2*i+1)}' for i in range(8)]
    return L+wr_tile(tmp, arr, 4)
emit_list(feat(ACC, WP, PK, Pp))
k.I(f's_cmp_ge_u32 {sWave}, 4\ns_cbranch_scc1 L_KV1')
st=k.state()
emit_list(feat(ACC+16, WP+8, PK2, Pp2))
emit_list(v_tile(2,VV[0],152))
E2=ACC; S2_=ACC+28; O2=ACC+32
for a_,b_ in zip(feat2(Pp,E,S,True,O)+wr_tile(O,PHI[0],8), feat2(Pp2,E2,S2_,True,O2)+wr_tile(O2,PHI[1],8)): k.I(a_); k.I(b_)
k.force_wait(lg=0)
k.label('L_KV2'); k.nop(2)
k.I('s_barrier')
stamp(3)
k.I(f's_cmp_ge_u32 {sWave}, 6\ns_cbranch_scc1 L_KV3')
KA=64; KB=96; KD=176
for ks in range(8):
    for i in range(2):
        k.I(f'ds_read_b64_tr_b16 {v(KA+4*ks+2*i,2)}, {v(RA+i)} offset:{2048*ks+512*i}')
        k.I(f'ds_read_b64_tr_b16 {v(KB+4*ks+2*i,2)}, {v(RA+2+i)} offset:{2048*ks+512*i}')
    if ks>=2: k.I(f'v_mfma_f32_32x32x16_bf16 {v(KD,16)}, {v(KA+4*(ks-2),4)}, {v(KB+4*(ks-2),4)}, {"0" if ks==2 else v(KD,16)}')
for ks in (6,7): k.I(f'v_mfma_f32_32x32x16_bf16 {v(KD,16)}, {v(KA+4*ks,4)}, {v(KB+4*ks,4)}, {v(KD,16)}')
for s in range(2):
    for j in range(4): k.I(f'v_cvt_pk_bf16_f32 {v(O+4*s+j)}, {v(KD+8*s+2*j)}, {v(KD+8*s+2*j+1) if j<3 else "0"}')
    k.I(f'v_or_b32 {v(O+4*s+3)}, {sTagH}, {v(O+4*s+3)}')
    k.I(f'buffer_store_dwordx4 {v(O+4*s,4)}, v143, {sWS}, {sA0 if s==0 else sA1} offen sc1')
k.label('L_KV3'); k.nop(4)
k.I('s_barrier')
stamp(4)
k.vm=[(set(),'k4')]
KVE=[9,10,11][:int(OPT.get('kve','2'))]
emit_list(s2_dmas([5,6,7,8]+[x for x in [9,10,11] if x not in KVE]))
wait_ks([4]); emit_list(s2_reads([3,4])); k.waitcnt(lg=0); emit_list(s2_dmas([12,13]))
wait_ks([5,6,7,8]); emit_list(s2_reads([5,6,7,8])); k.waitcnt(lg=0); emit_list(s2_dmas([14]))
k.I(fl0)
stamp(9)
k.I('s_branch L_S2')
k.label('L_KV1'); k.set_state(st)
emit_list(v_tile(1,VV[1],152)+v_tile(2,VV[2],176))
emit_list(s2_dmas(KVE,True))
emit_list(feat2(Pp,E,S,True,O)+wr_tile(O,PHI[2],8))
k.force_wait(vm=0,lg=0)
k.I('s_branch L_KV2')

k.label('L_Q'); k.set_state(st_q)
k.c('Q role')
srd(sM,2,16*1568)
k.I(f'''s_sub_u32 {sRole}, {sRole}, 14
s_lshl_b32 {sH0}, {sRole}, 3
s_add_u32 {sH0}, {sH0}, {sWave}
s_mul_i32 {sA1}, {sH0}, 56
s_sub_u32 {sA1}, {sA1}, {sB0}
s_lshl_b32 {sA0}, {sA0}, 6
s_mul_i32 {sA2}, {sH0}, 1568
s_lshl_b32 {sA3}, {sWave}, 11
s_add_u32 {sT2}, {sA3}, {MISC}''')
wphi_lane(148, sT2)
k.I(f'''v_lshl_add_u32 v26, v29, 3, {sA1}
v_mov_b32 v1, {sA0}
v_cmp_eq_u32 vcc, 7, v29
v_cndmask_b32 v26, v26, v1, vcc''')
a_addr(0,26)
k.I(f'''v_and_b32 v2, 3, v0
v_lshlrev_b32 v2, 6, v2
v_xor_b32 v2, v2, v1
v_lshl_add_u32 v9, v0, 9, v2
s_mul_i32 {sT1}, {sWave}, 43
s_lshr_b32 {sT1}, {sT1}, 7
s_mul_i32 {sT1}, {sT1}, 3
s_sub_u32 {sT1}, {sWave}, {sT1}
s_lshl_b32 {sT1}, {sT1}, 15
v_add_u32 v9, {sT1}, v9''')
tags()
def gate(s):
    lab=newlab('g')
    if s==0: k.I('v_mov_b32 v34, v32\nv_mov_b32 v35, 0')
    k.I(f's_cmp_lg_u32 {sWave}, {s}\ns_cbranch_scc1 {lab}')
    k.I('ds_write_b64 v9, v[34:35]')
    k.label(lab)
WP=128; EQ=24
r0=wphi_reads(48,148,0)
QSET=f'''v_and_b32 v1, 3, v0
v_bfe_u32 v2, v0, 3, 1
v_lshl_add_u32 v1, v2, 2, v1
v_bfe_u32 v2, v0, 4, 1
v_bfe_u32 v3, v0, 2, 1
v_lshl_add_u32 v3, v2, 1, v3
v_mul_u32_u24 v3, 7, v3
v_add_u32 v3, v3, v1
v_lshl_add_u32 v2, v2, 3, v1
v_cmp_eq_u32 s[86:87], 15, v2
v_mov_b32 v2, 28
v_cmp_eq_u32 vcc, 7, v1
v_cndmask_b32 v3, v3, v2, vcc
v_lshlrev_b32 v20, 2, v3
v_add_u32 v36, 128, v20
v_mov_b32 v21, 0x3f800000
v_mov_b32 v22, 0x3f80
v_lshlrev_b32 v23, 7, v0
s_and_b32 s84, {sTB}, 1
s_lshl_b32 s84, s84, 2
s_and_b32 s85, {sH0}, 11
s_add_u32 s84, s84, s85
s_lshl_b32 s84, s84, 3
s_lshr_b32 s85, {sTB}, 1
s_add_u32 s84, s84, s85
s_lshl_b32 {sA1}, s84, 9
s_add_u32 {sA1}, {sA1}, {WS_P2}
s_lshl_b32 {sA0}, s84, 13
s_add_u32 {sA0}, {sA0}, {WS_P1}'''.split('\n')
ex={4:r0[:8],5:r0[8:],6:wphi_pack(48,WP),19:[(f'buffer_load_dword v147, v23, {sWS}, {sA0} offen','pf')]}
emit_list(QSET)
gemm1(1,4,{},S1+[dma(vL16, sM, sA2, sA3, MISC, 's1'), dma(vL16, sM, (sA2,1024), sA3, MISC+1024, 's1')],masked=True,pre_barrier=gate,extra=ex)
stamp(2)
PK=88;E=136;S=164;GG=168
k.I('v_mov_b32 v19, v36')
PP=[96,112]
emit_list(feat(ACC, WP, PK, PP[0]))
for t in range(4): k.I(f'v_mul_f32 {v(GG+t)}, s40, {v(ACC+16*t+12)}')
for t in range(4): k.I(f'v_min_f32 {v(GG+t)}, {f2u(86.0)}, {v(GG+t)}')
for t in range(4): k.I(f'v_exp_f32 {v(GG+t)}, {v(GG+t)}')
for t in range(4): k.I(f'v_mul_f32 {v(GG+t)}, s40, {v(GG+t)}')
for t in range(4): k.I(f'v_mov_b32 {v(172+t)}, {v(GG+t)}')
for t in range(4): k.I(f'v_permlane32_swap_b32 {v(172+t)}, {v(GG+t)}')
k.I(f's_cmp_lg_u32 {sH0}, 0\ns_cbranch_scc1 L_Q1')
st=k.state()
k.I(f'''v_cndmask_b32 v2, {v(GG)}, {v(GG+1)}, {sHi}
v_cndmask_b32 v10, {v(GG+2)}, {v(GG+3)}, {sHi}
v_add_f32 v2, s40, v2
v_add_f32 v10, s40, v10
v_rcp_f32 v2, v2
v_rcp_f32 v10, v10
v_mov_b32 v3, {sTag}
v_mov_b32 v11, {sTag}
v_lshlrev_b32 v1, 3, v0
s_lshl_b32 {sT1}, {sTB}, 10
s_add_u32 {sT1}, {sT1}, {WS_G}
buffer_store_dwordx2 v[2:3], v1, {sWS}, {sT1} offen sc1
buffer_store_dwordx2 v[10:11], v1, {sWS}, {sT1} offen offset:512 sc1''')
k.label('L_Q1'); k.set_state(st)
emit_list(feat(ACC+16, WP, 176, PP[1]))
for a_,b_ in zip(feat2(PP[0],E,S,True,EQ), feat2(PP[1],ACC,ACC+28,True,EQ+16)): k.I(a_); k.I(b_)
emit_list(feat(ACC+32, WP, PK, PP[0])+feat(ACC+48, WP, 176, PP[1]))
for a_,b_ in zip(feat2(PP[0],E,S,True,EQ+32), feat2(PP[1],ACC,ACC+28,True,EQ+48)): k.I(a_); k.I(b_)
stamp(3)
k.I(f'''s_lshl_b32 {sA2}, {sH0}, 12
s_add_u32 {sA2}, {sA2}, {WS_P2}
s_cmp_ge_u32 {sWave}, 4
s_cbranch_scc1 L_Q2''')
k.I(f's_add_u32 {sT1}, {sA0}, 4096')
R0=96; U0=ACC
poll([f'buffer_load_dwordx4 {v(R0+4*i,4)}, {v(vL16)}, {sWS}, {[sA0,sT1][i>>2]} offen offset:{(i&3)*1024} sc1' for i in range(8)],
     [(R0+4*i+3,sT16,1) for i in range(8)],'p1')
stamp(6)
if 'nodot' in OPT:
    for i in range(8):
        for j in range(4):
            k.I(f'v_lshlrev_b32 {v(U0+8*i+2*j)}, 16, {v(R0+4*i+j)}')
            k.I(f'v_and_b32 {v(U0+8*i+2*j+1)}, 0xffff0000, {v(R0+4*i+j)}')
    for st_ in (32,16,8):
        for j in range(0,st_,2): k.I(f'v_pk_add_f32 {v(U0+j,2)}, {v(U0+j,2)}, {v(U0+st_+j,2)}')
else:
    for j in range(4):
        k.I(f'v_lshlrev_b32 {v(U0+2*j)}, 16, {v(R0+j)}')
        k.I(f'v_and_b32 {v(U0+2*j+1)}, 0xffff0000, {v(R0+j)}')
    for i in range(1,8):
        for j in range(7):
            k.I(f'v_dot2c_f32_bf16 {v(U0+j)}, {v(R0+4*i+j//2)}, {v(22 if j%2==0 else 21)}')
    k.nop(3)
for j in range(4): k.I(f'v_permlane32_swap_b32 {v(U0+j)}, {v(U0+4+j)}')
for j in range(0,4,2): k.I(f'v_pk_add_f32 {v(U0+j,2)}, {v(U0+j,2)}, {v(U0+4+j,2)}')
k.I(f'''v_cvt_pk_bf16_f32 v12, {v(U0)}, {v(U0+1)}
v_cvt_pk_bf16_f32 v13, {v(U0+2)}, {v(U0+3)}
ds_bpermute_b32 v8, v20, v12
ds_bpermute_b32 v9, v20, v13
ds_bpermute_b32 v10, v19, v12
ds_bpermute_b32 v11, v19, v13
v_and_b32 v11, 0xffff, v11
v_or_b32 v11, {sTagH}, v11
s_not_b64 exec, {sHi}
buffer_store_dwordx4 v[8:11], {v(vL16)}, {sWS}, {sA1} offen sc1
s_mov_b64 exec, -1''')
k.label('L_Q2'); k.nop(2)
if 'nop2bar' not in OPT: k.I('s_barrier')
stamp(7)
KV=136
k.I(f'''s_lshl_b32 {sA0}, {sTB}, 6
s_add_u32 {sA0}, {sA0}, {sH0}
s_lshl_b32 {sA0}, {sA0}, 11
s_add_u32 {sA0}, {sA0}, {WS_O}
s_mov_b32 {sT1}, {f2u(1e-6)}''')
poll([f'buffer_load_dwordx4 {v(KV+4*i,4)}, {v(vL16)}, {sWS}, {sA2} offen offset:{i*1024} sc1' for i in range(4)],
     [(KV+4*i+3,sT16,1) for i in range(4)],'p2')
stamp(4)
def omf(t):
    d=v(ACC+16*t,16)
    return [f'v_mfma_f32_32x32x16_bf16 {d}, {v(KV+4*i,4)}, {v(EQ+16*t+4*i,4)}, {"0" if i==0 else d}' for i in range(4)]
def ofin(t):
    p=ACC+16*t; o=96+8*t; c=8+t
    L=[f'v_add_f32 {v(c)}, {sT1}, {v(p+7)}', f'v_rcp_f32 {v(c)}, {v(c)}', f'v_mul_f32 {v(c)}, {v(c)}, {v(GG+t)}']
    for s in range(2):
        L+=[f'v_mul_f32 {v(p+8*s+j)}, {v(c)}, {v(p+8*s+j)}' for j in range(7)]
        L+=[f'v_cvt_pk_bf16_f32 {v(o+4*s+j)}, {v(p+8*s+2*j)}, {v(p+8*s+2*j+1) if j<3 else "0"}' for j in range(4)]
        L.append(f'v_or_b32 {v(o+4*s+3)}, {sTagH}, {v(o+4*s+3)}')
        L.append(f'buffer_store_dwordx4 {v(o+4*s,4)}, {v(vL16)}, {sWS}, {sA0} offen offset:{1024*s} sc1')
    L.append(f's_add_u32 {sA0}, {sA0}, 32768')
    return L
emit_list(omf(0)+omf(1))
emit_list(interleave(omf(2),ofin(0)))
emit_list(interleave(omf(3),ofin(1)))
emit_list(ofin(2)+ofin(3))
k.I(f'''s_lshl_b32 {sA0}, {sTB}, 4
s_add_u32 {sA0}, {sA0}, {sH0}
s_lshl_b32 {sA0}, {sA0}, 7
s_add_u32 {sA0}, {sA0}, {WS_FO}''')
flag_store(sA0)
stamp(5)
k.I(f's_cmp_lg_u32 s2, 0\ns_cbranch_scc1 L_Qend\ns_cmp_lg_u32 {sWave}, 0\ns_cbranch_scc1 L_Qend')
k.I('v_lshlrev_b32 v1, 7, v0')
k.I(f's_mov_b32 {sA0}, {WS_FA}\ns_mov_b32 {sA1}, {WS_FA+8192}\ns_mov_b32 {sT0}, {WS_FO}\ns_mov_b32 {sT1}, {WS_FO+8192}\ns_mov_b32 {sT2}, {WS_FO+16384}\ns_mov_b32 {sT3}, {WS_FO+24576}')
poll([f'buffer_load_dword {v(8+i)}, v1, {sWS}, {s} offen sc1' for i,s in enumerate([sA0,sA1,sT0,sT1,sT2,sT3])],[(8+i,sTag,0) for i in range(6)],'ep')
k.I(f's_mov_b32 {sA0}, {WS_EPOCH}')
flag_store(sA0)
k.label('L_Qend'); k.nop(2)
stamp(15)
dump_stamps()
k.label('L_end')
k.I('s_endpgm')
k.label('L_codeend')
k.raw(f""".section .rodata,"a"
.p2align 6
.amdhsa_kernel {NAME}_kernel
  .amdhsa_next_free_vgpr 256
  .amdhsa_next_free_sgpr 102
  .amdhsa_accum_offset 256
  .amdhsa_group_segment_fixed_size 0
  .amdhsa_kernarg_size 96
  .amdhsa_user_sgpr_count 2
  .amdhsa_user_sgpr_kernarg_segment_ptr 1
  .amdhsa_system_sgpr_workgroup_id_x 1
.end_amdhsa_kernel""")
open(OUT,'w').write(k.text())
print('instructions', k.nins)
```

```python
import sys, struct
from emit import K, interleave
NAME = "gated_mix__linear_kernel_hedgehog__dense_activation_mish__prompt"
TS = '--ts' in sys.argv
CLK = 's_memtime' if '--cyc' in sys.argv else 's_memrealtime'
OPT = {a[2:].split('=')[0]:(a.split('=')[1] if '=' in a else '1') for a in sys.argv[1:] if a.startswith('--')}
OUT = [a for a in sys.argv[1:] if not a.startswith('--')][0]

def f2u(x): return struct.unpack('<I', struct.pack('<f', x))[0]
LOG2E = 1.4426950408889634; LN2 = 0.6931471805599453

WB=int(OPT.get('wb','0'),0)
WS_EPOCH=0; WS_FA=WB+0x20000; WS_FO=WB+0x24000; WS_G=WB+0x2C000; WS_P2=WB+0x30000; WS_P1=WB+0x100000; WS_O=WB+0x500000; WS_ACT=WB+0x800000; WS_TS=0xF000000
WR=0; XR=96*1024; MISC=144*1024; LDS_BYTES=160*1024
SPIN=200000

sRot='s3'; sR6='s6'; sR7='s7'
sX='s[8:11]'; sW='s[12:15]'; sWS='s[16:19]'; sW2='s[20:23]'; sWO='s[24:27]'; sOUT='s[28:31]'; sM='s[32:35]'; sG='s[36:39]'
sL2='s[40:41]'
sLn='s[42:43]'
sWave='s44'; sTB='s45'; sRole='s46'; sT64='s47'; sCT='s48'; sTag='s49'; sTagH='s50'
sLW='s51'
sT0='s52'; sT1='s53'; sT2='s54'; sT3='s55'
sMask='s[56:57]'; sHi='s[58:59]'
sW2b='s60'; sWOb='s61'; sL4='s62'; sL2k='s63'
sSpin='s88'; sH0='s89'; sA0='s90'; sA1='s91'
sTS=92
sI='s94'; sStr='s95'; sB0='s96'; sE='s97'; sA2='s98'; sA3='s99'
sRa='s4'; sRb='s5'
sFA='s81'; sAC='s82'; sGB='s83'; sOB='s78'; sFO='s79'
sT16='s80'
P = lambda i: 64+2*i

def v(a,n=1): return f'v{a}' if n==1 else f'v[{a}:{a+n-1}]'

k=K()
nlab=[0]
def newlab(p):
    nlab[0]+=1; return f'L_{p}_{nlab[0]}'

def srd(dst, ptr, size):
    d=int(dst[2:dst.index(':')])
    k.I(f's_mov_b32 s{d}, s{P(ptr)}\ns_mov_b32 s{d+1}, s{P(ptr)+1}\ns_mov_b32 s{d+2}, {size}\ns_mov_b32 s{d+3}, 0x20000')

NSTAMP=16
def tsreg(i): return sTS+i if i<2 else 64+i-2
def stamp(i):
    if 'gts' in OPT and i not in (1,2,15): return
    if 's2ts' in OPT and i not in (2,6,10,11,15): return
    gstamp(i)
def gstamp(i):
    if not TS: return
    k.I(CLK+' s[100:101]'); k.force_wait(lg=0); k.I(f's_mov_b32 s{tsreg(i)}, s100')
def stamp_init():
    if not TS: return
    for i in range(1,NSTAMP): k.I(f's_mov_b32 s{tsreg(i)}, 0')
def dump_stamps():
    if 'padto' in OPT:
        lab=newlab('pad'); k.label(lab)
        k.I('s_memrealtime s[100:101]'); k.force_wait(lg=0)
        k.I(f's_sub_u32 {sT0}, s100, s{sTS}\ns_cmp_lt_u32 {sT0}, {OPT["padto"]}\ns_cbranch_scc1 {lab}')
        return
    if not TS: return
    k.I('s_mov_b64 exec, 1')
    k.I(f's_lshl_b32 {sT0}, s2, 3\ns_add_u32 {sT0}, {sT0}, {sWave}\ns_lshl_b32 {sT0}, {sT0}, 7\ns_add_u32 {sT0}, {sT0}, {WS_TS}\nv_mov_b32 v1, 0\nv_mov_b32 v3, 0')
    for i in range(NSTAMP):
        k.I(f'v_mov_b32 v2, s{tsreg(i)}')
        k.I(f'buffer_store_dwordx2 v[2:3], v1, {sWS}, {sT0} offen offset:{8*i}')

vLane=0; vW=4; vX=5; vW2=6; vL16=7
vA=8; vB=16; vC=20
WREG=24
FB=152; FA=160; ACC=192
vPF=143
vS2=136

def dma(voff, srd_, soff, ldsbase, ldsconst, tag, masked=False, pre='', post=''):
    L=[]
    if pre: L.append(pre)
    L.append(f's_add_u32 m0, {ldsbase}, {ldsconst}')
    so=sT0
    if isinstance(soff,int): L.append(f's_mov_b32 {sT0}, {soff}')
    elif isinstance(soff,str): so=soff
    else: L.append(f's_add_u32 {sT0}, {soff[0]}, {soff[1]}')
    if masked: L.append(f's_mov_b64 exec, {sMask}')
    L.append(f'buffer_load_dwordx4 {v(voff)}, {srd_}, {so} offen lds')
    if masked: L.append('s_mov_b64 exec, -1')
    if post: L.append(post)
    return ('\n'.join(L), tag)

ROT0 = 'rot7' in OPT
def chunk_expr(s, dst, tmp):
    if ROT0: return f's_add_u32 {dst}, {sRot}, {s}\ns_sub_u32 {tmp}, {dst}, 7\ns_cmp_ge_u32 {dst}, 7\ns_cselect_b32 {dst}, {tmp}, {dst}'
    if s==0: return f's_mov_b32 {dst}, 0'
    return f's_add_u32 {dst}, {sRot}, {s}\ns_sub_u32 {tmp}, {dst}, 6\ns_cmp_ge_u32 {dst}, 7\ns_cselect_b32 {dst}, {tmp}, {dst}'
def s1_dmas(s, masked=False):
    slot=s%3; L=[]
    pre=chunk_expr(s,sR6,sR7)+f'\ns_mul_i32 {sR7}, {sR6}, {sStr}\ns_lshl_b32 {sR7}, {sR7}, 2\ns_lshl_b32 {sR6}, {sR6}, 7'
    for m in range(2): L.append(dma(vX, sX, (sR6,64*m*896) if m else sR6, sLW, XR+slot*16384+m*8192, f's{s}', pre=pre if m==0 else ''))
    for m in range(4): L.append(dma(vW, sW, sR7, sLW, WR+slot*32768+m*8192, f's{s}', masked, post=f's_add_u32 {sR7}, {sR7}, {sStr}' if m<3 else ''))
    return L

PSLOT=[1,2,0,1,2,0]
def ks_lds(ks):
    p,i=divmod(ks,3); s=PSLOT[p]
    if i<2: return ('W', WR+s*32768+i*2048)
    return ('X', s*16384)
def kidx(ks, dst, tmp):
    if 'norot2' in OPT: return f's_mov_b32 {dst}, {ks}'
    if ks<8: return f's_add_u32 {dst}, {sRa}, {ks}\ns_and_b32 {dst}, {dst}, 7'
    return f's_add_u32 {dst}, {sRb}, {ks}\ns_sub_u32 {tmp}, {dst}, 6\ns_cmp_ge_u32 {dst}, 14\ns_cselect_b32 {dst}, {tmp}, {dst}'
def s2_dma_ks(ks, both=False):
    L=[]; kind,off=ks_lds(ks)
    base = sL4 if kind=='W' else sL2k
    dl = 16384 if kind=='W' else 8192
    tag=f'k{ks}'
    assert ks<14 or not both
    if ks<14:
        pre=kidx(ks,sT1,sT2)+f'\ns_mul_i32 {sT1}, {sT1}, {16*896}\ns_add_u32 {sT1}, {sT1}, {sW2b}'
        T=[dma(vW2, sW2, sT1, base, off, tag, pre=pre), dma(vW2, sW2, (sT1,8*896), base, off+1024, tag)]
        if both:
            m=lambda x: x & 0xffffffff
            T+=[dma(vW2, sW2, (sT1,m(-4*224*896)), base, m(off-dl), tag), dma(vW2, sW2, (sT1,m(8*896-4*224*896)), base, m(off+1024-dl), tag)]
        return [('\n'.join(t[0] for t in T),tag)]
    hd,s=divmod(ks-14,2)
    return [dma(vW2, sWO, (sWOb,(28*hd+14*s+8*h)*896), base, off+1024*h, tag) for h in range(2)]
def s2_dmas(kss, both=False): return [d for ks in kss for d in s2_dma_ks(ks,both)]
def wait_ks(kss):
    for ks in kss: k.wait_tag(f'k{ks}')
def wreg(ks,ct): return WREG+8*ks+4*ct
def s2_reads(kss, base=None, obase=None):
    base = vS2 if base is None else base
    L=[]
    for ks in kss:
        kind,off=ks_lds(ks)
        if ks<14:
            if kind=='W':
                a=base
                if off>=65536: a+=2; off-=65536
            else: a=base+4
            st=1024
        else:
            a = obase if kind=='W' else obase+2
            st=512
        for ct in range(2):
            for i in range(2):
                L.append(f'ds_read_b64_tr_b16 {v(wreg(ks,ct)+2*i,2)}, {v(a+ct)} offset:{off+st*i}')
    return L
R3=lambda a,b: list(range(a,b))

def emit_list(L):
    for x in L:
        if callable(x): x()
        elif isinstance(x,tuple): k.I(x[0],x[1])
        else: k.I(x)

def gemm1(NA, NB, tail, first, masked=False, pre_barrier=None, extra=None):
    extra = extra or {}
    if MPG>=0: extra.setdefault(MPG,[]).extend(MPF)
    if 'dose' in OPT:
        g0=int(OPT['dose']); stp=int(OPT.get('dstep','3')); nd_=-(-49//DL)
        for j in range(nd_):
            extra.setdefault(g0+stp*j,[]).append((f's_mov_b32 {sT0}, {j*DL*128}\nbuffer_load_dword v{146+(j&1)}, v144, {sW2}, {sT0} offen','pf'))
        extra.setdefault(g0+stp*nd_,[]).append((f'buffer_load_dword v150, v145, {sWO}, 0 offen','pf'))
    if NB==1: fa=lambda b,t: FA+16*b+4*t; fb=lambda b,t: FB+4*b
    else:     fa=lambda b,t: FB+4*b;      fb=lambda b,t: FA+16*b+4*t
    def reads(g):
        s,ks=divmod(g,4); slot=s%3; b=g&1; A=[];B=[]
        for t in range(NB):
            B.append(f'ds_read_b128 {v(fb(b,t),4)}, {v(vB+ks)} offset:{slot*16384+t*4096}')
        for t in range(NA):
            a=vA+t+(4 if slot==2 else 0); off=(slot&1)*32768+ks*8192
            A.append([f'ds_read_b64_tr_b16 {v(fa(b,t)+2*i,2)}, {v(a)} offset:{off+2048*i}' for i in range(2)])
        if NB==1: return B+[x for l in A for x in l]
        return A[0]+B
    def mfmas(g):
        b=g&1; L=[]
        for ta in range(NA):
            for tb in range(NB):
                d=v(ACC+16*(ta*NB+tb),16)
                c = '0' if g==0 else d
                L.append(f'v_mfma_f32_32x32x16_bf16 {d}, {v(fa(b,ta),4)}, {v(fb(b,tb),4)}, {c}')
        return L
    emit_list(first)
    if pre_barrier: pre_barrier(0)
    k.wait_tag('s0'); k.force_wait(lg=0); k.I('s_barrier')
    stamp(1)
    emit_list(reads(0))
    pend=s1_dmas(2,masked)
    for g in range(28):
        M=mfmas(g)
        if (g+1)%4==0:
            s=(g+1)//4
            if pre_barrier and s<7: pre_barrier(s)
            k.force_wait(lg=0)
            k.I(M[0]); M=M[1:]
            if s<7: k.wait_tag(f's{s}')
            k.I('s_barrier')
            if 'gts' in OPT and s<7: gstamp(8+s)
            n=s+2
            pend = s1_dmas(n,masked) if n<7 else list(tail.get(n,[]))
        ex = reads(g+1) if g+1<28 else []
        nd = (2 if g<19 else 1) if g<27 else 0
        d=pend[:nd]; pend=pend[nd:]
        if (g+2)%4==0 and g<27: d+=pend; pend=[]
        emit_list(interleave(M, ex+d+extra.get(g,[])))

def cmp_all(checks):
    first=True
    for r,s,hi in checks:
        dst = 'vcc' if first else sMask
        if hi: k.I(f'v_cmp_ne_u16_sdwa {dst}, {v(r)}, {s} src0_sel:WORD_1 src1_sel:WORD_0')
        else: k.I(f'v_cmp_ne_u32 {dst}, {s}, {v(r)}')
        if not first: k.I(f's_or_b64 vcc, vcc, {sMask}')
        first=False
    k.nop(1)
def poll(loads, checks, name):
    lab=newlab(name); done=newlab(name+'d')
    k.I(f's_mov_b32 {sSpin}, {SPIN}')
    k.nop(2)
    k.label(lab)
    for l in loads: k.I(l)
    k.force_wait(vm=0)
    cmp_all(checks)
    k.I(f's_cmp_eq_u64 vcc, 0\ns_cbranch_scc1 {done}')
    if 'sleep' in OPT: k.I(f's_sleep {OPT["sleep"]}')
    k.I(f's_sub_u32 {sSpin}, {sSpin}, 1\ns_cmp_lg_u32 {sSpin}, 0\ns_cbranch_scc1 {lab}')
    k.label(done)
def check_or_poll(loads, checks, name, hint=None):
    done=newlab(name+'ok')
    cmp_all(checks)
    k.I(f's_cmp_eq_u64 vcc, 0\ns_cbranch_scc1 {done}')
    st=k.state()
    if hint: poll(hint[0],hint[1],name+'h')
    poll(loads,checks,name)
    k.label(done); k.set_state(st)

def flag_store(soff_sgpr):
    k.I(f'v_mov_b32 v1, {sTag}\nv_mov_b32 v2, 0\ns_mov_b64 exec, 1')
    k.I(f'buffer_store_dword v1, v2, {sWS}, {soff_sgpr} offen sc1')
    k.I('s_mov_b64 exec, -1')

k.raw(f'; @launch grid=(256,1,1) block=(512,1,1) lds={LDS_BYTES}')
k.raw('.amdgcn_target "amdgcn-amd-amdhsa--gfx950"\n.text')
k.raw(f'.globl {NAME}_kernel\n.p2align 8\n.type {NAME}_kernel,@function\n{NAME}_kernel:')
k.I('s_cmp_ge_u32 s2, 256\ns_cbranch_scc1 L_end')
k.I('s_load_dwordx16 s[64:79], s[0:1], 0\ns_load_dwordx8 s[80:87], s[0:1], 64')
if TS or 'padto' in OPT: k.I(CLK+' s[100:101]')
k.I('s_getpc_b64 s[4:5]'); k.label('L_pc')
k.I(f'''v_lshrrev_b32 v1, 6, v0
s_lshr_b32 {sI}, s2, 3
v_and_b32 v2, 1, v0
v_readfirstlane_b32 {sWave}, v1
v_lshl_add_u32 v2, v1, 1, v2
s_lshl_b32 {sT0}, {sI}, 4
v_add_lshl_u32 v2, v2, {sT0}, 7
v_min_u32 v2, L_codeend-L_pc-4, v2
v_and_b32 v0, 63, v0''')
if 'nocpf' not in OPT: k.I(f'global_load_dword {v(vPF)}, v2, s[4:5]','cpf')
NR = 7 if ROT0 else 6
k.I(f'''s_and_b32 {sT0}, s2, 7
s_lshr_b32 {sT3}, {sT0}, 1
s_lshl_b32 {sT1}, {sT3}, 4
s_sub_u32 {sT1}, {sT1}, 16
s_mul_i32 {sT2}, {sT3}, 12
s_add_u32 {sT2}, {sT2}, 60
s_cmp_lt_u32 {sI}, 16
s_cselect_b32 {sT1}, {sT2}, {sT1}
s_lshl_b32 {sT2}, {sT3}, 2
s_add_u32 {sT2}, {sT2}, 112
s_cmp_lt_u32 {sI}, 4
s_cselect_b32 {sT1}, {sT2}, {sT1}
s_add_u32 {sT1}, {sT1}, {sI}
s_lshr_b32 {sRole}, {sT1}, 3
s_and_b32 {sT1}, {sT1}, 7
s_and_b32 {sTB}, s2, 1
s_lshl_b32 {sTB}, {sTB}, 3
s_add_u32 {sTB}, {sTB}, {sT1}
s_lshl_b32 {sLW}, {sWave}, 10
s_mul_i32 {sT1}, {sRole}, 448
s_and_b32 {sT1}, {sT1}, 0xffffff80
s_lshl_b32 {sT2}, {sRole}, 7
s_sub_u32 {sT2}, {sT2}, 128
s_mul_i32 {sT3}, {sRole}, 384
s_sub_u32 {sT3}, {sT3}, {14*384}
s_cmp_lt_u32 {sRole}, 14
s_cselect_b32 {sB0}, {sT2}, {sT3}
s_cselect_b32 {sE}, 640, 0
s_cmp_lt_u32 {sRole}, 8
s_cselect_b32 {sB0}, {sT1}, {sB0}
s_cselect_b32 {sE}, 0, {sE}
s_movk_i32 {sStr}, 2688
s_cselect_b32 {sStr}, 3584, {sStr}
s_cmp_eq_u32 {sRole}, 14
s_cselect_b32 {sA0}, 7, 8
s_cmp_eq_u32 {sRole}, 15
s_cselect_b32 {sA0}, 0, {sA0}
s_add_u32 {sRot}, {sRole}, {sTB}
s_mul_i32 {sT1}, {sRot}, {37 if ROT0 else 43}
s_lshr_b32 {sT1}, {sT1}, 8
s_mul_i32 {sT1}, {sT1}, {NR}
s_sub_u32 {sRot}, {sRot}, {sT1}''')
if 'norot' in OPT: k.I(f's_mov_b32 {sRot}, 0')
if OPT.get('rmod')=='2': k.I(f's_and_b32 {sRot}, {sRot}, 1\ns_mul_i32 {sRot}, {sRot}, 3')
if OPT.get('rmod')=='3': k.I(f's_sub_u32 {sT1}, {sRot}, 3\ns_cmp_ge_u32 {sRot}, 3\ns_cselect_b32 {sRot}, {sT1}, {sRot}\ns_lshl_b32 {sRot}, {sRot}, 1')
k.I(f'''v_lshrrev_b32 v1, 3, v0
s_lshl_b32 {sT1}, {sWave}, 3
v_add_u32 v1, {sT1}, v1
v_lshrrev_b32 v2, 1, v1
v_xor_b32 v2, v2, v0
v_and_b32 v2, 7, v2
v_mul_u32_u24 v1, 896, v1
v_lshl_add_u32 v1, v2, 4, v1
s_mul_i32 {sT1}, {sTB}, {128*896}
v_add_u32 {v(vX)}, {sT1}, v1''')
k.I(f'''v_lshrrev_b32 v3, 5, v0
s_lshl_b32 {sT1}, {sWave}, 1
v_add_u32 v24, {sT1}, v3
v_and_b32 v25, 3, v24
v_lshlrev_b32 v25, 2, v25
v_and_b32 v26, 31, v0
v_xor_b32 v25, v25, v26
v_mul_u32_u24 v24, {sStr}, v24
v_lshl_add_u32 v24, v25, 4, v24
v_lshrrev_b32 v26, 4, v25
v_mul_u32_u24 v26, {sE}, v26
v_add3_u32 {v(vW)}, v24, v26, {sB0}
v_lshrrev_b32 v25, 2, v25
v_cmp_ne_u32 {sMask}, {sA0}, v25
s_mov_b32 s10, {2048*896}
s_mov_b32 s11, 0x20000
s_mov_b32 s15, 0x20000
s_mul_i32 s14, {sStr}, 448
s_lshl_b32 {sStr}, {sStr}, 4''')
k.force_wait(lg=0)
if TS or 'padto' in OPT: k.I(f's_mov_b32 s{sTS}, s100')
k.I(f'''s_mov_b32 s8, s{P(0)}
s_mov_b32 s9, s{P(0)+1}
s_cmp_lt_u32 {sRole}, 8
s_cselect_b32 s12, s{P(5)}, s{P(1)}
s_cselect_b32 s13, s{P(5)+1}, s{P(1)+1}''')
emit_list(s1_dmas(0,True))
k.I(f's_load_dword {sTag}, s[{P(11)}:{P(11)+1}], {WS_EPOCH}')
srd(sG,8,896)
if ROT0: k.I(f's_add_u32 {sT1}, {sWave}, {sRot}\ns_sub_u32 {sT2}, {sT1}, 7\ns_cmp_ge_u32 {sT1}, 7\ns_cselect_b32 {sT1}, {sT2}, {sT1}')
else: k.I(f's_add_u32 {sT1}, {sWave}, {sRot}\ns_sub_u32 {sT2}, {sT1}, 6\ns_cmp_ge_u32 {sT1}, 7\ns_cselect_b32 {sT1}, {sT2}, {sT1}\ns_cmp_eq_u32 {sWave}, 0\ns_cselect_b32 {sT1}, 0, {sT1}')
k.I(f's_lshl_b32 {sT1}, {sT1}, 7\nv_lshlrev_b32 v1, 1, v0\nbuffer_load_ushort v32, v1, {sG}, {sT1} offen')
k.I('s_barrier')
S1=s1_dmas(1,True)
NPRE=int(OPT.get('npre','2'))
emit_list(S1[:NPRE]); S1=S1[NPRE:]
srd(sWS,11,0x10000000); srd(sW2,7,1792*896); srd(sWO,3,448*896)
DL=int(OPT.get('dl','10'))
k.I(f'''s_lshl_b32 {sT0}, {sI}, 3
s_add_u32 {sT0}, {sT0}, {sWave}
s_mul_i32 {sT1}, {sT0}, 49
s_mul_i32 {sT2}, {sT0}, 13
v_min_u32 v1, {DL-1}, v0
v_min_u32 v2, 12, v0
v_add_lshl_u32 v144, v1, {sT1}, 7
v_add_lshl_u32 v145, v2, {sT2}, 7
s_and_b32 {sT0}, s2, 7
s_mul_i32 {sT3}, {sT0}, 7
s_add_u32 {sT1}, {sT1}, {sT3}
s_lshl_b32 {sT3}, {sT0}, 1
s_add_u32 {sT2}, {sT2}, {sT3}
v_min_u32 v1, 6, v0
v_min_u32 v2, 1, v0
v_add_lshl_u32 v150, v1, {sT1}, 7
v_add_lshl_u32 v151, v2, {sT2}, 7''')
def pf(a):
    return [(f'buffer_load_dword v146, {v(a)}, {sW2}, 0 offen','pf'),(f'buffer_load_dword v147, {v(a+1)}, {sWO}, 0 offen','pf')]
k.I(f's_lshl_b32 {sT0}, s2, 3\ns_add_u32 {sT0}, {sT0}, {sWave}\ns_and_b32 {sT0}, {sT0}, 1023\ns_lshl_b32 {sT0}, {sT0}, 7\ns_add_u32 {sT0}, {sT0}, {WS_FA}\nv_mov_b32 v33, {sT0}')
MPF=([] if 'nompf' in OPT else pf(150))+([] if 'notouch' in OPT else [(f'buffer_load_dword v33, v33, {sWS}, 0 offen','pf')])
MPG=int(OPT.get('mpg','9'))
if MPG<0: S1=S1+MPF
PFG=int(OPT.get('pfg','18'))
L2PF = pf(144) if 'l2pf' in OPT else []
k.I(f'''s_mov_b32 s40, {f2u(LOG2E)}
s_mov_b32 s41, {f2u(LOG2E)}
s_mov_b32 s42, {f2u(LOG2E)}
s_mov_b32 s43, {f2u(-LOG2E)}
s_mov_b32 s58, 0
s_mov_b32 s59, -1
v_lshlrev_b32 {v(vL16)}, 4, {v(vLane)}''')
k.I(f'''v_and_b32 v1, 31, v0
v_bfe_u32 v2, v0, 1, 3
v_xor_b32 v2, v2, v3
v_lshlrev_b32 v2, 4, v2
v_lshl_add_u32 v1, v1, 7, v2
s_and_b32 {sT0}, {sWave}, 3
s_lshl_b32 {sT0}, {sT0}, 12
s_cmp_lt_u32 {sRole}, 14
s_cselect_b32 {sT0}, {sT0}, 0
s_add_u32 {sT0}, {sT0}, {XR}
v_add_u32 {v(vB)}, {sT0}, v1
v_xor_b32 {v(vB+1)}, 32, {v(vB)}
v_xor_b32 {v(vB+2)}, 64, {v(vB)}
v_xor_b32 {v(vB+3)}, 96, {v(vB)}''')
k.I(f'''v_bfe_u32 v28, v0, 2, 2
v_lshl_add_u32 v27, v3, 3, v28
v_lshlrev_b32 v27, 9, v27
v_lshlrev_b32 v28, 6, v28
v_bfe_u32 v29, v0, 4, 1
v_and_b32 v26, 3, v0
v_lshl_add_u32 v29, v29, 2, v26''')
k.I(f's_cmp_ge_u32 {sRole}, 14\ns_cbranch_scc1 L_Q')
st_q=k.state()
srd(sOUT,9,2048*896)
def s2_setup():
    t0,t1,t2,t3='s84','s85','s86','s87'
    T=f'''s_sub_u32 {t1}, {sI}, 4
s_mul_i32 {t2}, {t1}, 37
s_lshr_b32 {t2}, {t2}, 8
s_mul_i32 {t3}, {t2}, 7
s_sub_u32 {sCT}, {t1}, {t3}
s_and_b32 {t0}, s2, 6
s_lshl_b32 {sT64}, {t0}, 1
s_andn2_b32 {t0}, 1, s2
s_lshl_b32 {t0}, {t0}, 4
s_add_u32 {sT64}, {sT64}, {t0}
s_add_u32 {sT64}, {sT64}, {t2}
s_lshl_b32 {sRa}, {t2}, 1
s_add_u32 {sRa}, {sRa}, {sCT}
s_mul_i32 {t0}, {sRa}, 43
s_lshr_b32 {t0}, {t0}, 8
s_mul_i32 {t0}, {t0}, 6
s_sub_u32 {sRb}, {sRa}, {t0}
s_mul_i32 {sW2b}, {sWave}, {224*896}
s_mul_i32 {sWOb}, {sWave}, {56*896}
s_lshl_b32 {sL4}, {sWave}, 12
s_lshl_b32 {sL2k}, {sWave}, 11
s_add_u32 {sL2k}, {sL2k}, {XR}
v_lshrrev_b32 v1, 3, v0
v_lshlrev_b32 v2, 1, v1
v_and_b32 v2, 4, v2
v_and_b32 v3, 7, v0
v_xor_b32 v2, v2, v3
v_mul_u32_u24 v1, 896, v1
v_lshl_add_u32 v1, v2, 4, v1
s_lshl_b32 {t0}, {sCT}, 7
v_add_u32 {v(vW2)}, {t0}, v1
v_lshrrev_b32 v1, 5, v0
v_lshlrev_b32 v1, 9, v1
v_bfe_u32 v2, v0, 2, 2
v_lshl_add_u32 v1, v2, 7, v1
v_lshrrev_b32 v2, 1, v2
v_lshl_add_u32 v1, v2, 6, v1
v_bfe_u32 v2, v0, 4, 1
v_lshl_add_u32 v1, v2, 5, v1
v_and_b32 v2, 3, v0
v_lshl_add_u32 v1, v2, 3, v1
v_xor_b32 v2, 64, v1
v_add_u32 {v(vS2)}, {sL4}, v1
v_add_u32 {v(vS2+1)}, {sL4}, v2
v_add_u32 {v(vS2+2)}, 0x10000, {v(vS2)}
v_add_u32 {v(vS2+3)}, 0x10000, {v(vS2+1)}
v_add_u32 {v(vS2+4)}, {sL2k}, v1
v_add_u32 {v(vS2+5)}, {sL2k}, v2
s_lshr_b32 {t1}, {sT64}, 1
s_lshl_b32 {sFA}, {t1}, 3
s_add_u32 {sFA}, {sFA}, {sWave}
s_lshl_b32 {sFA}, {sFA}, 7
s_and_b32 {t2}, {sT64}, 1
s_lshl_b32 {t2}, {t2}, 3
s_add_u32 {sFA}, {sFA}, {t2}
s_add_u32 {sFA}, {sFA}, {WS_FA}
s_mul_i32 {sAC}, {sT64}, 224
s_mul_i32 {t2}, {sWave}, 14
s_add_u32 {sAC}, {sAC}, {t2}
s_lshl_b32 {sAC}, {sAC}, 10
s_add_u32 {sAC}, {sAC}, {WS_ACT}
s_lshl_b32 {sGB}, {sT64}, 9
s_add_u32 {sGB}, {sGB}, {WS_G}
s_lshl_b32 {t2}, {sWave}, 1
s_lshl_b32 {sOB}, {sT64}, 5
s_add_u32 {sOB}, {sOB}, {t2}
s_lshl_b32 {sOB}, {sOB}, 11
s_add_u32 {sOB}, {sOB}, {WS_O}
s_add_u32 {sB0}, {sOB}, 32768
s_lshl_b32 {t1}, {t1}, 4
s_add_u32 {t1}, {t1}, {t2}
s_lshl_b32 {sFO}, {t1}, 7
s_add_u32 {sFO}, {sFO}, {WS_FO}'''
    return T.split('\n')
fl0=f'v_and_b32 v4, 1, v0\nv_lshlrev_b32 v4, 2, v4\nbuffer_load_dword v5, v4, {sWS}, {sFA} offen sc1'
def tags():
    k.force_wait(lg=0)
    k.I(f'''s_lshr_b32 {sT16}, {sTag}, 16
    s_add_u32 {sT16}, {sT16}, 0x2a5b
    s_and_b32 {sT16}, {sT16}, 0x3fff
    s_lshl_b32 {sTagH}, {sT16}, 16
    s_mul_i32 {sTag}, {sTag}, 1664525
    s_add_u32 {sTag}, {sTag}, 1013904223
    s_lshr_b32 {sTag}, {sTag}, 16
    s_or_b32 {sTag}, {sTag}, {sTagH}''')
    stamp_init(); stamp(8)
def a_addr(t, colexpr_v):
    k.I(f'''v_xor_b32 {v(vA+t)}, {v(colexpr_v)}, v28
    v_add_u32 {v(vA+t)}, {v(vA+t)}, v27
    v_add_u32 {v(vA+4+t)}, 0x10000, {v(vA+t)}''')
def spread(L, g0, g1, ex):
    n=g1-g0;
    for i in range(n):
        ex.setdefault(g0+i,[]).extend(L[i*len(L)//n:(i+1)*len(L)//n])
k.I(f's_cmp_ge_u32 {sRole}, 8\ns_cbranch_scc1 L_KV')
st_kv=k.state()

k.c('F role')
srd(sM,6,1792*2)
k.I(f'''s_mul_i32 {sT0}, {sRole}, 448
s_lshl_b32 {sT1}, {sWave}, 6
s_add_u32 {sT1}, {sT1}, {sT0}
v_and_b32 v1, 31, v0
v_lshlrev_b32 v2, 1, v1
buffer_load_ushort v148, v2, {sM}, {sT1} offen
s_lshl_b32 {sT1}, {sWave}, 7
s_add_u32 {sT1}, {sT1}, {MISC}
v_lshl_add_u32 v149, v1, 2, {sT1}
s_and_b32 {sT1}, {sT0}, 127
s_lshr_b32 {sA1}, {sWave}, 2
s_lshl_b32 {sT2}, {sA1}, 9
s_lshl_b32 {sA1}, {sA1}, 8
s_add_u32 {sA1}, {sT1}, {sA1}
s_add_u32 {sT2}, {sT2}, {MISC}
v_lshl_add_u32 v142, v3, 4, {sT2}''')
for t in range(4):
    k.I(f'v_lshl_add_u32 v26, v29, 3, {sA1}\nv_add_u32 v26, {64*t}, v26')
    a_addr(t,26)
tags()
FSET=f'''v_mov_b32 {v(vC)}, 0.5
v_mov_b32 {v(vC+1)}, 0.5
v_mov_b32 {v(vC+2)}, 1.0
v_mov_b32 {v(vC+3)}, 1.0
s_lshl_b32 {sA2}, {sTB}, 2
s_and_b32 s84, {sWave}, 3
s_add_u32 {sA2}, {sA2}, s84
s_mul_i32 {sA2}, {sA2}, 112
s_mul_i32 s84, {sRole}, 14
s_add_u32 {sA2}, {sA2}, s84
s_and_b32 s84, {sWave}, 4
s_lshl_b32 s84, s84, 1
s_add_u32 {sA2}, {sA2}, s84
s_lshl_b32 {sA2}, {sA2}, 10
s_add_u32 {sA2}, {sA2}, {WS_ACT}
s_add_u32 {sA3}, {sA2}, 4096
s_lshl_b32 {sA0}, {sTB}, 3
s_add_u32 {sA0}, {sA0}, {sRole}
s_lshl_b32 {sA0}, {sA0}, 7
s_lshl_b32 s84, {sWave}, 2
s_add_u32 {sA0}, {sA0}, s84
s_add_u32 {sA0}, {sA0}, {WS_FA}'''.split('\n')
emit_list(s2_setup()+FSET)
k.I(f's_cmp_ge_u32 {sWave}, 4\ns_cbranch_scc1 L_F3')
st_f3=k.state()

BI=104
def bias_reads(t):
    return [f'ds_read_b128 {v(BI+16*(t&1)+4*q,4)}, v142 offset:{128*t+32*q}' for q in range(4)]
def mish_tile(t, T, U, O):
    L=[]
    for hh in range(2):
        a=ACC+16*t+8*hh; b=BI+16*(t&1)+8*hh
        for i in range(0,8,2): L.append(f'v_pk_fma_f32 {v(a+i,2)}, {v(a+i,2)}, {sL2}, {v(b+i,2)}')
        for i in range(8): L.append(f'v_exp_f32 {v(T+i)}, {v(a+i)}')
        for i in range(0,8,2): L.append(f'v_pk_fma_f32 {v(U+i,2)}, {v(T+i,2)}, {v(vC,2)}, {v(vC+2,2)}')
        for i in range(0,8,2): L.append(f'v_pk_fma_f32 {v(U+i,2)}, {v(U+i,2)}, {v(T+i,2)}, {v(vC+2,2)}')
        for i in range(8): L.append(f'v_rcp_f32 {v(U+i)}, {v(U+i)}')
        for i in range(0,8,2): L.append(f'v_pk_fma_f32 {v(U+i,2)}, {v(a+i,2)}, {v(U+i,2)}, {v(a+i,2)} neg_lo:[1,0,0] neg_hi:[1,0,0]')
        for i in range(0,8,2): L.append(f'v_cvt_pk_bf16_f32 {v(O+4*hh+i//2)}, {v(U+i)}, {v(U+i+1)}')
    return L

def f_role(NT):
    ex={6:[f'v_lshlrev_b32 v148, 16, v148', f'v_mul_f32 v148, s40, v148', 'ds_write_b32 v149, v148'],
        24:bias_reads(0)+bias_reads(1), 25:[lambda: wait_ks(R3(0,3))]+s2_reads(R3(0,3))[:6], 26:s2_reads(R3(0,3))[6:]}
    gemm1(NT,1,{7:s2_dmas(R3(0,3)),8:s2_dmas(R3(3,6))},S1,extra=ex)
    stamp(2)
    T=168;U=176;O=184
    def tile(t):
        L=mish_tile(t,T,U,O)
        n=len(L)//2
        st=lambda hh: f'buffer_store_dwordx4 {v(O+4*hh,4)}, {v(vL16)}, {sWS}, {sA2 if t<2 else sA3} offen offset:{(2*(t&1)+hh)*1024} sc1'
        if 'noact' in OPT: st=lambda hh: 's_nop 0'
        return L[:n]+[st(0)]+L[n:n+6]+(bias_reads(t+2) if t+2<NT else [])+L[n+6:]+[st(1)]
    if NT==4:
        for t in range(4): emit_list(tile(t))
        stamp(9)
        wait_ks(R3(3,6)); emit_list(s2_reads(R3(3,6)))
        k.force_wait(vm=0)
        flag_store(sA0)
        stamp(4)
        k.waitcnt(lg=0); emit_list(s2_dmas(R3(12,15)))
        k.I(fl0)
        k.I('s_barrier')
        emit_list(s2_reads(R3(6,9)))
    else:
        emit_list(s2_dmas(R3(6,12),True))
        wait_ks(R3(3,6)); emit_list(s2_reads(R3(3,6))); k.waitcnt(lg=0); emit_list(s2_dmas(R3(12,15)))
        stamp(5)
        BT=int(OPT.get('bt','1'))
        for t in range(3):
            if t==BT: wait_ks(R3(6,12)); k.I('s_barrier'); emit_list(s2_reads(R3(6,9)))
            emit_list(tile(t))
        k.I(fl0)
        stamp(9)
        k.force_wait(vm=0)
        flag_store(sA0)
        stamp(4)
        k.waitcnt(lg=0)
        k.I('s_branch L_S2b')
    k.waitcnt(lg=0)
    stamp(3)

f_role(4)

k.label('L_S2'); k.force_wait(vm=0); k.label('L_S2b'); k.reset_state(); k.nop(2)
k.c('stage 2: k-steps 0-8 in regs, 9-14 landed in LDS, first-half act flag value in v5')
AD=ACC+48; OAD=20
for i in range(6): k.I(f'v_mov_b32 {v(AD+i)}, {v(vS2+i)}')
k.I(f'''v_lshrrev_b32 v2, 5, v0
v_mul_u32_u24 v2, 7, v2
v_bfe_u32 v3, v0, 2, 2
v_add_u32 v2, v2, v3
v_bfe_u32 v3, v2, 1, 1
v_lshlrev_b32 v2, 7, v2
v_lshl_add_u32 v2, v3, 6, v2
v_bfe_u32 v3, v0, 4, 1
v_lshl_add_u32 v2, v3, 5, v2
v_and_b32 v3, 3, v0
v_lshl_add_u32 v2, v3, 3, v2
v_xor_b32 v3, 64, v2
v_add_u32 {v(OAD)}, {sL4}, v2
v_add_u32 {v(OAD+1)}, {sL4}, v3
v_add_u32 {v(OAD+2)}, {sL2k}, v2
v_add_u32 {v(OAD+3)}, {sL2k}, v3
v_lshlrev_b32 v1, 5, v4''')
emit_list(s2_reads(R3(9,15),AD,OAD))
check_or_poll([f'buffer_load_dword v5, v4, {sWS}, {sFA} offen sc1'],[(5,sTag,0)],'fa')
stamp(6)
LA=int(OPT.get('la','4'))
free=[168,172,176,180,184,188,8,12,16,144,148,152,156,160,164]; where={}
def act_load(ks):
    b0=free.pop(0); b1=free.pop(0)
    if ks<14:
        where[(ks,0)]=b0; where[(ks,1)]=b1
        return [kidx(ks,sA0,sA1)+f'''
s_lshl_b32 {sA0}, {sA0}, 10
s_add_u32 {sA0}, {sA0}, {sAC}
s_add_u32 {sA1}, {sA0}, {112*1024}
buffer_load_dwordx4 {v(b0,4)}, {v(vL16)}, {sWS}, {sA0} offen sc1''', f'buffer_load_dwordx4 {v(b1,4)}, {v(vL16)}, {sWS}, {sA1} offen sc1']
    tt,q=divmod(2*(ks-14),4); L=[]
    for b in (b0,b1):
        ob[(q,tt)]=b
        L.append(f'buffer_load_dwordx4 {v(b,4)}, {v(vL16)}, {sWS}, {sOB if tt==0 else sB0} offen offset:{q*1024} sc1'); q+=1
    oloads.extend(L)
    return L
ob={}; oloads=[]
fl1=f'buffer_load_dword v2, v4, {sWS}, {sFA} offen offset:16 sc1'
hload=f'buffer_load_dword v3, v1, {sWS}, {sFO} offen sc1'
FD=int(OPT.get('fd','2'))
for ks in range(LA): emit_list(act_load(ks))
if 8-LA-FD<0: k.I(fl1)
k.waitcnt(lg=0)
S2T={0:4,2:5,4:7,6:8,7:9,8:12,10:13,12:14}
if 's2ts' in OPT: gstamp(3)
def acc2(tt,ct): return ACC+32*tt+16*ct
wo_d=s2_dmas(R3(15,18))
post=[]
for ks in range(14):
    M=[]
    for tt in range(2):
        for ct in range(2):
            d=v(acc2(tt,ct),16)
            M.append(f'v_mfma_f32_32x32x16_bf16 {d}, {v(wreg(ks,ct),4)}, {v(where[(ks,tt)],4)}, {"0" if ks==0 else d}')
    if ks>=2:
        free += [b for b in [where[(ks-2,0)],where[(ks-2,1)],wreg(ks-2,0),wreg(ks-2,1)] if not 144<=b<168]
    if ks==3: free=[b for b in free if not 144<=b<168]
    n=ks+LA
    if n==8: check_or_poll([fl1],[(2,sTag,0)],'fa1')
    if n==14: check_or_poll([hload],[(3,sTag,0)],'foh')
    X=act_load(n) if n<18 else []
    if n+FD==8: X.append(fl1)
    if n+FD==14: X.append(hload)
    if 1<=ks<7: X.append(wo_d[ks-1])
    if ks==10:
        assert all(not 144<=where[(j,t)]<168 for j in range(9,14) for t in range(2))
        X+= [lambda: wait_ks(R3(15,18))]+s2_reads(R3(15,18),AD,OAD)
    if ks==6:
        a0=free.pop(0); a1=free.pop(0); a2=free.pop(0); a3=free.pop(0); a4=free.pop(0)
        u1,u2,u3=a4,a4+1,a4+2
        t0,t1='s84','s85'
        post=f'''v_and_b32 {v(a2)}, 31, v0
v_lshrrev_b32 {v(a2+1)}, 5, v0
v_and_b32 {v(a2+2)}, 7, v0
v_xor_b32 {v(a2+1)}, {v(a2+1)}, {v(a2+2)}
v_lshlrev_b32 {v(a2+1)}, 4, {v(a2+1)}
v_lshl_or_b32 {v(a2+2)}, {v(a2)}, 7, {v(a2+1)}
v_add_u32 {v(a0)}, {sL4}, {v(a2+2)}
v_xor_b32 {v(a0+1)}, 32, {v(a0)}
v_xor_b32 {v(a0+2)}, 64, {v(a0)}
v_xor_b32 {v(a0+3)}, 96, {v(a0)}
v_lshrrev_b32 {v(a2)}, 4, {v(a2)}
v_mul_u32_u24 {v(a2)}, {16384-2048}, {v(a2)}
v_add3_u32 {v(a1)}, {v(a2)}, {v(a2+2)}, {sL2k}
v_xor_b32 {v(a1+1)}, 32, {v(a1)}
v_xor_b32 {v(a1+2)}, 64, {v(a1)}
v_xor_b32 {v(a1+3)}, 96, {v(a1)}
v_add_u32 {v(a2)}, 0x10000, {v(a0)}
v_add_u32 {v(a2+1)}, 0x10000, {v(a0+1)}
v_add_u32 {v(a2+2)}, 0x10000, {v(a0+2)}
v_add_u32 {v(a2+3)}, 0x10000, {v(a0+3)}
v_lshrrev_b32 {v(u1)}, 3, v0
v_lshlrev_b32 {v(a4+3)}, 3, {v(u1)}
v_and_b32 {v(u2)}, 3, v0
v_lshlrev_b32 {v(u2)}, 1, {v(u2)}
v_xor_b32 {v(u2)}, {v(u2)}, {v(u1)}
v_lshlrev_b32 {v(u2)}, 4, {v(u2)}
v_lshl_or_b32 {v(u2)}, {v(u1)}, 7, {v(u2)}
v_bfe_u32 {v(u3)}, v0, 2, 1
s_and_b32 {t0}, {sWave}, 3
s_lshl_b32 {t0}, {t0}, 10
s_lshr_b32 {t1}, {sWave}, 2
s_lshl_b32 {t1}, {t1}, 16
s_add_u32 {t0}, {t0}, {t1}
v_lshl_add_u32 {v(a3)}, {v(u3)}, 15, {t0}
v_add_u32 {v(a3)}, {v(a3)}, {v(u2)}
s_and_b32 {t0}, {sWave}, 1
s_lshl_b32 {t0}, {t0}, 10
s_and_b32 {t1}, {sWave}, 2
s_lshl_b32 {t1}, {t1}, 13
s_add_u32 {t0}, {t0}, {t1}
s_add_u32 {t0}, {t0}, {XR}
v_add_u32 {v(u2)}, {t0}, {v(u2)}
s_lshr_b32 {t1}, {sWave}, 2
v_and_b32 {v(u3)}, {t1}, {v(u3)}
v_cmp_eq_u32 s[86:87], 1, {v(u3)}
v_mov_b32 {v(a3+2)}, 4096
v_mov_b32 {v(a3+3)}, 2048
v_cndmask_b32 {v(a3)}, {v(a3)}, {v(u2)}, s[86:87]
v_cndmask_b32 {v(a3+2)}, {v(a3+2)}, {v(a3+3)}, s[86:87]
v_xor_b32 {v(a3+1)}, 16, {v(a3)}
v_and_b32 {v(u2)}, 7, v0
v_mul_u32_u24 {v(u1)}, 896, {v(u1)}
v_lshl_add_u32 {v(u1)}, {v(u2)}, 4, {v(u1)}
s_lshl_b32 {sA2}, {sT64}, 3
s_add_u32 {sA2}, {sA2}, {sWave}
s_lshl_b32 {sGB}, {sA2}, 6
s_add_u32 {sGB}, {sGB}, {WS_G}
s_mul_i32 {sA2}, {sA2}, {8*896}
s_lshl_b32 {t1}, {sCT}, 7
s_add_u32 {sA2}, {sA2}, {t1}'''.split('\n')
    if ks>=6 and post:
        X+=post[:16]; post=post[16:]
    gload=f'buffer_load_dwordx2 v[4:5], {v(a4+3)}, {sWS}, {sGB} offen sc1' if ks>=6 else None
    if ks==13: assert not post; X.append(gload)
    emit_list(interleave(M,X))
    if 's2ts' in OPT and ks in S2T: gstamp(S2T[ks])
for n in range(14+LA,18): emit_list(act_load(n))
stamp(10)
def wr(tt,ct):
    t=2*tt+ct
    a,off = [(a0,0),(a0,32768),(a2,0),(a1,0)][t]
    return [f'ds_write_b128 {v(a+q)}, {v(acc2(tt,ct)+4*q,4)} offset:{off}' for q in range(4)]
k.waitcnt(lg=0)
for tt in range(2):
    check_or_poll(oloads[4*tt:4*tt+4],[(ob[(q,tt)]+3,sT16,1) for q in range(4)],f'fo{tt}')
    if tt==0: stamp(11)
    for q in range(4): k.I(f'v_and_b32 {v(ob[(q,tt)]+3)}, 0xffff, {v(ob[(q,tt)]+3)}')
    for ct in range(2):
        for q in range(4):
            d=v(acc2(tt,ct),16)
            k.I(f'v_mfma_f32_32x32x16_bf16 {d}, {v(wreg(14+q,ct),4)}, {v(ob[(q,tt)],4)}, {d}')
        if (tt,ct)!=(0,0): emit_list(wr(*divmod(2*tt+ct-1,2)))
stamp(12)
check_or_poll([gload],[(5,sTag,0)],'fg')
emit_list(wr(1,1))
k.waitcnt(lg=0); stamp(13); k.I('s_barrier')
RB=ACC
for s in range(8):
    for c in range(2):
        k.I(f'ds_read_b128 {v(RB+8*s+4*c,4)}, {v(a3+c)}')
    if s<7: k.I(f'v_add_u32 {v(a3)}, {v(a3)}, {v(a3+2)}\nv_add_u32 {v(a3+1)}, {v(a3+1)}, {v(a3+2)}')
for s in range(1,8):
    for i in range(0,8,2): k.I(f'v_pk_add_f32 {v(RB+i,2)}, {v(RB+i,2)}, {v(RB+8*s+i,2)}')
for i in range(0,8,2): k.I(f'v_pk_mul_f32 {v(RB+i,2)}, {v(RB+i,2)}, v[4:5] op_sel_hi:[1,0]')
for i in range(4): k.I(f'v_cvt_pk_bf16_f32 {v(a0+i)}, {v(RB+2*i)}, {v(RB+2*i+1)}')
k.I(f'buffer_store_dwordx4 {v(a0,4)}, {v(u1)}, {sOUT}, {sA2} offen {OPT.get("outfl","").replace("+"," ")}')
stamp(15)
dump_stamps()
k.I('s_endpgm')

k.label('L_F3'); k.set_state(st_f3)
f_role(3)

RV=[0,1,2,3,4,5,6,8,9,10,11,12,13,14]
def wphi_lane(dst, base_sgpr):
    k.I(f'''v_and_b32 v30, 3, v0
    v_bfe_u32 v31, v0, 3, 2
    v_lshl_add_u32 v30, v31, 2, v30
    v_lshrrev_b32 v31, 3, v30
    v_sub_u32 v30, v30, v31
    v_bfe_u32 v31, v0, 2, 1
    v_mul_u32_u24 v31, 14, v31
    v_add_u32 v30, v30, v31
    v_min_u32 v30, 27, v30
    v_lshlrev_b32 v30, 1, v30
    v_mul_u32_u24 v31, 224, v3
    v_add3_u32 {v(dst)}, v30, v31, {base_sgpr}''')
def wphi_reads(dst16, addr, off):
    return [f'ds_read_u16 {v(dst16+8*s+j)}, {v(addr)} offset:{off+(16*s+(j&3)+8*(j>>2))*56}' for s in range(2) for j in range(8)]
def wphi_pack(src16,dst8):
    L=[f'v_lshl_or_b32 {v(dst8+i)}, {v(src16+2*i+1)}, 16, {v(src16+2*i)}' for i in range(8)]
    L+=[f'v_cndmask_b32 {v(dst8+i)}, {v(dst8+i)}, 0, {sHi}' for i in (6,7)]
    return L
def feat(a, wp, PK, Pp):
    L=[f'v_cvt_pk_bf16_f32 {v(PK+i)}, {v(a+2*i)}, {v(a+2*i+1)}' for i in range(8)]
    L.append(f'v_mfma_f32_32x32x16_bf16 {v(Pp,16)}, {v(wp,4)}, {v(PK,4)}, 0')
    L.append(f'v_mfma_f32_32x32x16_bf16 {v(Pp,16)}, {v(wp+4,4)}, {v(PK+4,4)}, {v(Pp,16)}')
    return L
def feat2(Pp, E, S, norm, O):
    L=[]; A=L.append
    A(f'v_max_f32 {v(S)}, {v(Pp+RV[0])}, {v(Pp+RV[1])}')
    A(f'v_max_f32 {v(S+1)}, -{v(Pp+RV[0])}, -{v(Pp+RV[1])}')
    for i in range(2,14,2):
        A(f'v_max3_f32 {v(S)}, {v(S)}, {v(Pp+RV[i])}, {v(Pp+RV[i+1])}')
        A(f'v_max3_f32 {v(S+1)}, {v(S+1)}, -{v(Pp+RV[i])}, -{v(Pp+RV[i+1])}')
    A(f'v_permlane32_swap_b32 {v(S)}, {v(S+1)}')
    A(f'v_max_f32 {v(S)}, {v(S)}, {v(S+1)}')
    A(f'v_mul_f32 {v(S)}, s43, {v(S)}')
    A(f'v_mov_b32 {v(S+1)}, {v(S)}')
    A(f'v_permlane32_swap_b32 {v(S)}, {v(S+1)}')
    for i,r in enumerate(RV):
        h=r&1
        A(f'v_pk_fma_f32 {v(E+2*i,2)}, {v(Pp+r-h,2)}, {sLn}, {v(S,2)} op_sel:[{h},0,0] op_sel_hi:[{h},1,1]')
    for r in range(28): A(f'v_exp_f32 {v(E+r)}, {v(E+r)}')
    if norm:
        A(f'v_pk_add_f32 {v(S,2)}, {v(E,2)}, {v(E+2,2)}')
        A(f'v_pk_add_f32 {v(S+2,2)}, {v(E+4,2)}, {v(E+6,2)}')
        for r in range(4,14):
            s=S+2*(r&1)
            A(f'v_pk_add_f32 {v(s,2)}, {v(s,2)}, {v(E+2*r,2)}')
        A(f'v_pk_add_f32 {v(S,2)}, {v(S,2)}, {v(S+2,2)}')
        A(f'v_permlane32_swap_b32 {v(S)}, {v(S+1)}')
        A(f'v_add_f32 {v(S)}, {v(S)}, {v(S+1)}')
        A(f'v_rcp_f32 {v(S)}, {v(S)}')
        A(f'v_mov_b32 {v(S+1)}, {v(S)}')
        A(f'v_permlane32_swap_b32 {v(S)}, {v(S+1)}')
        for r in range(14): A(f'v_pk_mul_f32 {v(E+2*r,2)}, {v(E+2*r,2)}, {v(S,2)}')
    for sg in range(2):
        for s in range(2):
            for j in range(4):
                i=7*s+2*j
                A(f'v_cvt_pk_bf16_f32 {v(O+8*sg+4*s+j)}, {v(E+2*i+sg)}, {v(E+2*i+2+sg) if j<3 else "0"}')
    return L

k.label('L_KV'); k.set_state(st_kv)
k.c('KV role')
srd(sM,2,16*1568)
k.I(f'''s_sub_u32 {sRole}, {sRole}, 8
s_lshl_b32 {sT0}, {sRole}, 2
s_lshr_b32 {sH0}, 0xDA8630, {sT0}
s_and_b32 {sH0}, {sH0}, 15
s_lshl_b32 {sT2}, {sRole}, 7
s_mul_i32 {sA1}, {sH0}, 56
s_sub_u32 {sA1}, {sA1}, {sT2}
s_mul_i32 {sA2}, {sH0}, 1568
s_add_u32 {sA2}, {sA2}, {sLW}''')
k.I(f's_lshr_b32 {sT1}, {sWave}, 2\ns_mul_i32 {sT2}, {sT1}, 3136\ns_add_u32 {sT2}, {sT2}, {MISC}')
wphi_lane(148, sT2)
k.I(f'v_min_u32 v29, 6, v29')
for t,(o0,o1) in enumerate([(0,112),(56,312),(256,368)]):
    k.I(f's_mul_i32 {sT2}, {sT1}, {o1-o0}\ns_add_u32 {sT2}, {sT2}, {sA1}\ns_add_u32 {sT2}, {sT2}, {o0}\nv_lshl_add_u32 v26, v29, 3, {sT2}')
    a_addr(t,26)
tags()
PHI=[0,16384,98304]; VV=[131072,131072+64,147456]
WA=240; RA=20
t0,t1,t2,t3='s84','s85','s86','s87'
KSET=f'''v_and_b32 v1, 5, v0
v_and_b32 v2, 2, v0
v_lshl_or_b32 v1, v2, 2, v1
v_bfe_u32 v2, v0, 3, 1
v_lshl_or_b32 v1, v2, 1, v1
v_lshrrev_b32 v2, 5, v0
v_xor_b32 v1, v1, v2
v_and_b32 v2, 31, v0
v_lshlrev_b32 v2, 7, v2
v_lshl_or_b32 v1, v1, 3, v2
s_and_b32 {t0}, {sWave}, 3
s_lshl_b32 {t0}, {t0}, 12
v_add_u32 {v(WA)}, {t0}, v1'''.split('\n')
KSET+=[f'v_xor_b32 {v(WA+c)}, {16*c}, {v(WA)}' for c in range(1,8)]
KSET+=[f'v_add_u32 {v(WA+8+c)}, {XR}, {v(WA+c)}' for c in range(8)]
KSET+=f'''v_bfe_u32 v1, v0, 2, 2
v_lshrrev_b32 v2, 5, v0
v_lshl_add_u32 v3, v2, 3, v1
v_lshlrev_b32 v3, 7, v3
v_and_b32 v20, 1, v1
v_lshl_or_b32 v20, v2, 1, v20
v_lshrrev_b32 v1, 1, v1
v_lshl_or_b32 v20, v1, 3, v20
v_bfe_u32 v1, v0, 4, 1
v_and_b32 v2, 3, v0
v_lshl_add_u32 v1, v1, 2, v2
v_xor_b32 v20, v20, v1
v_lshl_add_u32 v20, v20, 3, v3
s_lshr_b32 {t0}, {sWave}, 1
s_and_b32 {t1}, {sWave}, 1
s_lshl_b32 {t1}, {t1}, 6
s_and_b32 {t2}, {t0}, 1
s_lshl_b32 {sA0}, {t2}, 6
s_lshl_b32 {t2}, {t2}, 14
s_lshr_b32 {t3}, {t0}, 1
s_mul_i32 {sA1}, {t3}, 98304
s_add_u32 {t2}, {t2}, {sA1}
s_lshl_b32 {t3}, {t3}, 14
s_add_u32 {t3}, {t3}, 131072
v_xor_b32 v22, {sA0}, v20
v_xor_b32 v20, {t1}, v20
v_xor_b32 v21, 32, v20
v_xor_b32 v23, 32, v22
v_add_u32 v20, {t2}, v20
v_add_u32 v21, {t2}, v21
v_add_u32 v22, {t3}, v22
v_add_u32 v23, {t3}, v23
s_add_u32 {sA0}, {sH0}, {t0}
s_lshl_b32 {sA0}, {sA0}, 1
s_and_b32 {t1}, {sWave}, 1
s_add_u32 {sA0}, {sA0}, {t1}
s_lshl_b32 {sA0}, {sA0}, 6
s_add_u32 {sA0}, {sA0}, {sTB}
s_lshl_b32 {sA0}, {sA0}, 9
s_add_u32 {sA0}, {sA0}, {WS_P1}
s_add_u32 {sA1}, {sA0}, 16384
v_lshrrev_b32 v1, 5, v0
v_and_b32 v2, 31, v0
v_lshlrev_b32 v2, 4, v2
v_lshl_or_b32 v143, v1, 13, v2'''.split('\n')
WP=120
PK=64;Pp=72;E=88;S=116;O=160;PK2=48;Pp2=176
r0=wphi_reads(64,148,0); r1=wphi_reads(80,148,1568)
ex={4:r0[:11],5:r0[11:]+r1[:6],6:r1[6:], 7:wphi_pack(64,WP), 8:wphi_pack(80,WP+8), 25:[lambda: wait_ks(R3(0,3))]+s2_reads(R3(0,3))[:6], 26:s2_reads(R3(0,3))[6:]}
emit_list(s2_setup()+KSET)
gemm1(3,1,{7:s2_dmas(R3(0,3)),8:s2_dmas([3,4])},S1+[dma(vL16, sM, sA2, sLW, MISC, 's1')],extra=ex)
stamp(2)
def wr_tile(src, base, n):
    hi = 4 if (base&64) else 0; b=base&~64
    if b>=XR: hi+=8; b-=XR
    return [f'ds_write_b64 {v(WA+hi+q)}, {v(src+2*q,2)} offset:{b}' for q in range(n)]
def v_tile(t, arr, tmp):
    a=ACC+16*t
    L=[f'v_cndmask_b32 {v(a+12)}, {v(a+12)}, 1.0, {sHi}']
    L+=[f'v_cvt_pk_bf16_f32 {v(tmp+i)}, {v(a+2*i)}, {v(a+2*i+1)}' for i in range(8)]
    return L+wr_tile(tmp, arr, 4)
emit_list(feat(ACC, WP, PK, Pp))
k.I(f's_cmp_ge_u32 {sWave}, 4\ns_cbranch_scc1 L_KV1')
st=k.state()
emit_list(feat(ACC+16, WP+8, PK2, Pp2))
emit_list(v_tile(2,VV[0],152))
E2=ACC; S2_=ACC+28; O2=ACC+32
for a_,b_ in zip(feat2(Pp,E,S,True,O)+wr_tile(O,PHI[0],8), feat2(Pp2,E2,S2_,True,O2)+wr_tile(O2,PHI[1],8)): k.I(a_); k.I(b_)
k.force_wait(lg=0)
k.label('L_KV2'); k.nop(2)
k.I('s_barrier')
stamp(3)
k.I(f's_cmp_ge_u32 {sWave}, 6\ns_cbranch_scc1 L_KV3')
KA=64; KB=96; KD=176
for ks in range(8):
    for i in range(2):
        k.I(f'ds_read_b64_tr_b16 {v(KA+4*ks+2*i,2)}, {v(RA+i)} offset:{2048*ks+512*i}')
        k.I(f'ds_read_b64_tr_b16 {v(KB+4*ks+2*i,2)}, {v(RA+2+i)} offset:{2048*ks+512*i}')
    if ks>=2: k.I(f'v_mfma_f32_32x32x16_bf16 {v(KD,16)}, {v(KA+4*(ks-2),4)}, {v(KB+4*(ks-2),4)}, {"0" if ks==2 else v(KD,16)}')
for ks in (6,7): k.I(f'v_mfma_f32_32x32x16_bf16 {v(KD,16)}, {v(KA+4*ks,4)}, {v(KB+4*ks,4)}, {v(KD,16)}')
for s in range(2):
    for j in range(4): k.I(f'v_cvt_pk_bf16_f32 {v(O+4*s+j)}, {v(KD+8*s+2*j)}, {v(KD+8*s+2*j+1) if j<3 else "0"}')
    k.I(f'v_or_b32 {v(O+4*s+3)}, {sTagH}, {v(O+4*s+3)}')
    k.I(f'buffer_store_dwordx4 {v(O+4*s,4)}, v143, {sWS}, {sA0 if s==0 else sA1} offen sc1')
k.label('L_KV3'); k.nop(4)
k.I('s_barrier')
stamp(4)
k.vm=[(set(),'k4')]
KVE=[9,10,11][:int(OPT.get('kve','0'))]
emit_list(s2_dmas([5,6,7,8]+[x for x in [9,10,11] if x not in KVE]))
wait_ks([4]); emit_list(s2_reads([3,4])); k.waitcnt(lg=0); emit_list(s2_dmas([12,13]))
wait_ks([5,6,7,8]); emit_list(s2_reads([5,6,7,8])); k.waitcnt(lg=0); emit_list(s2_dmas([14]))
k.I(fl0)
stamp(9)
k.I('s_branch L_S2')
k.label('L_KV1'); k.set_state(st)
emit_list(v_tile(1,VV[1],152)+v_tile(2,VV[2],176))
emit_list(s2_dmas(KVE,True))
emit_list(feat2(Pp,E,S,True,O)+wr_tile(O,PHI[2],8))
k.force_wait(vm=0,lg=0)
k.I('s_branch L_KV2')

k.label('L_Q'); k.set_state(st_q)
k.c('Q role')
srd(sM,2,16*1568)
k.I(f'''s_sub_u32 {sRole}, {sRole}, 14
s_lshl_b32 {sH0}, {sRole}, 3
s_add_u32 {sH0}, {sH0}, {sWave}
s_mul_i32 {sA1}, {sH0}, 56
s_sub_u32 {sA1}, {sA1}, {sB0}
s_lshl_b32 {sA0}, {sA0}, 6
s_mul_i32 {sA2}, {sH0}, 1568
s_lshl_b32 {sA3}, {sWave}, 11
s_add_u32 {sT2}, {sA3}, {MISC}''')
wphi_lane(148, sT2)
k.I(f'''v_lshl_add_u32 v26, v29, 3, {sA1}
v_mov_b32 v1, {sA0}
v_cmp_eq_u32 vcc, 7, v29
v_cndmask_b32 v26, v26, v1, vcc''')
a_addr(0,26)
k.I(f'''v_and_b32 v2, 3, v0
v_lshlrev_b32 v2, 6, v2
v_xor_b32 v2, v2, v1
v_lshl_add_u32 v9, v0, 9, v2
s_mul_i32 {sT1}, {sWave}, 43
s_lshr_b32 {sT1}, {sT1}, 7
s_mul_i32 {sT1}, {sT1}, 3
s_sub_u32 {sT1}, {sWave}, {sT1}
s_lshl_b32 {sT1}, {sT1}, 15
v_add_u32 v9, {sT1}, v9''')
tags()
def gate(s):
    lab=newlab('g')
    if s==0: k.I('v_mov_b32 v34, v32\nv_mov_b32 v35, 0')
    k.I(f's_cmp_lg_u32 {sWave}, {s}\ns_cbranch_scc1 {lab}')
    k.I('ds_write_b64 v9, v[34:35]')
    k.label(lab)
WP=128; EQ=24
r0=wphi_reads(48,148,0)
QSET=f'''v_and_b32 v1, 3, v0
v_bfe_u32 v2, v0, 3, 1
v_lshl_add_u32 v1, v2, 2, v1
v_bfe_u32 v2, v0, 4, 1
v_bfe_u32 v3, v0, 2, 1
v_lshl_add_u32 v3, v2, 1, v3
v_mul_u32_u24 v3, 7, v3
v_add_u32 v3, v3, v1
v_lshl_add_u32 v2, v2, 3, v1
v_cmp_eq_u32 s[86:87], 15, v2
v_mov_b32 v2, 28
v_cmp_eq_u32 vcc, 7, v1
v_cndmask_b32 v3, v3, v2, vcc
v_lshlrev_b32 v20, 2, v3
v_add_u32 v36, 128, v20
v_mov_b32 v21, 0x3f800000
v_mov_b32 v22, 0x3f80
v_lshlrev_b32 v23, 7, v0
s_and_b32 s84, {sTB}, 1
s_lshl_b32 s84, s84, 2
s_and_b32 s85, {sH0}, 11
s_add_u32 s84, s84, s85
s_lshl_b32 s84, s84, 3
s_lshr_b32 s85, {sTB}, 1
s_add_u32 s84, s84, s85
s_lshl_b32 {sA1}, s84, 9
s_add_u32 {sA1}, {sA1}, {WS_P2}
s_lshl_b32 {sA0}, s84, 13
s_add_u32 {sA0}, {sA0}, {WS_P1}'''.split('\n')
ex={4:r0[:8],5:r0[8:],6:wphi_pack(48,WP),19:[(f'buffer_load_dword v147, v23, {sWS}, {sA0} offen','pf')]}
emit_list(QSET)
gemm1(1,4,{},S1+[dma(vL16, sM, sA2, sA3, MISC, 's1'), dma(vL16, sM, (sA2,1024), sA3, MISC+1024, 's1')],masked=True,pre_barrier=gate,extra=ex)
stamp(2)
PK=88;E=136;S=164;GG=168
k.I('v_mov_b32 v19, v36')
PP=[96,112]
emit_list(feat(ACC, WP, PK, PP[0]))
for t in range(4): k.I(f'v_mul_f32 {v(GG+t)}, s40, {v(ACC+16*t+12)}')
for t in range(4): k.I(f'v_min_f32 {v(GG+t)}, {f2u(86.0)}, {v(GG+t)}')
for t in range(4): k.I(f'v_exp_f32 {v(GG+t)}, {v(GG+t)}')
for t in range(4): k.I(f'v_mul_f32 {v(GG+t)}, s40, {v(GG+t)}')
for t in range(4): k.I(f'v_mov_b32 {v(172+t)}, {v(GG+t)}')
for t in range(4): k.I(f'v_permlane32_swap_b32 {v(172+t)}, {v(GG+t)}')
k.I(f's_cmp_lg_u32 {sH0}, 0\ns_cbranch_scc1 L_Q1')
st=k.state()
k.I(f'''v_cndmask_b32 v2, {v(GG)}, {v(GG+1)}, {sHi}
v_cndmask_b32 v10, {v(GG+2)}, {v(GG+3)}, {sHi}
v_add_f32 v2, s40, v2
v_add_f32 v10, s40, v10
v_rcp_f32 v2, v2
v_rcp_f32 v10, v10
v_mov_b32 v3, {sTag}
v_mov_b32 v11, {sTag}
v_lshlrev_b32 v1, 3, v0
s_lshl_b32 {sT1}, {sTB}, 10
s_add_u32 {sT1}, {sT1}, {WS_G}
buffer_store_dwordx2 v[2:3], v1, {sWS}, {sT1} offen sc1
buffer_store_dwordx2 v[10:11], v1, {sWS}, {sT1} offen offset:512 sc1''')
k.label('L_Q1'); k.set_state(st)
emit_list(feat(ACC+16, WP, 176, PP[1]))
for a_,b_ in zip(feat2(PP[0],E,S,True,EQ), feat2(PP[1],ACC,ACC+28,True,EQ+16)): k.I(a_); k.I(b_)
emit_list(feat(ACC+32, WP, PK, PP[0])+feat(ACC+48, WP, 176, PP[1]))
for a_,b_ in zip(feat2(PP[0],E,S,True,EQ+32), feat2(PP[1],ACC,ACC+28,True,EQ+48)): k.I(a_); k.I(b_)
stamp(3)
k.I(f'''s_lshl_b32 {sA2}, {sH0}, 12
s_add_u32 {sA2}, {sA2}, {WS_P2}
s_cmp_ge_u32 {sWave}, 4
s_cbranch_scc1 L_Q2''')
k.I(f's_add_u32 {sT1}, {sA0}, 4096')
R0=96; U0=ACC
poll([f'buffer_load_dwordx4 {v(R0+4*i,4)}, {v(vL16)}, {sWS}, {[sA0,sT1][i>>2]} offen offset:{(i&3)*1024} sc1' for i in range(8)],
     [(R0+4*i+3,sT16,1) for i in range(8)],'p1')
stamp(6)
if 'nodot' in OPT:
    for i in range(8):
        for j in range(4):
            k.I(f'v_lshlrev_b32 {v(U0+8*i+2*j)}, 16, {v(R0+4*i+j)}')
            k.I(f'v_and_b32 {v(U0+8*i+2*j+1)}, 0xffff0000, {v(R0+4*i+j)}')
    for st_ in (32,16,8):
        for j in range(0,st_,2): k.I(f'v_pk_add_f32 {v(U0+j,2)}, {v(U0+j,2)}, {v(U0+st_+j,2)}')
else:
    for j in range(4):
        k.I(f'v_lshlrev_b32 {v(U0+2*j)}, 16, {v(R0+j)}')
        k.I(f'v_and_b32 {v(U0+2*j+1)}, 0xffff0000, {v(R0+j)}')
    for i in range(1,8):
        for j in range(7):
            k.I(f'v_dot2c_f32_bf16 {v(U0+j)}, {v(R0+4*i+j//2)}, {v(22 if j%2==0 else 21)}')
    k.nop(3)
for j in range(4): k.I(f'v_permlane32_swap_b32 {v(U0+j)}, {v(U0+4+j)}')
for j in range(0,4,2): k.I(f'v_pk_add_f32 {v(U0+j,2)}, {v(U0+j,2)}, {v(U0+4+j,2)}')
k.I(f'''v_cvt_pk_bf16_f32 v12, {v(U0)}, {v(U0+1)}
v_cvt_pk_bf16_f32 v13, {v(U0+2)}, {v(U0+3)}
ds_bpermute_b32 v8, v20, v12
ds_bpermute_b32 v9, v20, v13
ds_bpermute_b32 v10, v19, v12
ds_bpermute_b32 v11, v19, v13
v_and_b32 v11, 0xffff, v11
v_or_b32 v11, {sTagH}, v11
s_not_b64 exec, {sHi}
buffer_store_dwordx4 v[8:11], {v(vL16)}, {sWS}, {sA1} offen sc1
s_mov_b64 exec, -1''')
k.label('L_Q2'); k.nop(2)
if 'nop2bar' not in OPT: k.I('s_barrier')
stamp(7)
KV=136
k.I(f'''s_lshl_b32 {sA0}, {sTB}, 6
s_add_u32 {sA0}, {sA0}, {sH0}
s_lshl_b32 {sA0}, {sA0}, 11
s_add_u32 {sA0}, {sA0}, {WS_O}
s_mov_b32 {sT1}, {f2u(1e-6)}''')
poll([f'buffer_load_dwordx4 {v(KV+4*i,4)}, {v(vL16)}, {sWS}, {sA2} offen offset:{i*1024} sc1' for i in range(4)],
     [(KV+4*i+3,sT16,1) for i in range(4)],'p2')
stamp(4)
def omf(t):
    d=v(ACC+16*t,16)
    return [f'v_mfma_f32_32x32x16_bf16 {d}, {v(KV+4*i,4)}, {v(EQ+16*t+4*i,4)}, {"0" if i==0 else d}' for i in range(4)]
def ofin(t):
    p=ACC+16*t; o=96+8*t; c=8+t
    L=[f'v_add_f32 {v(c)}, {sT1}, {v(p+7)}', f'v_rcp_f32 {v(c)}, {v(c)}', f'v_mul_f32 {v(c)}, {v(c)}, {v(GG+t)}']
    for s in range(2):
        L+=[f'v_mul_f32 {v(p+8*s+j)}, {v(c)}, {v(p+8*s+j)}' for j in range(7)]
        L+=[f'v_cvt_pk_bf16_f32 {v(o+4*s+j)}, {v(p+8*s+2*j)}, {v(p+8*s+2*j+1) if j<3 else "0"}' for j in range(4)]
        L.append(f'v_or_b32 {v(o+4*s+3)}, {sTagH}, {v(o+4*s+3)}')
        L.append(f'buffer_store_dwordx4 {v(o+4*s,4)}, {v(vL16)}, {sWS}, {sA0} offen offset:{1024*s} sc1')
    L.append(f's_add_u32 {sA0}, {sA0}, 32768')
    return L
emit_list(omf(0)+omf(1))
emit_list(interleave(omf(2),ofin(0)))
emit_list(interleave(omf(3),ofin(1)))
emit_list(ofin(2)+ofin(3))
k.I(f'''s_lshl_b32 {sA0}, {sTB}, 4
s_add_u32 {sA0}, {sA0}, {sH0}
s_lshl_b32 {sA0}, {sA0}, 7
s_add_u32 {sA0}, {sA0}, {WS_FO}''')
flag_store(sA0)
stamp(5)
k.I(f's_cmp_lg_u32 s2, 0\ns_cbranch_scc1 L_Qend\ns_cmp_lg_u32 {sWave}, 0\ns_cbranch_scc1 L_Qend')
k.I('v_lshlrev_b32 v1, 7, v0')
k.I(f's_mov_b32 {sA0}, {WS_FA}\ns_mov_b32 {sA1}, {WS_FA+8192}\ns_mov_b32 {sT0}, {WS_FO}\ns_mov_b32 {sT1}, {WS_FO+8192}\ns_mov_b32 {sT2}, {WS_FO+16384}\ns_mov_b32 {sT3}, {WS_FO+24576}')
poll([f'buffer_load_dword {v(8+i)}, v1, {sWS}, {s} offen sc1' for i,s in enumerate([sA0,sA1,sT0,sT1,sT2,sT3])],[(8+i,sTag,0) for i in range(6)],'ep')
k.I(f's_mov_b32 {sA0}, {WS_EPOCH}')
flag_store(sA0)
k.label('L_Qend'); k.nop(2)
stamp(15)
dump_stamps()
k.label('L_end')
k.I('s_endpgm')
k.label('L_codeend')
k.raw(f""".section .rodata,"a"
.p2align 6
.amdhsa_kernel {NAME}_kernel
  .amdhsa_next_free_vgpr 256
  .amdhsa_next_free_sgpr 102
  .amdhsa_accum_offset 256
  .amdhsa_group_segment_fixed_size 0
  .amdhsa_kernarg_size 96
  .amdhsa_user_sgpr_count 2
  .amdhsa_user_sgpr_kernarg_segment_ptr 1
  .amdhsa_system_sgpr_workgroup_id_x 1
.end_amdhsa_kernel""")
open(OUT,'w').write(k.text())
print('instructions', k.nins)
```

```python
import sys, struct
from emit import K, interleave
NAME = "gated_mix__linear_kernel_hedgehog__dense_activation_mish__prompt"
TS = '--ts' in sys.argv
CLK = 's_memtime' if '--cyc' in sys.argv else 's_memrealtime'
OPT = {a[2:].split('=')[0]:(a.split('=')[1] if '=' in a else '1') for a in sys.argv[1:] if a.startswith('--')}
OUT = [a for a in sys.argv[1:] if not a.startswith('--')][0]

def f2u(x): return struct.unpack('<I', struct.pack('<f', x))[0]
LOG2E = 1.4426950408889634; LN2 = 0.6931471805599453

WB=int(OPT.get('wb','0'),0)
WS_EPOCH=0; WS_FA=WB+0x20000; WS_FO=WB+0x24000; WS_G=WB+0x2C000; WS_P2=WB+0x30000; WS_P1=WB+0x100000; WS_O=WB+0x500000; WS_ACT=WB+0x800000; WS_TS=0xF000000
WR=0; XR=96*1024; MISC=144*1024; LDS_BYTES=160*1024
SPIN=200000

sRot='s3'; sR6='s6'; sR7='s7'
sX='s[8:11]'; sW='s[12:15]'; sWS='s[16:19]'; sW2='s[20:23]'; sWO='s[24:27]'; sOUT='s[28:31]'; sM='s[32:35]'; sG='s[36:39]'
sL2='s[40:41]'
sLn='s[42:43]'
sWave='s44'; sTB='s45'; sRole='s46'; sT64='s47'; sCT='s48'; sTag='s49'; sTagH='s50'
sLW='s51'
sT0='s52'; sT1='s53'; sT2='s54'; sT3='s55'
sMask='s[56:57]'; sHi='s[58:59]'
sW2b='s60'; sWOb='s61'; sL4='s62'; sL2k='s63'
sSpin='s88'; sH0='s89'; sA0='s90'; sA1='s91'
sTS=92
sI='s94'; sStr='s95'; sB0='s96'; sE='s97'; sA2='s98'; sA3='s99'
sRa='s4'; sRb='s5'
sFA='s81'; sAC='s82'; sGB='s83'; sOB='s78'; sFO='s79'
sT16='s80'
P = lambda i: 64+2*i

def v(a,n=1): return f'v{a}' if n==1 else f'v[{a}:{a+n-1}]'

k=K()
nlab=[0]
def newlab(p):
    nlab[0]+=1; return f'L_{p}_{nlab[0]}'

def srd(dst, ptr, size):
    d=int(dst[2:dst.index(':')])
    k.I(f's_mov_b32 s{d}, s{P(ptr)}\ns_mov_b32 s{d+1}, s{P(ptr)+1}\ns_mov_b32 s{d+2}, {size}\ns_mov_b32 s{d+3}, 0x20000')

NSTAMP=16
def tsreg(i): return sTS+i if i<2 else 64+i-2
def stamp(i):
    if 'gts' in OPT and i not in (1,2,15): return
    if 's2ts' in OPT and i not in (2,6,10,11,15): return
    gstamp(i)
def gstamp(i):
    if not TS: return
    k.I(CLK+' s[100:101]'); k.force_wait(lg=0); k.I(f's_mov_b32 s{tsreg(i)}, s100')
def stamp_init():
    if not TS: return
    for i in range(1,NSTAMP): k.I(f's_mov_b32 s{tsreg(i)}, 0')
def dump_stamps():
    if 'padto' in OPT:
        lab=newlab('pad'); k.label(lab)
        k.I('s_memrealtime s[100:101]'); k.force_wait(lg=0)
        k.I(f's_sub_u32 {sT0}, s100, s{sTS}\ns_cmp_lt_u32 {sT0}, {OPT["padto"]}\ns_cbranch_scc1 {lab}')
        return
    if not TS: return
    k.I('s_mov_b64 exec, 1')
    k.I(f's_lshl_b32 {sT0}, s2, 3\ns_add_u32 {sT0}, {sT0}, {sWave}\ns_lshl_b32 {sT0}, {sT0}, 7\ns_add_u32 {sT0}, {sT0}, {WS_TS}\nv_mov_b32 v1, 0\nv_mov_b32 v3, 0')
    for i in range(NSTAMP):
        k.I(f'v_mov_b32 v2, s{tsreg(i)}')
        k.I(f'buffer_store_dwordx2 v[2:3], v1, {sWS}, {sT0} offen offset:{8*i}')

vLane=0; vW=4; vX=5; vW2=6; vL16=7
vA=8; vB=16; vC=20
WREG=24
FB=152; FA=160; ACC=192
vPF=143
vS2=136

def dma(voff, srd_, soff, ldsbase, ldsconst, tag, masked=False, pre='', post=''):
    L=[]
    if pre: L.append(pre)
    L.append(f's_add_u32 m0, {ldsbase}, {ldsconst}')
    so=sT0
    if isinstance(soff,int): L.append(f's_mov_b32 {sT0}, {soff}')
    elif isinstance(soff,str): so=soff
    else: L.append(f's_add_u32 {sT0}, {soff[0]}, {soff[1]}')
    if masked: L.append(f's_mov_b64 exec, {sMask}')
    L.append(f'buffer_load_dwordx4 {v(voff)}, {srd_}, {so} offen lds')
    if masked: L.append('s_mov_b64 exec, -1')
    if post: L.append(post)
    return ('\n'.join(L), tag)

ROT0 = 'rot7' in OPT
def chunk_expr(s, dst, tmp):
    if ROT0: return f's_add_u32 {dst}, {sRot}, {s}\ns_sub_u32 {tmp}, {dst}, 7\ns_cmp_ge_u32 {dst}, 7\ns_cselect_b32 {dst}, {tmp}, {dst}'
    if s==0: return f's_mov_b32 {dst}, 0'
    return f's_add_u32 {dst}, {sRot}, {s}\ns_sub_u32 {tmp}, {dst}, 6\ns_cmp_ge_u32 {dst}, 7\ns_cselect_b32 {dst}, {tmp}, {dst}'
def s1_dmas(s, masked=False):
    slot=s%3; L=[]
    pre=chunk_expr(s,sR6,sR7)+f'\ns_mul_i32 {sR7}, {sR6}, {sStr}\ns_lshl_b32 {sR7}, {sR7}, 2\ns_lshl_b32 {sR6}, {sR6}, 7'
    for m in range(2): L.append(dma(vX, sX, (sR6,64*m*896) if m else sR6, sLW, XR+slot*16384+m*8192, f's{s}', pre=pre if m==0 else ''))
    for m in range(4): L.append(dma(vW, sW, sR7, sLW, WR+slot*32768+m*8192, f's{s}', masked, post=f's_add_u32 {sR7}, {sR7}, {sStr}' if m<3 else ''))
    return L

PSLOT=[1,2,0,1,2,0]
def ks_lds(ks):
    p,i=divmod(ks,3); s=PSLOT[p]
    if i<2: return ('W', WR+s*32768+i*2048)
    return ('X', s*16384)
def kidx(ks, dst, tmp):
    if 'norot2' in OPT: return f's_mov_b32 {dst}, {ks}'
    if ks<8: return f's_add_u32 {dst}, {sRa}, {ks}\ns_and_b32 {dst}, {dst}, 7'
    return f's_add_u32 {dst}, {sRb}, {ks}\ns_sub_u32 {tmp}, {dst}, 6\ns_cmp_ge_u32 {dst}, 14\ns_cselect_b32 {dst}, {tmp}, {dst}'
def s2_dma_ks(ks, both=False):
    L=[]; kind,off=ks_lds(ks)
    base = sL4 if kind=='W' else sL2k
    dl = 16384 if kind=='W' else 8192
    tag=f'k{ks}'
    assert ks<14 or not both
    if ks<14:
        pre=kidx(ks,sT1,sT2)+f'\ns_mul_i32 {sT1}, {sT1}, {16*896}\ns_add_u32 {sT1}, {sT1}, {sW2b}'
        T=[dma(vW2, sW2, sT1, base, off, tag, pre=pre), dma(vW2, sW2, (sT1,8*896), base, off+1024, tag)]
        if both:
            m=lambda x: x & 0xffffffff
            T+=[dma(vW2, sW2, (sT1,m(-4*224*896)), base, m(off-dl), tag), dma(vW2, sW2, (sT1,m(8*896-4*224*896)), base, m(off+1024-dl), tag)]
        return [('\n'.join(t[0] for t in T),tag)]
    hd,s=divmod(ks-14,2)
    return [dma(vW2, sWO, (sWOb,(28*hd+14*s+8*h)*896), base, off+1024*h, tag) for h in range(2)]
def s2_dmas(kss, both=False): return [d for ks in kss for d in s2_dma_ks(ks,both)]
def wait_ks(kss):
    for ks in kss: k.wait_tag(f'k{ks}')
def wreg(ks,ct): return WREG+8*ks+4*ct
def s2_reads(kss, base=None, obase=None):
    base = vS2 if base is None else base
    L=[]
    for ks in kss:
        kind,off=ks_lds(ks)
        if ks<14:
            if kind=='W':
                a=base
                if off>=65536: a+=2; off-=65536
            else: a=base+4
            st=1024
        else:
            a = obase if kind=='W' else obase+2
            st=512
        for ct in range(2):
            for i in range(2):
                L.append(f'ds_read_b64_tr_b16 {v(wreg(ks,ct)+2*i,2)}, {v(a+ct)} offset:{off+st*i}')
    return L
R3=lambda a,b: list(range(a,b))

def emit_list(L):
    for x in L:
        if callable(x): x()
        elif isinstance(x,tuple): k.I(x[0],x[1])
        else: k.I(x)

def gemm1(NA, NB, tail, first, masked=False, pre_barrier=None, extra=None):
    extra = extra or {}
    if MPG>=0: extra.setdefault(MPG,[]).extend(MPF)
    if 'dose' in OPT:
        g0=int(OPT['dose']); stp=int(OPT.get('dstep','3')); nd_=-(-49//DL)
        for j in range(nd_):
            extra.setdefault(g0+stp*j,[]).append((f's_mov_b32 {sT0}, {j*DL*128}\nbuffer_load_dword v{146+(j&1)}, v144, {sW2}, {sT0} offen','pf'))
        extra.setdefault(g0+stp*nd_,[]).append((f'buffer_load_dword v150, v145, {sWO}, 0 offen','pf'))
    if NB==1: fa=lambda b,t: FA+16*b+4*t; fb=lambda b,t: FB+4*b
    else:     fa=lambda b,t: FB+4*b;      fb=lambda b,t: FA+16*b+4*t
    def reads(g):
        s,ks=divmod(g,4); slot=s%3; b=g&1; A=[];B=[]
        for t in range(NB):
            B.append(f'ds_read_b128 {v(fb(b,t),4)}, {v(vB+ks)} offset:{slot*16384+t*4096}')
        for t in range(NA):
            a=vA+t+(4 if slot==2 else 0); off=(slot&1)*32768+ks*8192
            A.append([f'ds_read_b64_tr_b16 {v(fa(b,t)+2*i,2)}, {v(a)} offset:{off+2048*i}' for i in range(2)])
        if NB==1: return B+[x for l in A for x in l]
        return A[0]+B
    def mfmas(g):
        b=g&1; L=[]
        for ta in range(NA):
            for tb in range(NB):
                d=v(ACC+16*(ta*NB+tb),16)
                c = '0' if g==0 else d
                L.append(f'v_mfma_f32_32x32x16_bf16 {d}, {v(fa(b,ta),4)}, {v(fb(b,tb),4)}, {c}')
        return L
    emit_list(first)
    if pre_barrier: pre_barrier(0)
    k.wait_tag('s0'); k.force_wait(lg=0); k.I('s_barrier')
    stamp(1)
    emit_list(reads(0))
    pend=s1_dmas(2,masked)
    for g in range(28):
        M=mfmas(g)
        if (g+1)%4==0:
            s=(g+1)//4
            if pre_barrier and s<7: pre_barrier(s)
            k.force_wait(lg=0)
            k.I(M[0]); M=M[1:]
            if s<7: k.wait_tag(f's{s}')
            k.I('s_barrier')
            if 'gts' in OPT and s<7: gstamp(8+s)
            n=s+2
            pend = s1_dmas(n,masked) if n<7 else list(tail.get(n,[]))
        ex = reads(g+1) if g+1<28 else []
        nd = (2 if g<19 else 1) if g<27 else 0
        d=pend[:nd]; pend=pend[nd:]
        if (g+2)%4==0 and g<27: d+=pend; pend=[]
        emit_list(interleave(M, ex+d+extra.get(g,[])))

def cmp_all(checks):
    first=True
    for r,s,hi in checks:
        dst = 'vcc' if first else sMask
        if hi: k.I(f'v_cmp_ne_u16_sdwa {dst}, {v(r)}, {s} src0_sel:WORD_1 src1_sel:WORD_0')
        else: k.I(f'v_cmp_ne_u32 {dst}, {s}, {v(r)}')
        if not first: k.I(f's_or_b64 vcc, vcc, {sMask}')
        first=False
    k.nop(1)
def poll(loads, checks, name):
    lab=newlab(name); done=newlab(name+'d')
    k.I(f's_mov_b32 {sSpin}, {SPIN}')
    k.nop(2)
    k.label(lab)
    for l in loads: k.I(l)
    k.force_wait(vm=0)
    cmp_all(checks)
    k.I(f's_cmp_eq_u64 vcc, 0\ns_cbranch_scc1 {done}')
    if 'sleep' in OPT: k.I(f's_sleep {OPT["sleep"]}')
    k.I(f's_sub_u32 {sSpin}, {sSpin}, 1\ns_cmp_lg_u32 {sSpin}, 0\ns_cbranch_scc1 {lab}')
    k.label(done)
def check_or_poll(loads, checks, name, hint=None):
    done=newlab(name+'ok')
    cmp_all(checks)
    k.I(f's_cmp_eq_u64 vcc, 0\ns_cbranch_scc1 {done}')
    st=k.state()
    if hint: poll(hint[0],hint[1],name+'h')
    poll(loads,checks,name)
    k.label(done); k.set_state(st)

def flag_store(soff_sgpr):
    k.I(f'v_mov_b32 v1, {sTag}\nv_mov_b32 v2, 0\ns_mov_b64 exec, 1')
    k.I(f'buffer_store_dword v1, v2, {sWS}, {soff_sgpr} offen sc1')
    k.I('s_mov_b64 exec, -1')

k.raw(f'; @launch grid=(256,1,1) block=(512,1,1) lds={LDS_BYTES}')
k.raw('.amdgcn_target "amdgcn-amd-amdhsa--gfx950"\n.text')
k.raw(f'.globl {NAME}_kernel\n.p2align 8\n.type {NAME}_kernel,@function\n{NAME}_kernel:')
k.I('s_cmp_ge_u32 s2, 256\ns_cbranch_scc1 L_end')
k.I('s_load_dwordx16 s[64:79], s[0:1], 0\ns_load_dwordx8 s[80:87], s[0:1], 64')
if TS or 'padto' in OPT: k.I(CLK+' s[100:101]')
k.I('s_getpc_b64 s[4:5]'); k.label('L_pc')
k.I(f'''v_lshrrev_b32 v1, 6, v0
s_lshr_b32 {sI}, s2, 3
v_and_b32 v2, 1, v0
v_readfirstlane_b32 {sWave}, v1
v_lshl_add_u32 v2, v1, 1, v2
s_lshl_b32 {sT0}, {sI}, 4
v_add_lshl_u32 v2, v2, {sT0}, 7
v_min_u32 v2, L_codeend-L_pc-4, v2
v_and_b32 v0, 63, v0''')
if 'nocpf' not in OPT: k.I(f'global_load_dword {v(vPF)}, v2, s[4:5]','cpf')
NR = 7 if ROT0 else 6
k.I(f'''s_and_b32 {sT0}, s2, 7
s_lshr_b32 {sT3}, {sT0}, 1
s_lshl_b32 {sT1}, {sT3}, 4
s_sub_u32 {sT1}, {sT1}, 16
s_mul_i32 {sT2}, {sT3}, 12
s_add_u32 {sT2}, {sT2}, 60
s_cmp_lt_u32 {sI}, 16
s_cselect_b32 {sT1}, {sT2}, {sT1}
s_lshl_b32 {sT2}, {sT3}, 2
s_add_u32 {sT2}, {sT2}, 112
s_cmp_lt_u32 {sI}, 4
s_cselect_b32 {sT1}, {sT2}, {sT1}
s_add_u32 {sT1}, {sT1}, {sI}
s_lshr_b32 {sRole}, {sT1}, 3
s_and_b32 {sT1}, {sT1}, 7
s_and_b32 {sTB}, s2, 1
s_lshl_b32 {sTB}, {sTB}, 3
s_add_u32 {sTB}, {sTB}, {sT1}
s_lshl_b32 {sLW}, {sWave}, 10
s_mul_i32 {sT1}, {sRole}, 448
s_and_b32 {sT1}, {sT1}, 0xffffff80
s_lshl_b32 {sT2}, {sRole}, 7
s_sub_u32 {sT2}, {sT2}, 128
s_mul_i32 {sT3}, {sRole}, 384
s_sub_u32 {sT3}, {sT3}, {14*384}
s_cmp_lt_u32 {sRole}, 14
s_cselect_b32 {sB0}, {sT2}, {sT3}
s_cselect_b32 {sE}, 640, 0
s_cmp_lt_u32 {sRole}, 8
s_cselect_b32 {sB0}, {sT1}, {sB0}
s_cselect_b32 {sE}, 0, {sE}
s_movk_i32 {sStr}, 2688
s_cselect_b32 {sStr}, 3584, {sStr}
s_cmp_eq_u32 {sRole}, 14
s_cselect_b32 {sA0}, 7, 8
s_cmp_eq_u32 {sRole}, 15
s_cselect_b32 {sA0}, 0, {sA0}
s_add_u32 {sRot}, {sRole}, {sTB}
s_mul_i32 {sT1}, {sRot}, {37 if ROT0 else 43}
s_lshr_b32 {sT1}, {sT1}, 8
s_mul_i32 {sT1}, {sT1}, {NR}
s_sub_u32 {sRot}, {sRot}, {sT1}''')
if 'norot' in OPT: k.I(f's_mov_b32 {sRot}, 0')
if OPT.get('rmod')=='2': k.I(f's_and_b32 {sRot}, {sRot}, 1\ns_mul_i32 {sRot}, {sRot}, 3')
if OPT.get('rmod')=='3': k.I(f's_sub_u32 {sT1}, {sRot}, 3\ns_cmp_ge_u32 {sRot}, 3\ns_cselect_b32 {sRot}, {sT1}, {sRot}\ns_lshl_b32 {sRot}, {sRot}, 1')
k.I(f'''v_lshrrev_b32 v1, 3, v0
s_lshl_b32 {sT1}, {sWave}, 3
v_add_u32 v1, {sT1}, v1
v_lshrrev_b32 v2, 1, v1
v_xor_b32 v2, v2, v0
v_and_b32 v2, 7, v2
v_mul_u32_u24 v1, 896, v1
v_lshl_add_u32 v1, v2, 4, v1
s_mul_i32 {sT1}, {sTB}, {128*896}
v_add_u32 {v(vX)}, {sT1}, v1''')
k.I(f'''v_lshrrev_b32 v3, 5, v0
s_lshl_b32 {sT1}, {sWave}, 1
v_add_u32 v24, {sT1}, v3
v_and_b32 v25, 3, v24
v_lshlrev_b32 v25, 2, v25
v_and_b32 v26, 31, v0
v_xor_b32 v25, v25, v26
v_mul_u32_u24 v24, {sStr}, v24
v_lshl_add_u32 v24, v25, 4, v24
v_lshrrev_b32 v26, 4, v25
v_mul_u32_u24 v26, {sE}, v26
v_add3_u32 {v(vW)}, v24, v26, {sB0}
v_lshrrev_b32 v25, 2, v25
v_cmp_ne_u32 {sMask}, {sA0}, v25
s_mov_b32 s10, {2048*896}
s_mov_b32 s11, 0x20000
s_mov_b32 s15, 0x20000
s_mul_i32 s14, {sStr}, 448
s_lshl_b32 {sStr}, {sStr}, 4''')
k.force_wait(lg=0)
if TS or 'padto' in OPT: k.I(f's_mov_b32 s{sTS}, s100')
k.I(f'''s_mov_b32 s8, s{P(0)}
s_mov_b32 s9, s{P(0)+1}
s_cmp_lt_u32 {sRole}, 8
s_cselect_b32 s12, s{P(5)}, s{P(1)}
s_cselect_b32 s13, s{P(5)+1}, s{P(1)+1}''')
emit_list(s1_dmas(0,True))
k.I(f's_load_dword {sTag}, s[{P(11)}:{P(11)+1}], {WS_EPOCH}')
srd(sG,8,896)
if ROT0: k.I(f's_add_u32 {sT1}, {sWave}, {sRot}\ns_sub_u32 {sT2}, {sT1}, 7\ns_cmp_ge_u32 {sT1}, 7\ns_cselect_b32 {sT1}, {sT2}, {sT1}')
else: k.I(f's_add_u32 {sT1}, {sWave}, {sRot}\ns_sub_u32 {sT2}, {sT1}, 6\ns_cmp_ge_u32 {sT1}, 7\ns_cselect_b32 {sT1}, {sT2}, {sT1}\ns_cmp_eq_u32 {sWave}, 0\ns_cselect_b32 {sT1}, 0, {sT1}')
k.I(f's_lshl_b32 {sT1}, {sT1}, 7\nv_lshlrev_b32 v1, 1, v0\nbuffer_load_ushort v32, v1, {sG}, {sT1} offen')
k.I('s_barrier')
S1=s1_dmas(1,True)
NPRE=int(OPT.get('npre','2'))
emit_list(S1[:NPRE]); S1=S1[NPRE:]
srd(sWS,11,0x10000000); srd(sW2,7,1792*896); srd(sWO,3,448*896); srd(sOUT,9,2048*896)
DL=int(OPT.get('dl','10'))
k.I(f'''s_lshl_b32 {sT0}, {sI}, 3
s_add_u32 {sT0}, {sT0}, {sWave}
s_mul_i32 {sT1}, {sT0}, 49
s_mul_i32 {sT2}, {sT0}, 13
v_min_u32 v1, {DL-1}, v0
v_min_u32 v2, 12, v0
v_add_lshl_u32 v144, v1, {sT1}, 7
v_add_lshl_u32 v145, v2, {sT2}, 7
s_and_b32 {sT0}, s2, 7
s_mul_i32 {sT3}, {sT0}, 7
s_add_u32 {sT1}, {sT1}, {sT3}
s_lshl_b32 {sT3}, {sT0}, 1
s_add_u32 {sT2}, {sT2}, {sT3}
v_min_u32 v1, 6, v0
v_min_u32 v2, 1, v0
v_add_lshl_u32 v150, v1, {sT1}, 7
v_add_lshl_u32 v151, v2, {sT2}, 7''')
def pf(a):
    return [(f'buffer_load_dword v146, {v(a)}, {sW2}, 0 offen','pf'),(f'buffer_load_dword v147, {v(a+1)}, {sWO}, 0 offen','pf')]
k.I(f's_lshl_b32 {sT0}, s2, 3\ns_add_u32 {sT0}, {sT0}, {sWave}\ns_and_b32 {sT0}, {sT0}, 1023\ns_lshl_b32 {sT0}, {sT0}, 7\ns_add_u32 {sT0}, {sT0}, {WS_FA}\nv_mov_b32 v33, {sT0}')
MPF=([] if 'nompf' in OPT else pf(150))+([] if 'notouch' in OPT else [(f'buffer_load_dword v33, v33, {sWS}, 0 offen','pf')])
MPG=int(OPT.get('mpg','9'))
if MPG<0: S1=S1+MPF
if 'tlbt' in OPT:
    sh=int(OPT['tlbt'])
    k.I(f'v_lshlrev_b32 v37, {sh}, v0\nv_min_u32 v38, {WB+0xf00000-128}, v37')
    TL=[(f'buffer_load_dword v146, v38, {sWS}, 0 offen','pf'),(f'buffer_load_dword v146, v37, {sW2}, 0 offen','pf'),(f'buffer_load_dword v146, v37, {sWO}, 0 offen','pf'),(f'buffer_load_dword v146, v37, {sOUT}, 0 offen','pf')]
    if 'tlbe' in OPT: emit_list(TL)
    else: S1=S1+TL
PFG=int(OPT.get('pfg','18'))
L2PF = pf(144) if 'l2pf' in OPT else []
k.I(f'''s_mov_b32 s40, {f2u(LOG2E)}
s_mov_b32 s41, {f2u(LOG2E)}
s_mov_b32 s42, {f2u(LOG2E)}
s_mov_b32 s43, {f2u(-LOG2E)}
s_mov_b32 s58, 0
s_mov_b32 s59, -1
v_lshlrev_b32 {v(vL16)}, 4, {v(vLane)}''')
k.I(f'''v_and_b32 v1, 31, v0
v_bfe_u32 v2, v0, 1, 3
v_xor_b32 v2, v2, v3
v_lshlrev_b32 v2, 4, v2
v_lshl_add_u32 v1, v1, 7, v2
s_and_b32 {sT0}, {sWave}, 3
s_lshl_b32 {sT0}, {sT0}, 12
s_cmp_lt_u32 {sRole}, 14
s_cselect_b32 {sT0}, {sT0}, 0
s_add_u32 {sT0}, {sT0}, {XR}
v_add_u32 {v(vB)}, {sT0}, v1
v_xor_b32 {v(vB+1)}, 32, {v(vB)}
v_xor_b32 {v(vB+2)}, 64, {v(vB)}
v_xor_b32 {v(vB+3)}, 96, {v(vB)}''')
k.I(f'''v_bfe_u32 v28, v0, 2, 2
v_lshl_add_u32 v27, v3, 3, v28
v_lshlrev_b32 v27, 9, v27
v_lshlrev_b32 v28, 6, v28
v_bfe_u32 v29, v0, 4, 1
v_and_b32 v26, 3, v0
v_lshl_add_u32 v29, v29, 2, v26''')
k.I(f's_cmp_ge_u32 {sRole}, 14\ns_cbranch_scc1 L_Q')
st_q=k.state()
def s2_setup():
    t0,t1,t2,t3='s84','s85','s86','s87'
    T=f'''s_sub_u32 {t1}, {sI}, 4
s_mul_i32 {t2}, {t1}, 37
s_lshr_b32 {t2}, {t2}, 8
s_mul_i32 {t3}, {t2}, 7
s_sub_u32 {sCT}, {t1}, {t3}
s_and_b32 {t0}, s2, 6
s_lshl_b32 {sT64}, {t0}, 1
s_andn2_b32 {t0}, 1, s2
s_lshl_b32 {t0}, {t0}, 4
s_add_u32 {sT64}, {sT64}, {t0}
s_add_u32 {sT64}, {sT64}, {t2}
s_lshl_b32 {sRa}, {t2}, 1
s_add_u32 {sRa}, {sRa}, {sCT}
s_mul_i32 {t0}, {sRa}, 43
s_lshr_b32 {t0}, {t0}, 8
s_mul_i32 {t0}, {t0}, 6
s_sub_u32 {sRb}, {sRa}, {t0}
s_mul_i32 {sW2b}, {sWave}, {224*896}
s_mul_i32 {sWOb}, {sWave}, {56*896}
s_lshl_b32 {sL4}, {sWave}, 12
s_lshl_b32 {sL2k}, {sWave}, 11
s_add_u32 {sL2k}, {sL2k}, {XR}
v_lshrrev_b32 v1, 3, v0
v_lshlrev_b32 v2, 1, v1
v_and_b32 v2, 4, v2
v_and_b32 v3, 7, v0
v_xor_b32 v2, v2, v3
v_mul_u32_u24 v1, 896, v1
v_lshl_add_u32 v1, v2, 4, v1
s_lshl_b32 {t0}, {sCT}, 7
v_add_u32 {v(vW2)}, {t0}, v1
v_lshrrev_b32 v1, 5, v0
v_lshlrev_b32 v1, 9, v1
v_bfe_u32 v2, v0, 2, 2
v_lshl_add_u32 v1, v2, 7, v1
v_lshrrev_b32 v2, 1, v2
v_lshl_add_u32 v1, v2, 6, v1
v_bfe_u32 v2, v0, 4, 1
v_lshl_add_u32 v1, v2, 5, v1
v_and_b32 v2, 3, v0
v_lshl_add_u32 v1, v2, 3, v1
v_xor_b32 v2, 64, v1
v_add_u32 {v(vS2)}, {sL4}, v1
v_add_u32 {v(vS2+1)}, {sL4}, v2
v_add_u32 {v(vS2+2)}, 0x10000, {v(vS2)}
v_add_u32 {v(vS2+3)}, 0x10000, {v(vS2+1)}
v_add_u32 {v(vS2+4)}, {sL2k}, v1
v_add_u32 {v(vS2+5)}, {sL2k}, v2
s_lshr_b32 {t1}, {sT64}, 1
s_lshl_b32 {sFA}, {t1}, 3
s_add_u32 {sFA}, {sFA}, {sWave}
s_lshl_b32 {sFA}, {sFA}, 7
s_and_b32 {t2}, {sT64}, 1
s_lshl_b32 {t2}, {t2}, 3
s_add_u32 {sFA}, {sFA}, {t2}
s_add_u32 {sFA}, {sFA}, {WS_FA}
s_mul_i32 {sAC}, {sT64}, 224
s_mul_i32 {t2}, {sWave}, 14
s_add_u32 {sAC}, {sAC}, {t2}
s_lshl_b32 {sAC}, {sAC}, 10
s_add_u32 {sAC}, {sAC}, {WS_ACT}
s_lshl_b32 {sGB}, {sT64}, 9
s_add_u32 {sGB}, {sGB}, {WS_G}
s_lshl_b32 {t2}, {sWave}, 1
s_lshl_b32 {sOB}, {sT64}, 5
s_add_u32 {sOB}, {sOB}, {t2}
s_lshl_b32 {sOB}, {sOB}, 11
s_add_u32 {sOB}, {sOB}, {WS_O}
s_add_u32 {sB0}, {sOB}, 32768
s_lshl_b32 {t1}, {t1}, 4
s_add_u32 {t1}, {t1}, {t2}
s_lshl_b32 {sFO}, {t1}, 7
s_add_u32 {sFO}, {sFO}, {WS_FO}'''
    return T.split('\n')
fl0=f'v_and_b32 v4, 1, v0\nv_lshlrev_b32 v4, 2, v4\nbuffer_load_dword v5, v4, {sWS}, {sFA} offen sc1'
def tags():
    k.force_wait(lg=0)
    k.I(f'''s_lshr_b32 {sT16}, {sTag}, 16
    s_add_u32 {sT16}, {sT16}, 0x2a5b
    s_and_b32 {sT16}, {sT16}, 0x3fff
    s_lshl_b32 {sTagH}, {sT16}, 16
    s_mul_i32 {sTag}, {sTag}, 1664525
    s_add_u32 {sTag}, {sTag}, 1013904223
    s_lshr_b32 {sTag}, {sTag}, 16
    s_or_b32 {sTag}, {sTag}, {sTagH}''')
    stamp_init(); stamp(8)
def a_addr(t, colexpr_v):
    k.I(f'''v_xor_b32 {v(vA+t)}, {v(colexpr_v)}, v28
    v_add_u32 {v(vA+t)}, {v(vA+t)}, v27
    v_add_u32 {v(vA+4+t)}, 0x10000, {v(vA+t)}''')
def spread(L, g0, g1, ex):
    n=g1-g0;
    for i in range(n):
        ex.setdefault(g0+i,[]).extend(L[i*len(L)//n:(i+1)*len(L)//n])
k.I(f's_cmp_ge_u32 {sRole}, 8\ns_cbranch_scc1 L_KV')
st_kv=k.state()

k.c('F role')
srd(sM,6,1792*2)
k.I(f'''s_mul_i32 {sT0}, {sRole}, 448
s_lshl_b32 {sT1}, {sWave}, 6
s_add_u32 {sT1}, {sT1}, {sT0}
v_and_b32 v1, 31, v0
v_lshlrev_b32 v2, 1, v1
buffer_load_ushort v148, v2, {sM}, {sT1} offen
s_lshl_b32 {sT1}, {sWave}, 7
s_add_u32 {sT1}, {sT1}, {MISC}
v_lshl_add_u32 v149, v1, 2, {sT1}
s_and_b32 {sT1}, {sT0}, 127
s_lshr_b32 {sA1}, {sWave}, 2
s_lshl_b32 {sT2}, {sA1}, 9
s_lshl_b32 {sA1}, {sA1}, 8
s_add_u32 {sA1}, {sT1}, {sA1}
s_add_u32 {sT2}, {sT2}, {MISC}
v_lshl_add_u32 v142, v3, 4, {sT2}''')
for t in range(4):
    k.I(f'v_lshl_add_u32 v26, v29, 3, {sA1}\nv_add_u32 v26, {64*t}, v26')
    a_addr(t,26)
tags()
FSET=f'''v_mov_b32 {v(vC)}, 0.5
v_mov_b32 {v(vC+1)}, 0.5
v_mov_b32 {v(vC+2)}, 1.0
v_mov_b32 {v(vC+3)}, 1.0
s_lshl_b32 {sA2}, {sTB}, 2
s_and_b32 s84, {sWave}, 3
s_add_u32 {sA2}, {sA2}, s84
s_mul_i32 {sA2}, {sA2}, 112
s_mul_i32 s84, {sRole}, 14
s_add_u32 {sA2}, {sA2}, s84
s_and_b32 s84, {sWave}, 4
s_lshl_b32 s84, s84, 1
s_add_u32 {sA2}, {sA2}, s84
s_lshl_b32 {sA2}, {sA2}, 10
s_add_u32 {sA2}, {sA2}, {WS_ACT}
s_add_u32 {sA3}, {sA2}, 4096
s_lshl_b32 {sA0}, {sTB}, 3
s_add_u32 {sA0}, {sA0}, {sRole}
s_lshl_b32 {sA0}, {sA0}, 7
s_lshl_b32 s84, {sWave}, 2
s_add_u32 {sA0}, {sA0}, s84
s_add_u32 {sA0}, {sA0}, {WS_FA}'''.split('\n')
emit_list(s2_setup()+FSET)
k.I(f's_cmp_ge_u32 {sWave}, 4\ns_cbranch_scc1 L_F3')
st_f3=k.state()

BI=104
def bias_reads(t):
    return [f'ds_read_b128 {v(BI+16*(t&1)+4*q,4)}, v142 offset:{128*t+32*q}' for q in range(4)]
def mish_tile(t, T, U, O):
    L=[]
    for hh in range(2):
        a=ACC+16*t+8*hh; b=BI+16*(t&1)+8*hh
        for i in range(0,8,2): L.append(f'v_pk_fma_f32 {v(a+i,2)}, {v(a+i,2)}, {sL2}, {v(b+i,2)}')
        for i in range(8): L.append(f'v_exp_f32 {v(T+i)}, {v(a+i)}')
        for i in range(0,8,2): L.append(f'v_pk_fma_f32 {v(U+i,2)}, {v(T+i,2)}, {v(vC,2)}, {v(vC+2,2)}')
        for i in range(0,8,2): L.append(f'v_pk_fma_f32 {v(U+i,2)}, {v(U+i,2)}, {v(T+i,2)}, {v(vC+2,2)}')
        for i in range(8): L.append(f'v_rcp_f32 {v(U+i)}, {v(U+i)}')
        for i in range(0,8,2): L.append(f'v_pk_fma_f32 {v(U+i,2)}, {v(a+i,2)}, {v(U+i,2)}, {v(a+i,2)} neg_lo:[1,0,0] neg_hi:[1,0,0]')
        for i in range(0,8,2): L.append(f'v_cvt_pk_bf16_f32 {v(O+4*hh+i//2)}, {v(U+i)}, {v(U+i+1)}')
    return L

def f_role(NT):
    ex={6:[f'v_lshlrev_b32 v148, 16, v148', f'v_mul_f32 v148, s40, v148', 'ds_write_b32 v149, v148'],
        24:bias_reads(0)+bias_reads(1), 25:[lambda: wait_ks(R3(0,3))]+s2_reads(R3(0,3))[:6], 26:s2_reads(R3(0,3))[6:]}
    gemm1(NT,1,{7:s2_dmas(R3(0,3)),8:s2_dmas(R3(3,6))},S1,extra=ex)
    stamp(2)
    T=168;U=176;O=184
    def tile(t):
        L=mish_tile(t,T,U,O)
        n=len(L)//2
        st=lambda hh: f'buffer_store_dwordx4 {v(O+4*hh,4)}, {v(vL16)}, {sWS}, {sA2 if t<2 else sA3} offen offset:{(2*(t&1)+hh)*1024} sc1'
        if 'noact' in OPT: st=lambda hh: 's_nop 0'
        return L[:n]+[st(0)]+L[n:n+6]+(bias_reads(t+2) if t+2<NT else [])+L[n+6:]+[st(1)]
    if NT==4:
        for t in range(4): emit_list(tile(t))
        stamp(9)
        wait_ks(R3(3,6)); emit_list(s2_reads(R3(3,6)))
        k.force_wait(vm=0)
        flag_store(sA0)
        stamp(4)
        k.waitcnt(lg=0); emit_list(s2_dmas(R3(12,15)))
        k.I(fl0)
        k.I('s_barrier')
        emit_list(s2_reads(R3(6,9)))
    else:
        emit_list(s2_dmas(R3(6,12),True))
        wait_ks(R3(3,6)); emit_list(s2_reads(R3(3,6))); k.waitcnt(lg=0); emit_list(s2_dmas(R3(12,15)))
        stamp(5)
        BT=int(OPT.get('bt','1'))
        for t in range(3):
            if t==BT: wait_ks(R3(6,12)); k.I('s_barrier'); emit_list(s2_reads(R3(6,9)))
            emit_list(tile(t))
        k.I(fl0)
        stamp(9)
        k.force_wait(vm=0)
        flag_store(sA0)
        stamp(4)
        k.waitcnt(lg=0)
        k.I('s_branch L_S2b')
    k.waitcnt(lg=0)
    stamp(3)

f_role(4)

k.label('L_S2'); k.force_wait(vm=0); k.label('L_S2b'); k.reset_state(); k.nop(2)
k.c('stage 2: k-steps 0-8 in regs, 9-14 landed in LDS, first-half act flag value in v5')
AD=ACC+48; OAD=20
for i in range(6): k.I(f'v_mov_b32 {v(AD+i)}, {v(vS2+i)}')
k.I(f'''v_lshrrev_b32 v2, 5, v0
v_mul_u32_u24 v2, 7, v2
v_bfe_u32 v3, v0, 2, 2
v_add_u32 v2, v2, v3
v_bfe_u32 v3, v2, 1, 1
v_lshlrev_b32 v2, 7, v2
v_lshl_add_u32 v2, v3, 6, v2
v_bfe_u32 v3, v0, 4, 1
v_lshl_add_u32 v2, v3, 5, v2
v_and_b32 v3, 3, v0
v_lshl_add_u32 v2, v3, 3, v2
v_xor_b32 v3, 64, v2
v_add_u32 {v(OAD)}, {sL4}, v2
v_add_u32 {v(OAD+1)}, {sL4}, v3
v_add_u32 {v(OAD+2)}, {sL2k}, v2
v_add_u32 {v(OAD+3)}, {sL2k}, v3
v_lshlrev_b32 v1, 5, v4''')
emit_list(s2_reads(R3(9,15),AD,OAD))
check_or_poll([f'buffer_load_dword v5, v4, {sWS}, {sFA} offen sc1'],[(5,sTag,0)],'fa')
stamp(6)
LA=int(OPT.get('la','4'))
free=[168,172,176,180,184,188,8,12,16,144,148,152,156,160,164]; where={}
def act_load(ks):
    b0=free.pop(0); b1=free.pop(0)
    if ks<14:
        where[(ks,0)]=b0; where[(ks,1)]=b1
        return [kidx(ks,sA0,sA1)+f'''
s_lshl_b32 {sA0}, {sA0}, 10
s_add_u32 {sA0}, {sA0}, {sAC}
s_add_u32 {sA1}, {sA0}, {112*1024}
buffer_load_dwordx4 {v(b0,4)}, {v(vL16)}, {sWS}, {sA0} offen sc1''', f'buffer_load_dwordx4 {v(b1,4)}, {v(vL16)}, {sWS}, {sA1} offen sc1']
    tt,q=divmod(2*(ks-14),4); L=[]
    for b in (b0,b1):
        ob[(q,tt)]=b
        L.append(f'buffer_load_dwordx4 {v(b,4)}, {v(vL16)}, {sWS}, {sOB if tt==0 else sB0} offen offset:{q*1024} sc1'); q+=1
    oloads.extend(L)
    return L
ob={}; oloads=[]
fl1=f'buffer_load_dword v2, v4, {sWS}, {sFA} offen offset:16 sc1'
hload=f'buffer_load_dword v3, v1, {sWS}, {sFO} offen sc1'
FD=int(OPT.get('fd','2'))
for ks in range(LA): emit_list(act_load(ks))
if 8-LA-FD<0: k.I(fl1)
k.waitcnt(lg=0)
S2T={0:4,2:5,4:7,6:8,7:9,8:12,10:13,12:14}
if 's2ts' in OPT: gstamp(3)
def acc2(tt,ct): return ACC+32*tt+16*ct
wo_d=s2_dmas(R3(15,18))
post=[]
for ks in range(14):
    M=[]
    for tt in range(2):
        for ct in range(2):
            d=v(acc2(tt,ct),16)
            M.append(f'v_mfma_f32_32x32x16_bf16 {d}, {v(wreg(ks,ct),4)}, {v(where[(ks,tt)],4)}, {"0" if ks==0 else d}')
    if ks>=2:
        free += [b for b in [where[(ks-2,0)],where[(ks-2,1)],wreg(ks-2,0),wreg(ks-2,1)] if not 144<=b<168]
    if ks==3: free=[b for b in free if not 144<=b<168]
    n=ks+LA
    if n==8: check_or_poll([fl1],[(2,sTag,0)],'fa1')
    if n==14: check_or_poll([hload],[(3,sTag,0)],'foh')
    X=act_load(n) if n<18 else []
    if n+FD==8: X.append(fl1)
    if n+FD==14: X.append(hload)
    if 1<=ks<7: X.append(wo_d[ks-1])
    if ks==10:
        assert all(not 144<=where[(j,t)]<168 for j in range(9,14) for t in range(2))
        X+= [lambda: wait_ks(R3(15,18))]+s2_reads(R3(15,18),AD,OAD)
    if ks==6:
        a0=free.pop(0); a1=free.pop(0); a2=free.pop(0); a3=free.pop(0); a4=free.pop(0)
        u1,u2,u3=a4,a4+1,a4+2
        t0,t1='s84','s85'
        post=f'''v_and_b32 {v(a2)}, 31, v0
v_lshrrev_b32 {v(a2+1)}, 5, v0
v_and_b32 {v(a2+2)}, 7, v0
v_xor_b32 {v(a2+1)}, {v(a2+1)}, {v(a2+2)}
v_lshlrev_b32 {v(a2+1)}, 4, {v(a2+1)}
v_lshl_or_b32 {v(a2+2)}, {v(a2)}, 7, {v(a2+1)}
v_add_u32 {v(a0)}, {sL4}, {v(a2+2)}
v_xor_b32 {v(a0+1)}, 32, {v(a0)}
v_xor_b32 {v(a0+2)}, 64, {v(a0)}
v_xor_b32 {v(a0+3)}, 96, {v(a0)}
v_lshrrev_b32 {v(a2)}, 4, {v(a2)}
v_mul_u32_u24 {v(a2)}, {16384-2048}, {v(a2)}
v_add3_u32 {v(a1)}, {v(a2)}, {v(a2+2)}, {sL2k}
v_xor_b32 {v(a1+1)}, 32, {v(a1)}
v_xor_b32 {v(a1+2)}, 64, {v(a1)}
v_xor_b32 {v(a1+3)}, 96, {v(a1)}
v_add_u32 {v(a2)}, 0x10000, {v(a0)}
v_add_u32 {v(a2+1)}, 0x10000, {v(a0+1)}
v_add_u32 {v(a2+2)}, 0x10000, {v(a0+2)}
v_add_u32 {v(a2+3)}, 0x10000, {v(a0+3)}
v_lshrrev_b32 {v(u1)}, 3, v0
v_lshlrev_b32 {v(a4+3)}, 3, {v(u1)}
v_and_b32 {v(u2)}, 3, v0
v_lshlrev_b32 {v(u2)}, 1, {v(u2)}
v_xor_b32 {v(u2)}, {v(u2)}, {v(u1)}
v_lshlrev_b32 {v(u2)}, 4, {v(u2)}
v_lshl_or_b32 {v(u2)}, {v(u1)}, 7, {v(u2)}
v_bfe_u32 {v(u3)}, v0, 2, 1
s_and_b32 {t0}, {sWave}, 3
s_lshl_b32 {t0}, {t0}, 10
s_lshr_b32 {t1}, {sWave}, 2
s_lshl_b32 {t1}, {t1}, 16
s_add_u32 {t0}, {t0}, {t1}
v_lshl_add_u32 {v(a3)}, {v(u3)}, 15, {t0}
v_add_u32 {v(a3)}, {v(a3)}, {v(u2)}
s_and_b32 {t0}, {sWave}, 1
s_lshl_b32 {t0}, {t0}, 10
s_and_b32 {t1}, {sWave}, 2
s_lshl_b32 {t1}, {t1}, 13
s_add_u32 {t0}, {t0}, {t1}
s_add_u32 {t0}, {t0}, {XR}
v_add_u32 {v(u2)}, {t0}, {v(u2)}
s_lshr_b32 {t1}, {sWave}, 2
v_and_b32 {v(u3)}, {t1}, {v(u3)}
v_cmp_eq_u32 s[86:87], 1, {v(u3)}
v_mov_b32 {v(a3+2)}, 4096
v_mov_b32 {v(a3+3)}, 2048
v_cndmask_b32 {v(a3)}, {v(a3)}, {v(u2)}, s[86:87]
v_cndmask_b32 {v(a3+2)}, {v(a3+2)}, {v(a3+3)}, s[86:87]
v_xor_b32 {v(a3+1)}, 16, {v(a3)}
v_and_b32 {v(u2)}, 7, v0
v_mul_u32_u24 {v(u1)}, 896, {v(u1)}
v_lshl_add_u32 {v(u1)}, {v(u2)}, 4, {v(u1)}
s_lshl_b32 {sA2}, {sT64}, 3
s_add_u32 {sA2}, {sA2}, {sWave}
s_lshl_b32 {sGB}, {sA2}, 6
s_add_u32 {sGB}, {sGB}, {WS_G}
s_mul_i32 {sA2}, {sA2}, {8*896}
s_lshl_b32 {t1}, {sCT}, 7
s_add_u32 {sA2}, {sA2}, {t1}'''.split('\n')
    if ks>=6 and post:
        X+=post[:16]; post=post[16:]
    gload=f'buffer_load_dwordx2 v[4:5], {v(a4+3)}, {sWS}, {sGB} offen sc1' if ks>=6 else None
    if ks==13: assert not post; X.append(gload)
    emit_list(interleave(M,X))
    if 's2ts' in OPT and ks in S2T: gstamp(S2T[ks])
for n in range(14+LA,18): emit_list(act_load(n))
stamp(10)
def wr(tt,ct):
    t=2*tt+ct
    a,off = [(a0,0),(a0,32768),(a2,0),(a1,0)][t]
    return [f'ds_write_b128 {v(a+q)}, {v(acc2(tt,ct)+4*q,4)} offset:{off}' for q in range(4)]
k.waitcnt(lg=0)
for tt in range(2):
    check_or_poll(oloads[4*tt:4*tt+4],[(ob[(q,tt)]+3,sT16,1) for q in range(4)],f'fo{tt}')
    if tt==0: stamp(11)
    for q in range(4): k.I(f'v_and_b32 {v(ob[(q,tt)]+3)}, 0xffff, {v(ob[(q,tt)]+3)}')
    for ct in range(2):
        for q in range(4):
            d=v(acc2(tt,ct),16)
            k.I(f'v_mfma_f32_32x32x16_bf16 {d}, {v(wreg(14+q,ct),4)}, {v(ob[(q,tt)],4)}, {d}')
        if (tt,ct)!=(0,0): emit_list(wr(*divmod(2*tt+ct-1,2)))
stamp(12)
check_or_poll([gload],[(5,sTag,0)],'fg')
emit_list(wr(1,1))
k.waitcnt(lg=0); stamp(13); k.I('s_barrier')
RB=ACC
for s in range(8):
    for c in range(2):
        k.I(f'ds_read_b128 {v(RB+8*s+4*c,4)}, {v(a3+c)}')
    if s<7: k.I(f'v_add_u32 {v(a3)}, {v(a3)}, {v(a3+2)}\nv_add_u32 {v(a3+1)}, {v(a3+1)}, {v(a3+2)}')
for s in range(1,8):
    for i in range(0,8,2): k.I(f'v_pk_add_f32 {v(RB+i,2)}, {v(RB+i,2)}, {v(RB+8*s+i,2)}')
for i in range(0,8,2): k.I(f'v_pk_mul_f32 {v(RB+i,2)}, {v(RB+i,2)}, v[4:5] op_sel_hi:[1,0]')
for i in range(4): k.I(f'v_cvt_pk_bf16_f32 {v(a0+i)}, {v(RB+2*i)}, {v(RB+2*i+1)}')
k.I(f'buffer_store_dwordx4 {v(a0,4)}, {v(u1)}, {sOUT}, {sA2} offen {OPT.get("outfl","sc1").replace("+"," ")}')
stamp(15)
dump_stamps()
k.I('s_endpgm')

k.label('L_F3'); k.set_state(st_f3)
f_role(3)

RV=[0,1,2,3,4,5,6,8,9,10,11,12,13,14]
def wphi_lane(dst, base_sgpr):
    k.I(f'''v_and_b32 v30, 3, v0
    v_bfe_u32 v31, v0, 3, 2
    v_lshl_add_u32 v30, v31, 2, v30
    v_lshrrev_b32 v31, 3, v30
    v_sub_u32 v30, v30, v31
    v_bfe_u32 v31, v0, 2, 1
    v_mul_u32_u24 v31, 14, v31
    v_add_u32 v30, v30, v31
    v_min_u32 v30, 27, v30
    v_lshlrev_b32 v30, 1, v30
    v_mul_u32_u24 v31, 224, v3
    v_add3_u32 {v(dst)}, v30, v31, {base_sgpr}''')
def wphi_reads(dst16, addr, off):
    return [f'ds_read_u16 {v(dst16+8*s+j)}, {v(addr)} offset:{off+(16*s+(j&3)+8*(j>>2))*56}' for s in range(2) for j in range(8)]
def wphi_pack(src16,dst8):
    L=[f'v_lshl_or_b32 {v(dst8+i)}, {v(src16+2*i+1)}, 16, {v(src16+2*i)}' for i in range(8)]
    L+=[f'v_cndmask_b32 {v(dst8+i)}, {v(dst8+i)}, 0, {sHi}' for i in (6,7)]
    return L
def feat(a, wp, PK, Pp):
    L=[f'v_cvt_pk_bf16_f32 {v(PK+i)}, {v(a+2*i)}, {v(a+2*i+1)}' for i in range(8)]
    L.append(f'v_mfma_f32_32x32x16_bf16 {v(Pp,16)}, {v(wp,4)}, {v(PK,4)}, 0')
    L.append(f'v_mfma_f32_32x32x16_bf16 {v(Pp,16)}, {v(wp+4,4)}, {v(PK+4,4)}, {v(Pp,16)}')
    return L
def feat2(Pp, E, S, norm, O):
    L=[]; A=L.append
    A(f'v_max_f32 {v(S)}, {v(Pp+RV[0])}, {v(Pp+RV[1])}')
    A(f'v_max_f32 {v(S+1)}, -{v(Pp+RV[0])}, -{v(Pp+RV[1])}')
    for i in range(2,14,2):
        A(f'v_max3_f32 {v(S)}, {v(S)}, {v(Pp+RV[i])}, {v(Pp+RV[i+1])}')
        A(f'v_max3_f32 {v(S+1)}, {v(S+1)}, -{v(Pp+RV[i])}, -{v(Pp+RV[i+1])}')
    A(f'v_permlane32_swap_b32 {v(S)}, {v(S+1)}')
    A(f'v_max_f32 {v(S)}, {v(S)}, {v(S+1)}')
    A(f'v_mul_f32 {v(S)}, s43, {v(S)}')
    A(f'v_mov_b32 {v(S+1)}, {v(S)}')
    A(f'v_permlane32_swap_b32 {v(S)}, {v(S+1)}')
    for i,r in enumerate(RV):
        h=r&1
        A(f'v_pk_fma_f32 {v(E+2*i,2)}, {v(Pp+r-h,2)}, {sLn}, {v(S,2)} op_sel:[{h},0,0] op_sel_hi:[{h},1,1]')
    for r in range(28): A(f'v_exp_f32 {v(E+r)}, {v(E+r)}')
    if norm:
        A(f'v_pk_add_f32 {v(S,2)}, {v(E,2)}, {v(E+2,2)}')
        A(f'v_pk_add_f32 {v(S+2,2)}, {v(E+4,2)}, {v(E+6,2)}')
        for r in range(4,14):
            s=S+2*(r&1)
            A(f'v_pk_add_f32 {v(s,2)}, {v(s,2)}, {v(E+2*r,2)}')
        A(f'v_pk_add_f32 {v(S,2)}, {v(S,2)}, {v(S+2,2)}')
        A(f'v_permlane32_swap_b32 {v(S)}, {v(S+1)}')
        A(f'v_add_f32 {v(S)}, {v(S)}, {v(S+1)}')
        A(f'v_rcp_f32 {v(S)}, {v(S)}')
        A(f'v_mov_b32 {v(S+1)}, {v(S)}')
        A(f'v_permlane32_swap_b32 {v(S)}, {v(S+1)}')
        for r in range(14): A(f'v_pk_mul_f32 {v(E+2*r,2)}, {v(E+2*r,2)}, {v(S,2)}')
    for sg in range(2):
        for s in range(2):
            for j in range(4):
                i=7*s+2*j
                A(f'v_cvt_pk_bf16_f32 {v(O+8*sg+4*s+j)}, {v(E+2*i+sg)}, {v(E+2*i+2+sg) if j<3 else "0"}')
    return L

k.label('L_KV'); k.set_state(st_kv)
k.c('KV role')
srd(sM,2,16*1568)
k.I(f'''s_sub_u32 {sRole}, {sRole}, 8
s_lshl_b32 {sT0}, {sRole}, 2
s_lshr_b32 {sH0}, 0xDA8630, {sT0}
s_and_b32 {sH0}, {sH0}, 15
s_lshl_b32 {sT2}, {sRole}, 7
s_mul_i32 {sA1}, {sH0}, 56
s_sub_u32 {sA1}, {sA1}, {sT2}
s_mul_i32 {sA2}, {sH0}, 1568
s_add_u32 {sA2}, {sA2}, {sLW}''')
k.I(f's_lshr_b32 {sT1}, {sWave}, 2\ns_mul_i32 {sT2}, {sT1}, 3136\ns_add_u32 {sT2}, {sT2}, {MISC}')
wphi_lane(148, sT2)
k.I(f'v_min_u32 v29, 6, v29')
for t,(o0,o1) in enumerate([(0,112),(56,312),(256,368)]):
    k.I(f's_mul_i32 {sT2}, {sT1}, {o1-o0}\ns_add_u32 {sT2}, {sT2}, {sA1}\ns_add_u32 {sT2}, {sT2}, {o0}\nv_lshl_add_u32 v26, v29, 3, {sT2}')
    a_addr(t,26)
tags()
PHI=[0,16384,98304]; VV=[131072,131072+64,147456]
WA=240; RA=20
t0,t1,t2,t3='s84','s85','s86','s87'
KSET=f'''v_and_b32 v1, 5, v0
v_and_b32 v2, 2, v0
v_lshl_or_b32 v1, v2, 2, v1
v_bfe_u32 v2, v0, 3, 1
v_lshl_or_b32 v1, v2, 1, v1
v_lshrrev_b32 v2, 5, v0
v_xor_b32 v1, v1, v2
v_and_b32 v2, 31, v0
v_lshlrev_b32 v2, 7, v2
v_lshl_or_b32 v1, v1, 3, v2
s_and_b32 {t0}, {sWave}, 3
s_lshl_b32 {t0}, {t0}, 12
v_add_u32 {v(WA)}, {t0}, v1'''.split('\n')
KSET+=[f'v_xor_b32 {v(WA+c)}, {16*c}, {v(WA)}' for c in range(1,8)]
KSET+=[f'v_add_u32 {v(WA+8+c)}, {XR}, {v(WA+c)}' for c in range(8)]
KSET+=f'''v_bfe_u32 v1, v0, 2, 2
v_lshrrev_b32 v2, 5, v0
v_lshl_add_u32 v3, v2, 3, v1
v_lshlrev_b32 v3, 7, v3
v_and_b32 v20, 1, v1
v_lshl_or_b32 v20, v2, 1, v20
v_lshrrev_b32 v1, 1, v1
v_lshl_or_b32 v20, v1, 3, v20
v_bfe_u32 v1, v0, 4, 1
v_and_b32 v2, 3, v0
v_lshl_add_u32 v1, v1, 2, v2
v_xor_b32 v20, v20, v1
v_lshl_add_u32 v20, v20, 3, v3
s_lshr_b32 {t0}, {sWave}, 1
s_and_b32 {t1}, {sWave}, 1
s_lshl_b32 {t1}, {t1}, 6
s_and_b32 {t2}, {t0}, 1
s_lshl_b32 {sA0}, {t2}, 6
s_lshl_b32 {t2}, {t2}, 14
s_lshr_b32 {t3}, {t0}, 1
s_mul_i32 {sA1}, {t3}, 98304
s_add_u32 {t2}, {t2}, {sA1}
s_lshl_b32 {t3}, {t3}, 14
s_add_u32 {t3}, {t3}, 131072
v_xor_b32 v22, {sA0}, v20
v_xor_b32 v20, {t1}, v20
v_xor_b32 v21, 32, v20
v_xor_b32 v23, 32, v22
v_add_u32 v20, {t2}, v20
v_add_u32 v21, {t2}, v21
v_add_u32 v22, {t3}, v22
v_add_u32 v23, {t3}, v23
s_add_u32 {sA0}, {sH0}, {t0}
s_lshl_b32 {sA0}, {sA0}, 1
s_and_b32 {t1}, {sWave}, 1
s_add_u32 {sA0}, {sA0}, {t1}
s_lshl_b32 {sA0}, {sA0}, 6
s_add_u32 {sA0}, {sA0}, {sTB}
s_lshl_b32 {sA0}, {sA0}, 9
s_add_u32 {sA0}, {sA0}, {WS_P1}
s_add_u32 {sA1}, {sA0}, 16384
v_lshrrev_b32 v1, 5, v0
v_and_b32 v2, 31, v0
v_lshlrev_b32 v2, 4, v2
v_lshl_or_b32 v143, v1, 13, v2'''.split('\n')
WP=120
PK=64;Pp=72;E=88;S=116;O=160;PK2=48;Pp2=176
r0=wphi_reads(64,148,0); r1=wphi_reads(80,148,1568)
ex={4:r0[:11],5:r0[11:]+r1[:6],6:r1[6:], 7:wphi_pack(64,WP), 8:wphi_pack(80,WP+8), 25:[lambda: wait_ks(R3(0,3))]+s2_reads(R3(0,3))[:6], 26:s2_reads(R3(0,3))[6:]}
emit_list(s2_setup()+KSET)
gemm1(3,1,{7:s2_dmas(R3(0,3)),8:s2_dmas([3,4])},S1+[dma(vL16, sM, sA2, sLW, MISC, 's1')],extra=ex)
stamp(2)
def wr_tile(src, base, n):
    hi = 4 if (base&64) else 0; b=base&~64
    if b>=XR: hi+=8; b-=XR
    return [f'ds_write_b64 {v(WA+hi+q)}, {v(src+2*q,2)} offset:{b}' for q in range(n)]
def v_tile(t, arr, tmp):
    a=ACC+16*t
    L=[f'v_cndmask_b32 {v(a+12)}, {v(a+12)}, 1.0, {sHi}']
    L+=[f'v_cvt_pk_bf16_f32 {v(tmp+i)}, {v(a+2*i)}, {v(a+2*i+1)}' for i in range(8)]
    return L+wr_tile(tmp, arr, 4)
emit_list(feat(ACC, WP, PK, Pp))
k.I(f's_cmp_ge_u32 {sWave}, 4\ns_cbranch_scc1 L_KV1')
st=k.state()
emit_list(feat(ACC+16, WP+8, PK2, Pp2))
emit_list(v_tile(2,VV[0],152))
E2=ACC; S2_=ACC+28; O2=ACC+32
for a_,b_ in zip(feat2(Pp,E,S,True,O)+wr_tile(O,PHI[0],8), feat2(Pp2,E2,S2_,True,O2)+wr_tile(O2,PHI[1],8)): k.I(a_); k.I(b_)
k.force_wait(lg=0)
k.label('L_KV2'); k.nop(2)
k.I('s_barrier')
stamp(3)
k.I(f's_cmp_ge_u32 {sWave}, 6\ns_cbranch_scc1 L_KV3')
KA=64; KB=96; KD=176
for ks in range(8):
    for i in range(2):
        k.I(f'ds_read_b64_tr_b16 {v(KA+4*ks+2*i,2)}, {v(RA+i)} offset:{2048*ks+512*i}')
        k.I(f'ds_read_b64_tr_b16 {v(KB+4*ks+2*i,2)}, {v(RA+2+i)} offset:{2048*ks+512*i}')
    if ks>=2: k.I(f'v_mfma_f32_32x32x16_bf16 {v(KD,16)}, {v(KA+4*(ks-2),4)}, {v(KB+4*(ks-2),4)}, {"0" if ks==2 else v(KD,16)}')
for ks in (6,7): k.I(f'v_mfma_f32_32x32x16_bf16 {v(KD,16)}, {v(KA+4*ks,4)}, {v(KB+4*ks,4)}, {v(KD,16)}')
for s in range(2):
    for j in range(4): k.I(f'v_cvt_pk_bf16_f32 {v(O+4*s+j)}, {v(KD+8*s+2*j)}, {v(KD+8*s+2*j+1) if j<3 else "0"}')
    k.I(f'v_or_b32 {v(O+4*s+3)}, {sTagH}, {v(O+4*s+3)}')
    k.I(f'buffer_store_dwordx4 {v(O+4*s,4)}, v143, {sWS}, {sA0 if s==0 else sA1} offen sc1')
k.label('L_KV3'); k.nop(4)
k.I('s_barrier')
stamp(4)
k.vm=[(set(),'k4')]
KVE=[9,10,11][:int(OPT.get('kve','0'))]
emit_list(s2_dmas([5,6,7,8]+[x for x in [9,10,11] if x not in KVE]))
wait_ks([4]); emit_list(s2_reads([3,4])); k.waitcnt(lg=0); emit_list(s2_dmas([12,13]))
wait_ks([5,6,7,8]); emit_list(s2_reads([5,6,7,8])); k.waitcnt(lg=0); emit_list(s2_dmas([14]))
k.I(fl0)
stamp(9)
k.I('s_branch L_S2')
k.label('L_KV1'); k.set_state(st)
emit_list(v_tile(1,VV[1],152)+v_tile(2,VV[2],176))
emit_list(s2_dmas(KVE,True))
emit_list(feat2(Pp,E,S,True,O)+wr_tile(O,PHI[2],8))
k.force_wait(vm=0,lg=0)
k.I('s_branch L_KV2')

k.label('L_Q'); k.set_state(st_q)
k.c('Q role')
srd(sM,2,16*1568)
k.I(f'''s_sub_u32 {sRole}, {sRole}, 14
s_lshl_b32 {sH0}, {sRole}, 3
s_add_u32 {sH0}, {sH0}, {sWave}
s_mul_i32 {sA1}, {sH0}, 56
s_sub_u32 {sA1}, {sA1}, {sB0}
s_lshl_b32 {sA0}, {sA0}, 6
s_mul_i32 {sA2}, {sH0}, 1568
s_lshl_b32 {sA3}, {sWave}, 11
s_add_u32 {sT2}, {sA3}, {MISC}''')
wphi_lane(148, sT2)
k.I(f'''v_lshl_add_u32 v26, v29, 3, {sA1}
v_mov_b32 v1, {sA0}
v_cmp_eq_u32 vcc, 7, v29
v_cndmask_b32 v26, v26, v1, vcc''')
a_addr(0,26)
k.I(f'''v_and_b32 v2, 3, v0
v_lshlrev_b32 v2, 6, v2
v_xor_b32 v2, v2, v1
v_lshl_add_u32 v9, v0, 9, v2
s_mul_i32 {sT1}, {sWave}, 43
s_lshr_b32 {sT1}, {sT1}, 7
s_mul_i32 {sT1}, {sT1}, 3
s_sub_u32 {sT1}, {sWave}, {sT1}
s_lshl_b32 {sT1}, {sT1}, 15
v_add_u32 v9, {sT1}, v9''')
tags()
def gate(s):
    lab=newlab('g')
    if s==0: k.I('v_mov_b32 v34, v32\nv_mov_b32 v35, 0')
    k.I(f's_cmp_lg_u32 {sWave}, {s}\ns_cbranch_scc1 {lab}')
    k.I('ds_write_b64 v9, v[34:35]')
    k.label(lab)
WP=128; EQ=24
r0=wphi_reads(48,148,0)
QSET=f'''v_and_b32 v1, 3, v0
v_bfe_u32 v2, v0, 3, 1
v_lshl_add_u32 v1, v2, 2, v1
v_bfe_u32 v2, v0, 4, 1
v_bfe_u32 v3, v0, 2, 1
v_lshl_add_u32 v3, v2, 1, v3
v_mul_u32_u24 v3, 7, v3
v_add_u32 v3, v3, v1
v_lshl_add_u32 v2, v2, 3, v1
v_cmp_eq_u32 s[86:87], 15, v2
v_mov_b32 v2, 28
v_cmp_eq_u32 vcc, 7, v1
v_cndmask_b32 v3, v3, v2, vcc
v_lshlrev_b32 v20, 2, v3
v_add_u32 v36, 128, v20
v_mov_b32 v21, 0x3f800000
v_mov_b32 v22, 0x3f80
v_lshlrev_b32 v23, 7, v0
s_and_b32 s84, {sTB}, 1
s_lshl_b32 s84, s84, 2
s_and_b32 s85, {sH0}, 11
s_add_u32 s84, s84, s85
s_lshl_b32 s84, s84, 3
s_lshr_b32 s85, {sTB}, 1
s_add_u32 s84, s84, s85
s_lshl_b32 {sA1}, s84, 9
s_add_u32 {sA1}, {sA1}, {WS_P2}
s_lshl_b32 {sA0}, s84, 13
s_add_u32 {sA0}, {sA0}, {WS_P1}'''.split('\n')
ex={4:r0[:8],5:r0[8:],6:wphi_pack(48,WP),19:[(f'buffer_load_dword v147, v23, {sWS}, {sA0} offen','pf')]}
emit_list(QSET)
gemm1(1,4,{},S1+[dma(vL16, sM, sA2, sA3, MISC, 's1'), dma(vL16, sM, (sA2,1024), sA3, MISC+1024, 's1')],masked=True,pre_barrier=gate,extra=ex)
stamp(2)
PK=88;E=136;S=164;GG=168
k.I('v_mov_b32 v19, v36')
PP=[96,112]
emit_list(feat(ACC, WP, PK, PP[0]))
for t in range(4): k.I(f'v_mul_f32 {v(GG+t)}, s40, {v(ACC+16*t+12)}')
for t in range(4): k.I(f'v_min_f32 {v(GG+t)}, {f2u(86.0)}, {v(GG+t)}')
for t in range(4): k.I(f'v_exp_f32 {v(GG+t)}, {v(GG+t)}')
for t in range(4): k.I(f'v_mul_f32 {v(GG+t)}, s40, {v(GG+t)}')
for t in range(4): k.I(f'v_mov_b32 {v(172+t)}, {v(GG+t)}')
for t in range(4): k.I(f'v_permlane32_swap_b32 {v(172+t)}, {v(GG+t)}')
k.I(f's_cmp_lg_u32 {sH0}, 0\ns_cbranch_scc1 L_Q1')
st=k.state()
k.I(f'''v_cndmask_b32 v2, {v(GG)}, {v(GG+1)}, {sHi}
v_cndmask_b32 v10, {v(GG+2)}, {v(GG+3)}, {sHi}
v_add_f32 v2, s40, v2
v_add_f32 v10, s40, v10
v_rcp_f32 v2, v2
v_rcp_f32 v10, v10
v_mov_b32 v3, {sTag}
v_mov_b32 v11, {sTag}
v_lshlrev_b32 v1, 3, v0
s_lshl_b32 {sT1}, {sTB}, 10
s_add_u32 {sT1}, {sT1}, {WS_G}
buffer_store_dwordx2 v[2:3], v1, {sWS}, {sT1} offen sc1
buffer_store_dwordx2 v[10:11], v1, {sWS}, {sT1} offen offset:512 sc1''')
k.label('L_Q1'); k.set_state(st)
emit_list(feat(ACC+16, WP, 176, PP[1]))
for a_,b_ in zip(feat2(PP[0],E,S,True,EQ), feat2(PP[1],ACC,ACC+28,True,EQ+16)): k.I(a_); k.I(b_)
emit_list(feat(ACC+32, WP, PK, PP[0])+feat(ACC+48, WP, 176, PP[1]))
for a_,b_ in zip(feat2(PP[0],E,S,True,EQ+32), feat2(PP[1],ACC,ACC+28,True,EQ+48)): k.I(a_); k.I(b_)
stamp(3)
k.I(f'''s_lshl_b32 {sA2}, {sH0}, 12
s_add_u32 {sA2}, {sA2}, {WS_P2}
s_cmp_ge_u32 {sWave}, 4
s_cbranch_scc1 L_Q2''')
k.I(f's_add_u32 {sT1}, {sA0}, 4096')
R0=96; U0=ACC
poll([f'buffer_load_dwordx4 {v(R0+4*i,4)}, {v(vL16)}, {sWS}, {[sA0,sT1][i>>2]} offen offset:{(i&3)*1024} sc1' for i in range(8)],
     [(R0+4*i+3,sT16,1) for i in range(8)],'p1')
stamp(6)
if 'nodot' in OPT:
    for i in range(8):
        for j in range(4):
            k.I(f'v_lshlrev_b32 {v(U0+8*i+2*j)}, 16, {v(R0+4*i+j)}')
            k.I(f'v_and_b32 {v(U0+8*i+2*j+1)}, 0xffff0000, {v(R0+4*i+j)}')
    for st_ in (32,16,8):
        for j in range(0,st_,2): k.I(f'v_pk_add_f32 {v(U0+j,2)}, {v(U0+j,2)}, {v(U0+st_+j,2)}')
else:
    for j in range(4):
        k.I(f'v_lshlrev_b32 {v(U0+2*j)}, 16, {v(R0+j)}')
        k.I(f'v_and_b32 {v(U0+2*j+1)}, 0xffff0000, {v(R0+j)}')
    for i in range(1,8):
        for j in range(7):
            k.I(f'v_dot2c_f32_bf16 {v(U0+j)}, {v(R0+4*i+j//2)}, {v(22 if j%2==0 else 21)}')
    k.nop(3)
for j in range(4): k.I(f'v_permlane32_swap_b32 {v(U0+j)}, {v(U0+4+j)}')
for j in range(0,4,2): k.I(f'v_pk_add_f32 {v(U0+j,2)}, {v(U0+j,2)}, {v(U0+4+j,2)}')
k.I(f'''v_cvt_pk_bf16_f32 v12, {v(U0)}, {v(U0+1)}
v_cvt_pk_bf16_f32 v13, {v(U0+2)}, {v(U0+3)}
ds_bpermute_b32 v8, v20, v12
ds_bpermute_b32 v9, v20, v13
ds_bpermute_b32 v10, v19, v12
ds_bpermute_b32 v11, v19, v13
v_and_b32 v11, 0xffff, v11
v_or_b32 v11, {sTagH}, v11
s_not_b64 exec, {sHi}
buffer_store_dwordx4 v[8:11], {v(vL16)}, {sWS}, {sA1} offen sc1
s_mov_b64 exec, -1''')
k.label('L_Q2'); k.nop(2)
if 'nop2bar' not in OPT: k.I('s_barrier')
stamp(7)
KV=136
k.I(f'''s_lshl_b32 {sA0}, {sTB}, 6
s_add_u32 {sA0}, {sA0}, {sH0}
s_lshl_b32 {sA0}, {sA0}, 11
s_add_u32 {sA0}, {sA0}, {WS_O}
s_mov_b32 {sT1}, {f2u(1e-6)}''')
poll([f'buffer_load_dwordx4 {v(KV+4*i,4)}, {v(vL16)}, {sWS}, {sA2} offen offset:{i*1024} sc1' for i in range(4)],
     [(KV+4*i+3,sT16,1) for i in range(4)],'p2')
stamp(4)
def omf(t):
    d=v(ACC+16*t,16)
    return [f'v_mfma_f32_32x32x16_bf16 {d}, {v(KV+4*i,4)}, {v(EQ+16*t+4*i,4)}, {"0" if i==0 else d}' for i in range(4)]
def ofin(t):
    p=ACC+16*t; o=96+8*t; c=8+t
    L=[f'v_add_f32 {v(c)}, {sT1}, {v(p+7)}', f'v_rcp_f32 {v(c)}, {v(c)}', f'v_mul_f32 {v(c)}, {v(c)}, {v(GG+t)}']
    for s in range(2):
        L+=[f'v_mul_f32 {v(p+8*s+j)}, {v(c)}, {v(p+8*s+j)}' for j in range(7)]
        L+=[f'v_cvt_pk_bf16_f32 {v(o+4*s+j)}, {v(p+8*s+2*j)}, {v(p+8*s+2*j+1) if j<3 else "0"}' for j in range(4)]
        L.append(f'v_or_b32 {v(o+4*s+3)}, {sTagH}, {v(o+4*s+3)}')
        L.append(f'buffer_store_dwordx4 {v(o+4*s,4)}, {v(vL16)}, {sWS}, {sA0} offen offset:{1024*s} sc1')
    L.append(f's_add_u32 {sA0}, {sA0}, 32768')
    return L
emit_list(omf(0)+omf(1))
emit_list(interleave(omf(2),ofin(0)))
emit_list(interleave(omf(3),ofin(1)))
emit_list(ofin(2)+ofin(3))
k.I(f'''s_lshl_b32 {sA0}, {sTB}, 4
s_add_u32 {sA0}, {sA0}, {sH0}
s_lshl_b32 {sA0}, {sA0}, 7
s_add_u32 {sA0}, {sA0}, {WS_FO}''')
flag_store(sA0)
stamp(5)
k.I(f's_cmp_lg_u32 s2, 0\ns_cbranch_scc1 L_Qend\ns_cmp_lg_u32 {sWave}, 0\ns_cbranch_scc1 L_Qend')
k.I('v_lshlrev_b32 v1, 7, v0')
k.I(f's_mov_b32 {sA0}, {WS_FA}\ns_mov_b32 {sA1}, {WS_FA+8192}\ns_mov_b32 {sT0}, {WS_FO}\ns_mov_b32 {sT1}, {WS_FO+8192}\ns_mov_b32 {sT2}, {WS_FO+16384}\ns_mov_b32 {sT3}, {WS_FO+24576}')
poll([f'buffer_load_dword {v(8+i)}, v1, {sWS}, {s} offen sc1' for i,s in enumerate([sA0,sA1,sT0,sT1,sT2,sT3])],[(8+i,sTag,0) for i in range(6)],'ep')
k.I(f's_mov_b32 {sA0}, {WS_EPOCH}')
flag_store(sA0)
k.label('L_Qend'); k.nop(2)
stamp(15)
dump_stamps()
k.label('L_end')
k.I('s_endpgm')
k.label('L_codeend')
k.raw(f""".section .rodata,"a"
.p2align 6
.amdhsa_kernel {NAME}_kernel
  .amdhsa_next_free_vgpr 256
  .amdhsa_next_free_sgpr 102
  .amdhsa_accum_offset 256
  .amdhsa_group_segment_fixed_size 0
  .amdhsa_kernarg_size 96
  .amdhsa_user_sgpr_count 2
  .amdhsa_user_sgpr_kernarg_segment_ptr 1
  .amdhsa_system_sgpr_workgroup_id_x 1
.end_amdhsa_kernel""")
open(OUT,'w').write(k.text())
print('instructions', k.nins)
```

```python
import sys, struct
from emit import K, interleave
NAME = "gated_mix__linear_kernel_hedgehog__dense_activation_mish__prompt"
TS = '--ts' in sys.argv
CLK = 's_memtime' if '--cyc' in sys.argv else 's_memrealtime'
OPT = {a[2:].split('=')[0]:(a.split('=')[1] if '=' in a else '1') for a in sys.argv[1:] if a.startswith('--')}
OUT = [a for a in sys.argv[1:] if not a.startswith('--')][0]

def f2u(x): return struct.unpack('<I', struct.pack('<f', x))[0]
LOG2E = 1.4426950408889634; LN2 = 0.6931471805599453

WB=int(OPT.get('wb','0'),0)
WS_EPOCH=0; WS_FA=WB+0x20000; WS_FO=WB+0x24000; WS_G=WB+0x2C000; WS_P2=WB+0x30000; WS_P1=WB+0x100000; WS_O=WB+0x500000; WS_ACT=WB+0x800000; WS_TS=0xF000000
WR=0; XR=96*1024; MISC=144*1024; LDS_BYTES=160*1024
SPIN=200000

sRot='s3'; sR6='s6'; sR7='s7'
sX='s[8:11]'; sW='s[12:15]'; sWS='s[16:19]'; sW2='s[20:23]'; sWO='s[24:27]'; sOUT='s[28:31]'; sM='s[32:35]'; sG='s[36:39]'
sL2='s[40:41]'
sLn='s[42:43]'
sWave='s44'; sTB='s45'; sRole='s46'; sT64='s47'; sCT='s48'; sTag='s49'; sTagH='s50'
sLW='s51'
sT0='s52'; sT1='s53'; sT2='s54'; sT3='s55'
sMask='s[56:57]'; sHi='s[58:59]'
sW2b='s60'; sWOb='s61'; sL4='s62'; sL2k='s63'
sSpin='s88'; sH0='s89'; sA0='s90'; sA1='s91'
sTS=92
sI='s94'; sStr='s95'; sB0='s96'; sE='s97'; sA2='s98'; sA3='s99'
sRa='s4'; sRb='s5'
sFA='s81'; sAC='s82'; sGB='s83'; sOB='s78'; sFO='s79'
sT16='s80'
P = lambda i: 64+2*i

def v(a,n=1): return f'v{a}' if n==1 else f'v[{a}:{a+n-1}]'

k=K()
nlab=[0]
def newlab(p):
    nlab[0]+=1; return f'L_{p}_{nlab[0]}'

def srd(dst, ptr, size):
    d=int(dst[2:dst.index(':')])
    k.I(f's_mov_b32 s{d}, s{P(ptr)}\ns_mov_b32 s{d+1}, s{P(ptr)+1}\ns_mov_b32 s{d+2}, {size}\ns_mov_b32 s{d+3}, 0x20000')

NSTAMP=16
def tsreg(i): return sTS+i if i<2 else 64+i-2
def stamp(i):
    if 'probe' in OPT:
        if i==int(OPT['probe']):
            k.I('s_memrealtime s[100:101]'); k.force_wait(lg=0); k.I(f's_mov_b32 s{sTS+1}, s100')
        return
    if 'gts' in OPT and i not in (1,2,15): return
    if 's2ts' in OPT and i not in (2,6,10,11,15): return
    gstamp(i)
def gstamp(i):
    if not TS: return
    k.I(CLK+' s[100:101]'); k.force_wait(lg=0); k.I(f's_mov_b32 s{tsreg(i)}, s100')
def stamp_init():
    if 'probe' in OPT: k.I(f's_mov_b32 s{sTS+1}, s{sTS}')
    if not TS: return
    for i in range(1,NSTAMP): k.I(f's_mov_b32 s{tsreg(i)}, 0')
def dump_stamps():
    if 'padto' in OPT:
        lab=newlab('pad'); k.label(lab)
        k.I('s_memrealtime s[100:101]'); k.force_wait(lg=0)
        k.I(f's_sub_u32 {sT0}, s100, s{sTS+(1 if "probe" in OPT else 0)}\ns_cmp_lt_u32 {sT0}, {OPT["padto"]}\ns_cbranch_scc1 {lab}')
        return
    if not TS: return
    k.I('s_mov_b64 exec, 1')
    k.I(f's_lshl_b32 {sT0}, s2, 3\ns_add_u32 {sT0}, {sT0}, {sWave}\ns_lshl_b32 {sT0}, {sT0}, 7\ns_add_u32 {sT0}, {sT0}, {WS_TS}\nv_mov_b32 v1, 0\nv_mov_b32 v3, 0')
    for i in range(NSTAMP):
        k.I(f'v_mov_b32 v2, s{tsreg(i)}')
        k.I(f'buffer_store_dwordx2 v[2:3], v1, {sWS}, {sT0} offen offset:{8*i}')

vLane=0; vW=4; vX=5; vW2=6; vL16=7
vA=8; vB=16; vC=20
WREG=24
FB=152; FA=160; ACC=192
vPF=143
vS2=136

def dma(voff, srd_, soff, ldsbase, ldsconst, tag, masked=False, pre='', post=''):
    L=[]
    if pre: L.append(pre)
    L.append(f's_add_u32 m0, {ldsbase}, {ldsconst}')
    so=sT0
    if isinstance(soff,int): L.append(f's_mov_b32 {sT0}, {soff}')
    elif isinstance(soff,str): so=soff
    else: L.append(f's_add_u32 {sT0}, {soff[0]}, {soff[1]}')
    if masked: L.append(f's_mov_b64 exec, {sMask}')
    L.append(f'buffer_load_dwordx4 {v(voff)}, {srd_}, {so} offen lds')
    if masked: L.append('s_mov_b64 exec, -1')
    if post: L.append(post)
    return ('\n'.join(L), tag)

ROT0 = 'rot7' in OPT
def chunk_expr(s, dst, tmp):
    if ROT0: return f's_add_u32 {dst}, {sRot}, {s}\ns_sub_u32 {tmp}, {dst}, 7\ns_cmp_ge_u32 {dst}, 7\ns_cselect_b32 {dst}, {tmp}, {dst}'
    if s==0: return f's_mov_b32 {dst}, 0'
    return f's_add_u32 {dst}, {sRot}, {s}\ns_sub_u32 {tmp}, {dst}, 6\ns_cmp_ge_u32 {dst}, 7\ns_cselect_b32 {dst}, {tmp}, {dst}'
def s1_dmas(s, masked=False):
    slot=s%3; L=[]
    pre=chunk_expr(s,sR6,sR7)+f'\ns_mul_i32 {sR7}, {sR6}, {sStr}\ns_lshl_b32 {sR7}, {sR7}, 2\ns_lshl_b32 {sR6}, {sR6}, 7'
    for m in range(2): L.append(dma(vX, sX, (sR6,64*m*896) if m else sR6, sLW, XR+slot*16384+m*8192, f's{s}', pre=pre if m==0 else ''))
    for m in range(4): L.append(dma(vW, sW, sR7, sLW, WR+slot*32768+m*8192, f's{s}', masked, post=f's_add_u32 {sR7}, {sR7}, {sStr}' if m<3 else ''))
    return L

PSLOT=[1,2,0,1,2,0]
def ks_lds(ks):
    p,i=divmod(ks,3); s=PSLOT[p]
    if i<2: return ('W', WR+s*32768+i*2048)
    return ('X', s*16384)
def kidx(ks, dst, tmp):
    if 'norot2' in OPT: return f's_mov_b32 {dst}, {ks}'
    if ks<8: return f's_add_u32 {dst}, {sRa}, {ks}\ns_and_b32 {dst}, {dst}, 7'
    return f's_add_u32 {dst}, {sRb}, {ks}\ns_sub_u32 {tmp}, {dst}, 6\ns_cmp_ge_u32 {dst}, 14\ns_cselect_b32 {dst}, {tmp}, {dst}'
def s2_dma_ks(ks, both=False):
    L=[]; kind,off=ks_lds(ks)
    base = sL4 if kind=='W' else sL2k
    dl = 16384 if kind=='W' else 8192
    tag=f'k{ks}'
    assert ks<14 or not both
    if ks<14:
        pre=kidx(ks,sT1,sT2)+f'\ns_mul_i32 {sT1}, {sT1}, {16*896}\ns_add_u32 {sT1}, {sT1}, {sW2b}'
        T=[dma(vW2, sW2, sT1, base, off, tag, pre=pre), dma(vW2, sW2, (sT1,8*896), base, off+1024, tag)]
        if both:
            m=lambda x: x & 0xffffffff
            T+=[dma(vW2, sW2, (sT1,m(-4*224*896)), base, m(off-dl), tag), dma(vW2, sW2, (sT1,m(8*896-4*224*896)), base, m(off+1024-dl), tag)]
        return [('\n'.join(t[0] for t in T),tag)]
    hd,s=divmod(ks-14,2)
    return [dma(vW2, sWO, (sWOb,(28*hd+14*s+8*h)*896), base, off+1024*h, tag) for h in range(2)]
def s2_dmas(kss, both=False): return [d for ks in kss for d in s2_dma_ks(ks,both)]
def wait_ks(kss):
    for ks in kss: k.wait_tag(f'k{ks}')
def wreg(ks,ct): return WREG+8*ks+4*ct
def s2_reads(kss, base=None, obase=None):
    base = vS2 if base is None else base
    L=[]
    for ks in kss:
        kind,off=ks_lds(ks)
        if ks<14:
            if kind=='W':
                a=base
                if off>=65536: a+=2; off-=65536
            else: a=base+4
            st=1024
        else:
            a = obase if kind=='W' else obase+2
            st=512
        for ct in range(2):
            for i in range(2):
                L.append(f'ds_read_b64_tr_b16 {v(wreg(ks,ct)+2*i,2)}, {v(a+ct)} offset:{off+st*i}')
    return L
R3=lambda a,b: list(range(a,b))

def emit_list(L):
    for x in L:
        if callable(x): x()
        elif isinstance(x,tuple): k.I(x[0],x[1])
        else: k.I(x)

def gemm1(NA, NB, tail, first, masked=False, pre_barrier=None, extra=None):
    extra = extra or {}
    if MPG>=0: extra.setdefault(MPG,[]).extend(MPF)
    if 'dose' in OPT:
        g0=int(OPT['dose']); stp=int(OPT.get('dstep','3')); nd_=-(-49//DL)
        for j in range(nd_):
            extra.setdefault(g0+stp*j,[]).append((f's_mov_b32 {sT0}, {j*DL*128}\nbuffer_load_dword v{146+(j&1)}, v144, {sW2}, {sT0} offen','pf'))
        extra.setdefault(g0+stp*nd_,[]).append((f'buffer_load_dword v150, v145, {sWO}, 0 offen','pf'))
    if NB==1: fa=lambda b,t: FA+16*b+4*t; fb=lambda b,t: FB+4*b
    else:     fa=lambda b,t: FB+4*b;      fb=lambda b,t: FA+16*b+4*t
    def reads(g):
        s,ks=divmod(g,4); slot=s%3; b=g&1; A=[];B=[]
        for t in range(NB):
            B.append(f'ds_read_b128 {v(fb(b,t),4)}, {v(vB+ks)} offset:{slot*16384+t*4096}')
        for t in range(NA):
            a=vA+t+(4 if slot==2 else 0); off=(slot&1)*32768+ks*8192
            A.append([f'ds_read_b64_tr_b16 {v(fa(b,t)+2*i,2)}, {v(a)} offset:{off+2048*i}' for i in range(2)])
        if NB==1: return B+[x for l in A for x in l]
        return A[0]+B
    def mfmas(g):
        b=g&1; L=[]
        for ta in range(NA):
            for tb in range(NB):
                d=v(ACC+16*(ta*NB+tb),16)
                c = '0' if g==0 else d
                L.append(f'v_mfma_f32_32x32x16_bf16 {d}, {v(fa(b,ta),4)}, {v(fb(b,tb),4)}, {c}')
        return L
    emit_list(first)
    if pre_barrier: pre_barrier(0)
    k.wait_tag('s0'); k.force_wait(lg=0); k.I('s_barrier')
    stamp(1)
    emit_list(reads(0))
    pend=s1_dmas(2,masked)
    for g in range(28):
        M=mfmas(g)
        if (g+1)%4==0:
            s=(g+1)//4
            if pre_barrier and s<7: pre_barrier(s)
            k.force_wait(lg=0)
            k.I(M[0]); M=M[1:]
            if s<7: k.wait_tag(f's{s}')
            k.I('s_barrier')
            if 'gts' in OPT and s<7: gstamp(8+s)
            n=s+2
            pend = s1_dmas(n,masked) if n<7 else list(tail.get(n,[]))
        ex = reads(g+1) if g+1<28 else []
        nd = (2 if g<19 else 1) if g<27 else 0
        d=pend[:nd]; pend=pend[nd:]
        if (g+2)%4==0 and g<27: d+=pend; pend=[]
        emit_list(interleave(M, ex+d+extra.get(g,[])))

def cmp_all(checks):
    first=True
    for r,s,hi in checks:
        dst = 'vcc' if first else sMask
        if hi: k.I(f'v_cmp_ne_u16_sdwa {dst}, {v(r)}, {s} src0_sel:WORD_1 src1_sel:WORD_0')
        else: k.I(f'v_cmp_ne_u32 {dst}, {s}, {v(r)}')
        if not first: k.I(f's_or_b64 vcc, vcc, {sMask}')
        first=False
    k.nop(1)
def poll(loads, checks, name):
    lab=newlab(name); done=newlab(name+'d')
    k.I(f's_mov_b32 {sSpin}, {SPIN}')
    k.nop(2)
    k.label(lab)
    for l in loads: k.I(l)
    k.force_wait(vm=0)
    cmp_all(checks)
    k.I(f's_cmp_eq_u64 vcc, 0\ns_cbranch_scc1 {done}')
    if 'sleep' in OPT: k.I(f's_sleep {OPT["sleep"]}')
    k.I(f's_sub_u32 {sSpin}, {sSpin}, 1\ns_cmp_lg_u32 {sSpin}, 0\ns_cbranch_scc1 {lab}')
    k.label(done)
def check_or_poll(loads, checks, name, hint=None):
    done=newlab(name+'ok')
    cmp_all(checks)
    k.I(f's_cmp_eq_u64 vcc, 0\ns_cbranch_scc1 {done}')
    st=k.state()
    if hint: poll(hint[0],hint[1],name+'h')
    poll(loads,checks,name)
    k.label(done); k.set_state(st)

def flag_store(soff_sgpr):
    k.I(f'v_mov_b32 v1, {sTag}\nv_mov_b32 v2, 0\ns_mov_b64 exec, 1')
    k.I(f'buffer_store_dword v1, v2, {sWS}, {soff_sgpr} offen sc1')
    k.I('s_mov_b64 exec, -1')

k.raw(f'; @launch grid=(256,1,1) block=(512,1,1) lds={LDS_BYTES}')
k.raw('.amdgcn_target "amdgcn-amd-amdhsa--gfx950"\n.text')
k.raw(f'.globl {NAME}_kernel\n.p2align 8\n.type {NAME}_kernel,@function\n{NAME}_kernel:')
k.I('s_cmp_ge_u32 s2, 256\ns_cbranch_scc1 L_end')
k.I('s_load_dwordx16 s[64:79], s[0:1], 0\ns_load_dwordx8 s[80:87], s[0:1], 64')
if TS or 'padto' in OPT: k.I(CLK+' s[100:101]')
k.I('s_getpc_b64 s[4:5]'); k.label('L_pc')
k.I(f'''v_lshrrev_b32 v1, 6, v0
s_lshr_b32 {sI}, s2, 3
v_and_b32 v2, 1, v0
v_readfirstlane_b32 {sWave}, v1
v_lshl_add_u32 v2, v1, 1, v2
s_lshl_b32 {sT0}, {sI}, 4
v_add_lshl_u32 v2, v2, {sT0}, 7
v_min_u32 v2, L_codeend-L_pc-4, v2
v_and_b32 v0, 63, v0''')
if 'nocpf' not in OPT: k.I(f'global_load_dword {v(vPF)}, v2, s[4:5]','cpf')
NR = 7 if ROT0 else 6
k.I(f'''s_and_b32 {sT0}, s2, 7
s_lshr_b32 {sT3}, {sT0}, 1
s_lshl_b32 {sT1}, {sT3}, 4
s_sub_u32 {sT1}, {sT1}, 16
s_mul_i32 {sT2}, {sT3}, 12
s_add_u32 {sT2}, {sT2}, 60
s_cmp_lt_u32 {sI}, 16
s_cselect_b32 {sT1}, {sT2}, {sT1}
s_lshl_b32 {sT2}, {sT3}, 2
s_add_u32 {sT2}, {sT2}, 112
s_cmp_lt_u32 {sI}, 4
s_cselect_b32 {sT1}, {sT2}, {sT1}
s_add_u32 {sT1}, {sT1}, {sI}
s_lshr_b32 {sRole}, {sT1}, 3
s_and_b32 {sT1}, {sT1}, 7
s_and_b32 {sTB}, s2, 1
s_lshl_b32 {sTB}, {sTB}, 3
s_add_u32 {sTB}, {sTB}, {sT1}
s_lshl_b32 {sLW}, {sWave}, 10
s_mul_i32 {sT1}, {sRole}, 448
s_and_b32 {sT1}, {sT1}, 0xffffff80
s_lshl_b32 {sT2}, {sRole}, 7
s_sub_u32 {sT2}, {sT2}, 128
s_mul_i32 {sT3}, {sRole}, 384
s_sub_u32 {sT3}, {sT3}, {14*384}
s_cmp_lt_u32 {sRole}, 14
s_cselect_b32 {sB0}, {sT2}, {sT3}
s_cselect_b32 {sE}, 640, 0
s_cmp_lt_u32 {sRole}, 8
s_cselect_b32 {sB0}, {sT1}, {sB0}
s_cselect_b32 {sE}, 0, {sE}
s_movk_i32 {sStr}, 2688
s_cselect_b32 {sStr}, 3584, {sStr}
s_cmp_eq_u32 {sRole}, 14
s_cselect_b32 {sA0}, 7, 8
s_cmp_eq_u32 {sRole}, 15
s_cselect_b32 {sA0}, 0, {sA0}
s_add_u32 {sRot}, {sRole}, {sTB}
s_mul_i32 {sT1}, {sRot}, {37 if ROT0 else 43}
s_lshr_b32 {sT1}, {sT1}, 8
s_mul_i32 {sT1}, {sT1}, {NR}
s_sub_u32 {sRot}, {sRot}, {sT1}''')
if 'norot' in OPT: k.I(f's_mov_b32 {sRot}, 0')
if OPT.get('rmod')=='2': k.I(f's_and_b32 {sRot}, {sRot}, 1\ns_mul_i32 {sRot}, {sRot}, 3')
if OPT.get('rmod')=='3': k.I(f's_sub_u32 {sT1}, {sRot}, 3\ns_cmp_ge_u32 {sRot}, 3\ns_cselect_b32 {sRot}, {sT1}, {sRot}\ns_lshl_b32 {sRot}, {sRot}, 1')
k.I(f'''v_lshrrev_b32 v1, 3, v0
s_lshl_b32 {sT1}, {sWave}, 3
v_add_u32 v1, {sT1}, v1
v_lshrrev_b32 v2, 1, v1
v_xor_b32 v2, v2, v0
v_and_b32 v2, 7, v2
v_mul_u32_u24 v1, 896, v1
v_lshl_add_u32 v1, v2, 4, v1
s_mul_i32 {sT1}, {sTB}, {128*896}
v_add_u32 {v(vX)}, {sT1}, v1''')
k.I(f'''v_lshrrev_b32 v3, 5, v0
s_lshl_b32 {sT1}, {sWave}, 1
v_add_u32 v24, {sT1}, v3
v_and_b32 v25, 3, v24
v_lshlrev_b32 v25, 2, v25
v_and_b32 v26, 31, v0
v_xor_b32 v25, v25, v26
v_mul_u32_u24 v24, {sStr}, v24
v_lshl_add_u32 v24, v25, 4, v24
v_lshrrev_b32 v26, 4, v25
v_mul_u32_u24 v26, {sE}, v26
v_add3_u32 {v(vW)}, v24, v26, {sB0}
v_lshrrev_b32 v25, 2, v25
v_cmp_ne_u32 {sMask}, {sA0}, v25
s_mov_b32 s10, {2048*896}
s_mov_b32 s11, 0x20000
s_mov_b32 s15, 0x20000
s_mul_i32 s14, {sStr}, 448
s_lshl_b32 {sStr}, {sStr}, 4''')
k.force_wait(lg=0)
if TS or 'padto' in OPT: k.I(f's_mov_b32 s{sTS}, s100')
k.I(f'''s_mov_b32 s8, s{P(0)}
s_mov_b32 s9, s{P(0)+1}
s_cmp_lt_u32 {sRole}, 8
s_cselect_b32 s12, s{P(5)}, s{P(1)}
s_cselect_b32 s13, s{P(5)+1}, s{P(1)+1}''')
emit_list(s1_dmas(0,True))
k.I(f's_load_dword {sTag}, s[{P(11)}:{P(11)+1}], {WS_EPOCH}')
srd(sG,8,896)
if ROT0: k.I(f's_add_u32 {sT1}, {sWave}, {sRot}\ns_sub_u32 {sT2}, {sT1}, 7\ns_cmp_ge_u32 {sT1}, 7\ns_cselect_b32 {sT1}, {sT2}, {sT1}')
else: k.I(f's_add_u32 {sT1}, {sWave}, {sRot}\ns_sub_u32 {sT2}, {sT1}, 6\ns_cmp_ge_u32 {sT1}, 7\ns_cselect_b32 {sT1}, {sT2}, {sT1}\ns_cmp_eq_u32 {sWave}, 0\ns_cselect_b32 {sT1}, 0, {sT1}')
k.I(f's_lshl_b32 {sT1}, {sT1}, 7\nv_lshlrev_b32 v1, 1, v0\nbuffer_load_ushort v32, v1, {sG}, {sT1} offen')
k.I('s_barrier')
S1=s1_dmas(1,True)
NPRE=int(OPT.get('npre','2'))
emit_list(S1[:NPRE]); S1=S1[NPRE:]
srd(sWS,11,0x10000000); srd(sW2,7,1792*896); srd(sWO,3,448*896); srd(sOUT,9,2048*896)
DL=int(OPT.get('dl','10'))
k.I(f'''s_lshl_b32 {sT0}, {sI}, 3
s_add_u32 {sT0}, {sT0}, {sWave}
s_mul_i32 {sT1}, {sT0}, 49
s_mul_i32 {sT2}, {sT0}, 13
v_min_u32 v1, {DL-1}, v0
v_min_u32 v2, 12, v0
v_add_lshl_u32 v144, v1, {sT1}, 7
v_add_lshl_u32 v145, v2, {sT2}, 7
s_and_b32 {sT0}, s2, 7
s_mul_i32 {sT3}, {sT0}, 7
s_add_u32 {sT1}, {sT1}, {sT3}
s_lshl_b32 {sT3}, {sT0}, 1
s_add_u32 {sT2}, {sT2}, {sT3}
v_min_u32 v1, 6, v0
v_min_u32 v2, 1, v0
v_add_lshl_u32 v150, v1, {sT1}, 7
v_add_lshl_u32 v151, v2, {sT2}, 7''')
def pf(a):
    return [(f'buffer_load_dword v146, {v(a)}, {sW2}, 0 offen','pf'),(f'buffer_load_dword v147, {v(a+1)}, {sWO}, 0 offen','pf')]
k.I(f's_lshl_b32 {sT0}, s2, 3\ns_add_u32 {sT0}, {sT0}, {sWave}\ns_and_b32 {sT0}, {sT0}, 1023\ns_lshl_b32 {sT0}, {sT0}, 7\ns_add_u32 {sT0}, {sT0}, {WS_FA}\nv_mov_b32 v33, {sT0}')
MPF=([] if 'nompf' in OPT else pf(150))+([] if 'notouch' in OPT else [(f'buffer_load_dword v33, v33, {sWS}, 0 offen','pf')])
MPG=int(OPT.get('mpg','9'))
if MPG<0: S1=S1+MPF
if 'tlbt' in OPT:
    sh=int(OPT['tlbt'])
    k.I(f'v_lshlrev_b32 v37, {sh}, v0\nv_min_u32 v38, {WB+0xf00000-128}, v37')
    TL=[(f'buffer_load_dword v146, v38, {sWS}, 0 offen','pf'),(f'buffer_load_dword v146, v37, {sW2}, 0 offen','pf'),(f'buffer_load_dword v146, v37, {sWO}, 0 offen','pf'),(f'buffer_load_dword v146, v37, {sOUT}, 0 offen','pf')]
    if 'tlbe' in OPT: emit_list(TL)
    else: S1=S1+TL
PFG=int(OPT.get('pfg','18'))
L2PF = pf(144) if 'l2pf' in OPT else []
k.I(f'''s_mov_b32 s40, {f2u(LOG2E)}
s_mov_b32 s41, {f2u(LOG2E)}
s_mov_b32 s42, {f2u(LOG2E)}
s_mov_b32 s43, {f2u(-LOG2E)}
s_mov_b32 s58, 0
s_mov_b32 s59, -1
v_lshlrev_b32 {v(vL16)}, 4, {v(vLane)}''')
k.I(f'''v_and_b32 v1, 31, v0
v_bfe_u32 v2, v0, 1, 3
v_xor_b32 v2, v2, v3
v_lshlrev_b32 v2, 4, v2
v_lshl_add_u32 v1, v1, 7, v2
s_and_b32 {sT0}, {sWave}, 3
s_lshl_b32 {sT0}, {sT0}, 12
s_cmp_lt_u32 {sRole}, 14
s_cselect_b32 {sT0}, {sT0}, 0
s_add_u32 {sT0}, {sT0}, {XR}
v_add_u32 {v(vB)}, {sT0}, v1
v_xor_b32 {v(vB+1)}, 32, {v(vB)}
v_xor_b32 {v(vB+2)}, 64, {v(vB)}
v_xor_b32 {v(vB+3)}, 96, {v(vB)}''')
k.I(f'''v_bfe_u32 v28, v0, 2, 2
v_lshl_add_u32 v27, v3, 3, v28
v_lshlrev_b32 v27, 9, v27
v_lshlrev_b32 v28, 6, v28
v_bfe_u32 v29, v0, 4, 1
v_and_b32 v26, 3, v0
v_lshl_add_u32 v29, v29, 2, v26''')
k.I(f's_cmp_ge_u32 {sRole}, 14\ns_cbranch_scc1 L_Q')
st_q=k.state()
def s2_setup():
    t0,t1,t2,t3='s84','s85','s86','s87'
    T=f'''s_sub_u32 {t1}, {sI}, 4
s_mul_i32 {t2}, {t1}, 37
s_lshr_b32 {t2}, {t2}, 8
s_mul_i32 {t3}, {t2}, 7
s_sub_u32 {sCT}, {t1}, {t3}
s_and_b32 {t0}, s2, 6
s_lshl_b32 {sT64}, {t0}, 1
s_andn2_b32 {t0}, 1, s2
s_lshl_b32 {t0}, {t0}, 4
s_add_u32 {sT64}, {sT64}, {t0}
s_add_u32 {sT64}, {sT64}, {t2}
s_lshl_b32 {sRa}, {t2}, 1
s_add_u32 {sRa}, {sRa}, {sCT}
s_mul_i32 {t0}, {sRa}, 43
s_lshr_b32 {t0}, {t0}, 8
s_mul_i32 {t0}, {t0}, 6
s_sub_u32 {sRb}, {sRa}, {t0}
s_mul_i32 {sW2b}, {sWave}, {224*896}
s_mul_i32 {sWOb}, {sWave}, {56*896}
s_lshl_b32 {sL4}, {sWave}, 12
s_lshl_b32 {sL2k}, {sWave}, 11
s_add_u32 {sL2k}, {sL2k}, {XR}
v_lshrrev_b32 v1, 3, v0
v_lshlrev_b32 v2, 1, v1
v_and_b32 v2, 4, v2
v_and_b32 v3, 7, v0
v_xor_b32 v2, v2, v3
v_mul_u32_u24 v1, 896, v1
v_lshl_add_u32 v1, v2, 4, v1
s_lshl_b32 {t0}, {sCT}, 7
v_add_u32 {v(vW2)}, {t0}, v1
v_lshrrev_b32 v1, 5, v0
v_lshlrev_b32 v1, 9, v1
v_bfe_u32 v2, v0, 2, 2
v_lshl_add_u32 v1, v2, 7, v1
v_lshrrev_b32 v2, 1, v2
v_lshl_add_u32 v1, v2, 6, v1
v_bfe_u32 v2, v0, 4, 1
v_lshl_add_u32 v1, v2, 5, v1
v_and_b32 v2, 3, v0
v_lshl_add_u32 v1, v2, 3, v1
v_xor_b32 v2, 64, v1
v_add_u32 {v(vS2)}, {sL4}, v1
v_add_u32 {v(vS2+1)}, {sL4}, v2
v_add_u32 {v(vS2+2)}, 0x10000, {v(vS2)}
v_add_u32 {v(vS2+3)}, 0x10000, {v(vS2+1)}
v_add_u32 {v(vS2+4)}, {sL2k}, v1
v_add_u32 {v(vS2+5)}, {sL2k}, v2
s_lshr_b32 {t1}, {sT64}, 1
s_lshl_b32 {sFA}, {t1}, 3
s_add_u32 {sFA}, {sFA}, {sWave}
s_lshl_b32 {sFA}, {sFA}, 7
s_and_b32 {t2}, {sT64}, 1
s_lshl_b32 {t2}, {t2}, 3
s_add_u32 {sFA}, {sFA}, {t2}
s_add_u32 {sFA}, {sFA}, {WS_FA}
s_mul_i32 {sAC}, {sT64}, 224
s_mul_i32 {t2}, {sWave}, 14
s_add_u32 {sAC}, {sAC}, {t2}
s_lshl_b32 {sAC}, {sAC}, 10
s_add_u32 {sAC}, {sAC}, {WS_ACT}
s_lshl_b32 {sGB}, {sT64}, 9
s_add_u32 {sGB}, {sGB}, {WS_G}
s_lshl_b32 {t2}, {sWave}, 1
s_lshl_b32 {sOB}, {sT64}, 5
s_add_u32 {sOB}, {sOB}, {t2}
s_lshl_b32 {sOB}, {sOB}, 11
s_add_u32 {sOB}, {sOB}, {WS_O}
s_add_u32 {sB0}, {sOB}, 32768
s_lshl_b32 {t1}, {t1}, 4
s_add_u32 {t1}, {t1}, {t2}
s_lshl_b32 {sFO}, {t1}, 7
s_add_u32 {sFO}, {sFO}, {WS_FO}'''
    return T.split('\n')
fl0=f'v_and_b32 v4, 1, v0\nv_lshlrev_b32 v4, 2, v4\nbuffer_load_dword v5, v4, {sWS}, {sFA} offen sc1'
def tags():
    k.force_wait(lg=0)
    k.I(f'''s_lshr_b32 {sT16}, {sTag}, 16
    s_add_u32 {sT16}, {sT16}, 0x2a5b
    s_and_b32 {sT16}, {sT16}, 0x3fff
    s_lshl_b32 {sTagH}, {sT16}, 16
    s_mul_i32 {sTag}, {sTag}, 1664525
    s_add_u32 {sTag}, {sTag}, 1013904223
    s_lshr_b32 {sTag}, {sTag}, 16
    s_or_b32 {sTag}, {sTag}, {sTagH}''')
    stamp_init(); stamp(8)
def a_addr(t, colexpr_v):
    k.I(f'''v_xor_b32 {v(vA+t)}, {v(colexpr_v)}, v28
    v_add_u32 {v(vA+t)}, {v(vA+t)}, v27
    v_add_u32 {v(vA+4+t)}, 0x10000, {v(vA+t)}''')
def spread(L, g0, g1, ex):
    n=g1-g0;
    for i in range(n):
        ex.setdefault(g0+i,[]).extend(L[i*len(L)//n:(i+1)*len(L)//n])
k.I(f's_cmp_ge_u32 {sRole}, 8\ns_cbranch_scc1 L_KV')
st_kv=k.state()

k.c('F role')
srd(sM,6,1792*2)
k.I(f'''s_mul_i32 {sT0}, {sRole}, 448
s_lshl_b32 {sT1}, {sWave}, 6
s_add_u32 {sT1}, {sT1}, {sT0}
v_and_b32 v1, 31, v0
v_lshlrev_b32 v2, 1, v1
buffer_load_ushort v148, v2, {sM}, {sT1} offen
s_lshl_b32 {sT1}, {sWave}, 7
s_add_u32 {sT1}, {sT1}, {MISC}
v_lshl_add_u32 v149, v1, 2, {sT1}
s_and_b32 {sT1}, {sT0}, 127
s_lshr_b32 {sA1}, {sWave}, 2
s_lshl_b32 {sT2}, {sA1}, 9
s_lshl_b32 {sA1}, {sA1}, 8
s_add_u32 {sA1}, {sT1}, {sA1}
s_add_u32 {sT2}, {sT2}, {MISC}
v_lshl_add_u32 v142, v3, 4, {sT2}''')
for t in range(4):
    k.I(f'v_lshl_add_u32 v26, v29, 3, {sA1}\nv_add_u32 v26, {64*t}, v26')
    a_addr(t,26)
tags()
FSET=f'''v_mov_b32 {v(vC)}, 0.5
v_mov_b32 {v(vC+1)}, 0.5
v_mov_b32 {v(vC+2)}, 1.0
v_mov_b32 {v(vC+3)}, 1.0
s_lshl_b32 {sA2}, {sTB}, 2
s_and_b32 s84, {sWave}, 3
s_add_u32 {sA2}, {sA2}, s84
s_mul_i32 {sA2}, {sA2}, 112
s_mul_i32 s84, {sRole}, 14
s_add_u32 {sA2}, {sA2}, s84
s_and_b32 s84, {sWave}, 4
s_lshl_b32 s84, s84, 1
s_add_u32 {sA2}, {sA2}, s84
s_lshl_b32 {sA2}, {sA2}, 10
s_add_u32 {sA2}, {sA2}, {WS_ACT}
s_add_u32 {sA3}, {sA2}, 4096
s_lshl_b32 {sA0}, {sTB}, 3
s_add_u32 {sA0}, {sA0}, {sRole}
s_lshl_b32 {sA0}, {sA0}, 7
s_lshl_b32 s84, {sWave}, 2
s_add_u32 {sA0}, {sA0}, s84
s_add_u32 {sA0}, {sA0}, {WS_FA}'''.split('\n')
emit_list(s2_setup()+FSET)
k.I(f's_cmp_ge_u32 {sWave}, 4\ns_cbranch_scc1 L_F3')
st_f3=k.state()

BI=104
def bias_reads(t):
    return [f'ds_read_b128 {v(BI+16*(t&1)+4*q,4)}, v142 offset:{128*t+32*q}' for q in range(4)]
def mish_tile(t, T, U, O):
    L=[]
    for hh in range(2):
        a=ACC+16*t+8*hh; b=BI+16*(t&1)+8*hh
        for i in range(0,8,2): L.append(f'v_pk_fma_f32 {v(a+i,2)}, {v(a+i,2)}, {sL2}, {v(b+i,2)}')
        for i in range(8): L.append(f'v_exp_f32 {v(T+i)}, {v(a+i)}')
        for i in range(0,8,2): L.append(f'v_pk_fma_f32 {v(U+i,2)}, {v(T+i,2)}, {v(vC,2)}, {v(vC+2,2)}')
        for i in range(0,8,2): L.append(f'v_pk_fma_f32 {v(U+i,2)}, {v(U+i,2)}, {v(T+i,2)}, {v(vC+2,2)}')
        for i in range(8): L.append(f'v_rcp_f32 {v(U+i)}, {v(U+i)}')
        for i in range(0,8,2): L.append(f'v_pk_fma_f32 {v(U+i,2)}, {v(a+i,2)}, {v(U+i,2)}, {v(a+i,2)} neg_lo:[1,0,0] neg_hi:[1,0,0]')
        for i in range(0,8,2): L.append(f'v_cvt_pk_bf16_f32 {v(O+4*hh+i//2)}, {v(U+i)}, {v(U+i+1)}')
    return L

def f_role(NT):
    ex={6:[f'v_lshlrev_b32 v148, 16, v148', f'v_mul_f32 v148, s40, v148', 'ds_write_b32 v149, v148'],
        24:bias_reads(0)+bias_reads(1), 25:[lambda: wait_ks(R3(0,3))]+s2_reads(R3(0,3))[:6], 26:s2_reads(R3(0,3))[6:]}
    gemm1(NT,1,{7:s2_dmas(R3(0,3)),8:s2_dmas(R3(3,6))},S1,extra=ex)
    stamp(2)
    T=168;U=176;O=184
    def tile(t):
        L=mish_tile(t,T,U,O)
        n=len(L)//2
        st=lambda hh: f'buffer_store_dwordx4 {v(O+4*hh,4)}, {v(vL16)}, {sWS}, {sA2 if t<2 else sA3} offen offset:{(2*(t&1)+hh)*1024} sc1'
        if 'noact' in OPT: st=lambda hh: 's_nop 0'
        return L[:n]+[st(0)]+L[n:n+6]+(bias_reads(t+2) if t+2<NT else [])+L[n+6:]+[st(1)]
    if NT==4:
        for t in range(4): emit_list(tile(t))
        stamp(9)
        wait_ks(R3(3,6)); emit_list(s2_reads(R3(3,6)))
        k.force_wait(vm=0)
        flag_store(sA0)
        stamp(4)
        k.waitcnt(lg=0); emit_list(s2_dmas(R3(12,15)))
        k.I(fl0)
        k.I('s_barrier')
        emit_list(s2_reads(R3(6,9)))
    else:
        emit_list(s2_dmas(R3(6,12),True))
        wait_ks(R3(3,6)); emit_list(s2_reads(R3(3,6))); k.waitcnt(lg=0); emit_list(s2_dmas(R3(12,15)))
        stamp(5)
        BT=int(OPT.get('bt','1'))
        for t in range(3):
            if t==BT: wait_ks(R3(6,12)); k.I('s_barrier'); emit_list(s2_reads(R3(6,9)))
            emit_list(tile(t))
        k.I(fl0)
        stamp(9)
        k.force_wait(vm=0)
        flag_store(sA0)
        stamp(4)
        k.waitcnt(lg=0)
        k.I('s_branch L_S2b')
    k.waitcnt(lg=0)
    stamp(3)

f_role(4)

k.label('L_S2'); k.force_wait(vm=0); k.label('L_S2b'); k.reset_state(); k.nop(2)
k.c('stage 2: k-steps 0-8 in regs, 9-14 landed in LDS, first-half act flag value in v5')
AD=ACC+48; OAD=20
for i in range(6): k.I(f'v_mov_b32 {v(AD+i)}, {v(vS2+i)}')
k.I(f'''v_lshrrev_b32 v2, 5, v0
v_mul_u32_u24 v2, 7, v2
v_bfe_u32 v3, v0, 2, 2
v_add_u32 v2, v2, v3
v_bfe_u32 v3, v2, 1, 1
v_lshlrev_b32 v2, 7, v2
v_lshl_add_u32 v2, v3, 6, v2
v_bfe_u32 v3, v0, 4, 1
v_lshl_add_u32 v2, v3, 5, v2
v_and_b32 v3, 3, v0
v_lshl_add_u32 v2, v3, 3, v2
v_xor_b32 v3, 64, v2
v_add_u32 {v(OAD)}, {sL4}, v2
v_add_u32 {v(OAD+1)}, {sL4}, v3
v_add_u32 {v(OAD+2)}, {sL2k}, v2
v_add_u32 {v(OAD+3)}, {sL2k}, v3
v_lshlrev_b32 v1, 5, v4''')
emit_list(s2_reads(R3(9,15),AD,OAD))
check_or_poll([f'buffer_load_dword v5, v4, {sWS}, {sFA} offen sc1'],[(5,sTag,0)],'fa')
stamp(6)
LA=int(OPT.get('la','4'))
free=[168,172,176,180,184,188,8,12,16,144,148,152,156,160,164]; where={}
def act_load(ks):
    b0=free.pop(0); b1=free.pop(0)
    if ks<14:
        where[(ks,0)]=b0; where[(ks,1)]=b1
        return [kidx(ks,sA0,sA1)+f'''
s_lshl_b32 {sA0}, {sA0}, 10
s_add_u32 {sA0}, {sA0}, {sAC}
s_add_u32 {sA1}, {sA0}, {112*1024}
buffer_load_dwordx4 {v(b0,4)}, {v(vL16)}, {sWS}, {sA0} offen sc1''', f'buffer_load_dwordx4 {v(b1,4)}, {v(vL16)}, {sWS}, {sA1} offen sc1']
    tt,q=divmod(2*(ks-14),4); L=[]
    for b in (b0,b1):
        ob[(q,tt)]=b
        L.append(f'buffer_load_dwordx4 {v(b,4)}, {v(vL16)}, {sWS}, {sOB if tt==0 else sB0} offen offset:{q*1024} sc1'); q+=1
    oloads.extend(L)
    return L
ob={}; oloads=[]
fl1=f'buffer_load_dword v2, v4, {sWS}, {sFA} offen offset:16 sc1'
hload=f'buffer_load_dword v3, v1, {sWS}, {sFO} offen sc1'
FD=int(OPT.get('fd','2'))
for ks in range(LA): emit_list(act_load(ks))
if 8-LA-FD<0: k.I(fl1)
k.waitcnt(lg=0)
S2T={0:4,2:5,4:7,6:8,7:9,8:12,10:13,12:14}
if 's2ts' in OPT: gstamp(3)
def acc2(tt,ct): return ACC+32*tt+16*ct
wo_d=s2_dmas(R3(15,18))
post=[]
for ks in range(14):
    M=[]
    for tt in range(2):
        for ct in range(2):
            d=v(acc2(tt,ct),16)
            M.append(f'v_mfma_f32_32x32x16_bf16 {d}, {v(wreg(ks,ct),4)}, {v(where[(ks,tt)],4)}, {"0" if ks==0 else d}')
    if ks>=2:
        free += [b for b in [where[(ks-2,0)],where[(ks-2,1)],wreg(ks-2,0),wreg(ks-2,1)] if not 144<=b<168]
    if ks==3: free=[b for b in free if not 144<=b<168]
    n=ks+LA
    if n==8: check_or_poll([fl1],[(2,sTag,0)],'fa1')
    if n==14: check_or_poll([hload],[(3,sTag,0)],'foh')
    X=act_load(n) if n<18 else []
    if n+FD==8: X.append(fl1)
    if n+FD==14: X.append(hload)
    if 1<=ks<7: X.append(wo_d[ks-1])
    if ks==10:
        assert all(not 144<=where[(j,t)]<168 for j in range(9,14) for t in range(2))
        X+= [lambda: wait_ks(R3(15,18))]+s2_reads(R3(15,18),AD,OAD)
    if ks==6:
        a0=free.pop(0); a1=free.pop(0); a2=free.pop(0); a3=free.pop(0); a4=free.pop(0)
        u1,u2,u3=a4,a4+1,a4+2
        t0,t1='s84','s85'
        post=f'''v_and_b32 {v(a2)}, 31, v0
v_lshrrev_b32 {v(a2+1)}, 5, v0
v_and_b32 {v(a2+2)}, 7, v0
v_xor_b32 {v(a2+1)}, {v(a2+1)}, {v(a2+2)}
v_lshlrev_b32 {v(a2+1)}, 4, {v(a2+1)}
v_lshl_or_b32 {v(a2+2)}, {v(a2)}, 7, {v(a2+1)}
v_add_u32 {v(a0)}, {sL4}, {v(a2+2)}
v_xor_b32 {v(a0+1)}, 32, {v(a0)}
v_xor_b32 {v(a0+2)}, 64, {v(a0)}
v_xor_b32 {v(a0+3)}, 96, {v(a0)}
v_lshrrev_b32 {v(a2)}, 4, {v(a2)}
v_mul_u32_u24 {v(a2)}, {16384-2048}, {v(a2)}
v_add3_u32 {v(a1)}, {v(a2)}, {v(a2+2)}, {sL2k}
v_xor_b32 {v(a1+1)}, 32, {v(a1)}
v_xor_b32 {v(a1+2)}, 64, {v(a1)}
v_xor_b32 {v(a1+3)}, 96, {v(a1)}
v_add_u32 {v(a2)}, 0x10000, {v(a0)}
v_add_u32 {v(a2+1)}, 0x10000, {v(a0+1)}
v_add_u32 {v(a2+2)}, 0x10000, {v(a0+2)}
v_add_u32 {v(a2+3)}, 0x10000, {v(a0+3)}
v_lshrrev_b32 {v(u1)}, 3, v0
v_lshlrev_b32 {v(a4+3)}, 3, {v(u1)}
v_and_b32 {v(u2)}, 3, v0
v_lshlrev_b32 {v(u2)}, 1, {v(u2)}
v_xor_b32 {v(u2)}, {v(u2)}, {v(u1)}
v_lshlrev_b32 {v(u2)}, 4, {v(u2)}
v_lshl_or_b32 {v(u2)}, {v(u1)}, 7, {v(u2)}
v_bfe_u32 {v(u3)}, v0, 2, 1
s_and_b32 {t0}, {sWave}, 3
s_lshl_b32 {t0}, {t0}, 10
s_lshr_b32 {t1}, {sWave}, 2
s_lshl_b32 {t1}, {t1}, 16
s_add_u32 {t0}, {t0}, {t1}
v_lshl_add_u32 {v(a3)}, {v(u3)}, 15, {t0}
v_add_u32 {v(a3)}, {v(a3)}, {v(u2)}
s_and_b32 {t0}, {sWave}, 1
s_lshl_b32 {t0}, {t0}, 10
s_and_b32 {t1}, {sWave}, 2
s_lshl_b32 {t1}, {t1}, 13
s_add_u32 {t0}, {t0}, {t1}
s_add_u32 {t0}, {t0}, {XR}
v_add_u32 {v(u2)}, {t0}, {v(u2)}
s_lshr_b32 {t1}, {sWave}, 2
v_and_b32 {v(u3)}, {t1}, {v(u3)}
v_cmp_eq_u32 s[86:87], 1, {v(u3)}
v_mov_b32 {v(a3+2)}, 4096
v_mov_b32 {v(a3+3)}, 2048
v_cndmask_b32 {v(a3)}, {v(a3)}, {v(u2)}, s[86:87]
v_cndmask_b32 {v(a3+2)}, {v(a3+2)}, {v(a3+3)}, s[86:87]
v_xor_b32 {v(a3+1)}, 16, {v(a3)}
v_and_b32 {v(u2)}, 7, v0
v_mul_u32_u24 {v(u1)}, 896, {v(u1)}
v_lshl_add_u32 {v(u1)}, {v(u2)}, 4, {v(u1)}
s_lshl_b32 {sA2}, {sT64}, 3
s_add_u32 {sA2}, {sA2}, {sWave}
s_lshl_b32 {sGB}, {sA2}, 6
s_add_u32 {sGB}, {sGB}, {WS_G}
s_mul_i32 {sA2}, {sA2}, {8*896}
s_lshl_b32 {t1}, {sCT}, 7
s_add_u32 {sA2}, {sA2}, {t1}'''.split('\n')
    if ks>=6 and post:
        X+=post[:16]; post=post[16:]
    gload=f'buffer_load_dwordx2 v[4:5], {v(a4+3)}, {sWS}, {sGB} offen sc1' if ks>=6 else None
    if ks==13: assert not post; X.append(gload)
    emit_list(interleave(M,X))
    if 's2ts' in OPT and ks in S2T: gstamp(S2T[ks])
for n in range(14+LA,18): emit_list(act_load(n))
stamp(10)
def wr(tt,ct):
    t=2*tt+ct
    a,off = [(a0,0),(a0,32768),(a2,0),(a1,0)][t]
    return [f'ds_write_b128 {v(a+q)}, {v(acc2(tt,ct)+4*q,4)} offset:{off}' for q in range(4)]
k.waitcnt(lg=0)
for tt in range(2):
    check_or_poll(oloads[4*tt:4*tt+4],[(ob[(q,tt)]+3,sT16,1) for q in range(4)],f'fo{tt}')
    if tt==0: stamp(11)
    for q in range(4): k.I(f'v_and_b32 {v(ob[(q,tt)]+3)}, 0xffff, {v(ob[(q,tt)]+3)}')
    for ct in range(2):
        for q in range(4):
            d=v(acc2(tt,ct),16)
            k.I(f'v_mfma_f32_32x32x16_bf16 {d}, {v(wreg(14+q,ct),4)}, {v(ob[(q,tt)],4)}, {d}')
        if (tt,ct)!=(0,0): emit_list(wr(*divmod(2*tt+ct-1,2)))
stamp(12)
check_or_poll([gload],[(5,sTag,0)],'fg')
emit_list(wr(1,1))
k.waitcnt(lg=0); stamp(13); k.I('s_barrier')
RB=ACC
for s in range(8):
    for c in range(2):
        k.I(f'ds_read_b128 {v(RB+8*s+4*c,4)}, {v(a3+c)}')
    if s<7: k.I(f'v_add_u32 {v(a3)}, {v(a3)}, {v(a3+2)}\nv_add_u32 {v(a3+1)}, {v(a3+1)}, {v(a3+2)}')
for s in range(1,8):
    for i in range(0,8,2): k.I(f'v_pk_add_f32 {v(RB+i,2)}, {v(RB+i,2)}, {v(RB+8*s+i,2)}')
for i in range(0,8,2): k.I(f'v_pk_mul_f32 {v(RB+i,2)}, {v(RB+i,2)}, v[4:5] op_sel_hi:[1,0]')
for i in range(4): k.I(f'v_cvt_pk_bf16_f32 {v(a0+i)}, {v(RB+2*i)}, {v(RB+2*i+1)}')
k.I(f'buffer_store_dwordx4 {v(a0,4)}, {v(u1)}, {sOUT}, {sA2} offen {OPT.get("outfl","sc1").replace("+"," ")}')
stamp(15)
dump_stamps()
k.I('s_endpgm')

k.label('L_F3'); k.set_state(st_f3)
f_role(3)

RV=[0,1,2,3,4,5,6,8,9,10,11,12,13,14]
def wphi_lane(dst, base_sgpr):
    k.I(f'''v_and_b32 v30, 3, v0
    v_bfe_u32 v31, v0, 3, 2
    v_lshl_add_u32 v30, v31, 2, v30
    v_lshrrev_b32 v31, 3, v30
    v_sub_u32 v30, v30, v31
    v_bfe_u32 v31, v0, 2, 1
    v_mul_u32_u24 v31, 14, v31
    v_add_u32 v30, v30, v31
    v_min_u32 v30, 27, v30
    v_lshlrev_b32 v30, 1, v30
    v_mul_u32_u24 v31, 224, v3
    v_add3_u32 {v(dst)}, v30, v31, {base_sgpr}''')
def wphi_reads(dst16, addr, off):
    return [f'ds_read_u16 {v(dst16+8*s+j)}, {v(addr)} offset:{off+(16*s+(j&3)+8*(j>>2))*56}' for s in range(2) for j in range(8)]
def wphi_pack(src16,dst8):
    L=[f'v_lshl_or_b32 {v(dst8+i)}, {v(src16+2*i+1)}, 16, {v(src16+2*i)}' for i in range(8)]
    L+=[f'v_cndmask_b32 {v(dst8+i)}, {v(dst8+i)}, 0, {sHi}' for i in (6,7)]
    return L
def feat(a, wp, PK, Pp):
    L=[f'v_cvt_pk_bf16_f32 {v(PK+i)}, {v(a+2*i)}, {v(a+2*i+1)}' for i in range(8)]
    L.append(f'v_mfma_f32_32x32x16_bf16 {v(Pp,16)}, {v(wp,4)}, {v(PK,4)}, 0')
    L.append(f'v_mfma_f32_32x32x16_bf16 {v(Pp,16)}, {v(wp+4,4)}, {v(PK+4,4)}, {v(Pp,16)}')
    return L
def feat2(Pp, E, S, norm, O):
    L=[]; A=L.append
    A(f'v_max_f32 {v(S)}, {v(Pp+RV[0])}, {v(Pp+RV[1])}')
    A(f'v_max_f32 {v(S+1)}, -{v(Pp+RV[0])}, -{v(Pp+RV[1])}')
    for i in range(2,14,2):
        A(f'v_max3_f32 {v(S)}, {v(S)}, {v(Pp+RV[i])}, {v(Pp+RV[i+1])}')
        A(f'v_max3_f32 {v(S+1)}, {v(S+1)}, -{v(Pp+RV[i])}, -{v(Pp+RV[i+1])}')
    A(f'v_permlane32_swap_b32 {v(S)}, {v(S+1)}')
    A(f'v_max_f32 {v(S)}, {v(S)}, {v(S+1)}')
    A(f'v_mul_f32 {v(S)}, s43, {v(S)}')
    A(f'v_mov_b32 {v(S+1)}, {v(S)}')
    A(f'v_permlane32_swap_b32 {v(S)}, {v(S+1)}')
    for i,r in enumerate(RV):
        h=r&1
        A(f'v_pk_fma_f32 {v(E+2*i,2)}, {v(Pp+r-h,2)}, {sLn}, {v(S,2)} op_sel:[{h},0,0] op_sel_hi:[{h},1,1]')
    for r in range(28): A(f'v_exp_f32 {v(E+r)}, {v(E+r)}')
    if norm:
        A(f'v_pk_add_f32 {v(S,2)}, {v(E,2)}, {v(E+2,2)}')
        A(f'v_pk_add_f32 {v(S+2,2)}, {v(E+4,2)}, {v(E+6,2)}')
        for r in range(4,14):
            s=S+2*(r&1)
            A(f'v_pk_add_f32 {v(s,2)}, {v(s,2)}, {v(E+2*r,2)}')
        A(f'v_pk_add_f32 {v(S,2)}, {v(S,2)}, {v(S+2,2)}')
        A(f'v_permlane32_swap_b32 {v(S)}, {v(S+1)}')
        A(f'v_add_f32 {v(S)}, {v(S)}, {v(S+1)}')
        A(f'v_rcp_f32 {v(S)}, {v(S)}')
        A(f'v_mov_b32 {v(S+1)}, {v(S)}')
        A(f'v_permlane32_swap_b32 {v(S)}, {v(S+1)}')
        for r in range(14): A(f'v_pk_mul_f32 {v(E+2*r,2)}, {v(E+2*r,2)}, {v(S,2)}')
    for sg in range(2):
        for s in range(2):
            for j in range(4):
                i=7*s+2*j
                A(f'v_cvt_pk_bf16_f32 {v(O+8*sg+4*s+j)}, {v(E+2*i+sg)}, {v(E+2*i+2+sg) if j<3 else "0"}')
    return L

k.label('L_KV'); k.set_state(st_kv)
k.c('KV role')
srd(sM,2,16*1568)
k.I(f'''s_sub_u32 {sRole}, {sRole}, 8
s_lshl_b32 {sT0}, {sRole}, 2
s_lshr_b32 {sH0}, 0xDA8630, {sT0}
s_and_b32 {sH0}, {sH0}, 15
s_lshl_b32 {sT2}, {sRole}, 7
s_mul_i32 {sA1}, {sH0}, 56
s_sub_u32 {sA1}, {sA1}, {sT2}
s_mul_i32 {sA2}, {sH0}, 1568
s_add_u32 {sA2}, {sA2}, {sLW}''')
k.I(f's_lshr_b32 {sT1}, {sWave}, 2\ns_mul_i32 {sT2}, {sT1}, 3136\ns_add_u32 {sT2}, {sT2}, {MISC}')
wphi_lane(148, sT2)
k.I(f'v_min_u32 v29, 6, v29')
for t,(o0,o1) in enumerate([(0,112),(56,312),(256,368)]):
    k.I(f's_mul_i32 {sT2}, {sT1}, {o1-o0}\ns_add_u32 {sT2}, {sT2}, {sA1}\ns_add_u32 {sT2}, {sT2}, {o0}\nv_lshl_add_u32 v26, v29, 3, {sT2}')
    a_addr(t,26)
tags()
PHI=[0,16384,98304]; VV=[131072,131072+64,147456]
WA=240; RA=20
t0,t1,t2,t3='s84','s85','s86','s87'
KSET=f'''v_and_b32 v1, 5, v0
v_and_b32 v2, 2, v0
v_lshl_or_b32 v1, v2, 2, v1
v_bfe_u32 v2, v0, 3, 1
v_lshl_or_b32 v1, v2, 1, v1
v_lshrrev_b32 v2, 5, v0
v_xor_b32 v1, v1, v2
v_and_b32 v2, 31, v0
v_lshlrev_b32 v2, 7, v2
v_lshl_or_b32 v1, v1, 3, v2
s_and_b32 {t0}, {sWave}, 3
s_lshl_b32 {t0}, {t0}, 12
v_add_u32 {v(WA)}, {t0}, v1'''.split('\n')
KSET+=[f'v_xor_b32 {v(WA+c)}, {16*c}, {v(WA)}' for c in range(1,8)]
KSET+=[f'v_add_u32 {v(WA+8+c)}, {XR}, {v(WA+c)}' for c in range(8)]
KSET+=f'''v_bfe_u32 v1, v0, 2, 2
v_lshrrev_b32 v2, 5, v0
v_lshl_add_u32 v3, v2, 3, v1
v_lshlrev_b32 v3, 7, v3
v_and_b32 v20, 1, v1
v_lshl_or_b32 v20, v2, 1, v20
v_lshrrev_b32 v1, 1, v1
v_lshl_or_b32 v20, v1, 3, v20
v_bfe_u32 v1, v0, 4, 1
v_and_b32 v2, 3, v0
v_lshl_add_u32 v1, v1, 2, v2
v_xor_b32 v20, v20, v1
v_lshl_add_u32 v20, v20, 3, v3
s_lshr_b32 {t0}, {sWave}, 1
s_and_b32 {t1}, {sWave}, 1
s_lshl_b32 {t1}, {t1}, 6
s_and_b32 {t2}, {t0}, 1
s_lshl_b32 {sA0}, {t2}, 6
s_lshl_b32 {t2}, {t2}, 14
s_lshr_b32 {t3}, {t0}, 1
s_mul_i32 {sA1}, {t3}, 98304
s_add_u32 {t2}, {t2}, {sA1}
s_lshl_b32 {t3}, {t3}, 14
s_add_u32 {t3}, {t3}, 131072
v_xor_b32 v22, {sA0}, v20
v_xor_b32 v20, {t1}, v20
v_xor_b32 v21, 32, v20
v_xor_b32 v23, 32, v22
v_add_u32 v20, {t2}, v20
v_add_u32 v21, {t2}, v21
v_add_u32 v22, {t3}, v22
v_add_u32 v23, {t3}, v23
s_add_u32 {sA0}, {sH0}, {t0}
s_lshl_b32 {sA0}, {sA0}, 1
s_and_b32 {t1}, {sWave}, 1
s_add_u32 {sA0}, {sA0}, {t1}
s_lshl_b32 {sA0}, {sA0}, 6
s_add_u32 {sA0}, {sA0}, {sTB}
s_lshl_b32 {sA0}, {sA0}, 9
s_add_u32 {sA0}, {sA0}, {WS_P1}
s_add_u32 {sA1}, {sA0}, 16384
v_lshrrev_b32 v1, 5, v0
v_and_b32 v2, 31, v0
v_lshlrev_b32 v2, 4, v2
v_lshl_or_b32 v143, v1, 13, v2'''.split('\n')
WP=120
PK=64;Pp=72;E=88;S=116;O=160;PK2=48;Pp2=176
r0=wphi_reads(64,148,0); r1=wphi_reads(80,148,1568)
ex={4:r0[:11],5:r0[11:]+r1[:6],6:r1[6:], 7:wphi_pack(64,WP), 8:wphi_pack(80,WP+8), 25:[lambda: wait_ks(R3(0,3))]+s2_reads(R3(0,3))[:6], 26:s2_reads(R3(0,3))[6:]}
emit_list(s2_setup()+KSET)
gemm1(3,1,{7:s2_dmas(R3(0,3)),8:s2_dmas([3,4])},S1+[dma(vL16, sM, sA2, sLW, MISC, 's1')],extra=ex)
stamp(2)
def wr_tile(src, base, n):
    hi = 4 if (base&64) else 0; b=base&~64
    if b>=XR: hi+=8; b-=XR
    return [f'ds_write_b64 {v(WA+hi+q)}, {v(src+2*q,2)} offset:{b}' for q in range(n)]
def v_tile(t, arr, tmp):
    a=ACC+16*t
    L=[f'v_cndmask_b32 {v(a+12)}, {v(a+12)}, 1.0, {sHi}']
    L+=[f'v_cvt_pk_bf16_f32 {v(tmp+i)}, {v(a+2*i)}, {v(a+2*i+1)}' for i in range(8)]
    return L+wr_tile(tmp, arr, 4)
emit_list(feat(ACC, WP, PK, Pp))
k.I(f's_cmp_ge_u32 {sWave}, 4\ns_cbranch_scc1 L_KV1')
st=k.state()
emit_list(feat(ACC+16, WP+8, PK2, Pp2))
emit_list(v_tile(2,VV[0],152))
E2=ACC; S2_=ACC+28; O2=ACC+32
for a_,b_ in zip(feat2(Pp,E,S,True,O)+wr_tile(O,PHI[0],8), feat2(Pp2,E2,S2_,True,O2)+wr_tile(O2,PHI[1],8)): k.I(a_); k.I(b_)
k.force_wait(lg=0)
k.label('L_KV2'); k.nop(2)
k.I('s_barrier')
stamp(3)
k.I(f's_cmp_ge_u32 {sWave}, 6\ns_cbranch_scc1 L_KV3')
KA=64; KB=96; KD=176
for ks in range(8):
    for i in range(2):
        k.I(f'ds_read_b64_tr_b16 {v(KA+4*ks+2*i,2)}, {v(RA+i)} offset:{2048*ks+512*i}')
        k.I(f'ds_read_b64_tr_b16 {v(KB+4*ks+2*i,2)}, {v(RA+2+i)} offset:{2048*ks+512*i}')
    if ks>=2: k.I(f'v_mfma_f32_32x32x16_bf16 {v(KD,16)}, {v(KA+4*(ks-2),4)}, {v(KB+4*(ks-2),4)}, {"0" if ks==2 else v(KD,16)}')
for ks in (6,7): k.I(f'v_mfma_f32_32x32x16_bf16 {v(KD,16)}, {v(KA+4*ks,4)}, {v(KB+4*ks,4)}, {v(KD,16)}')
for s in range(2):
    for j in range(4): k.I(f'v_cvt_pk_bf16_f32 {v(O+4*s+j)}, {v(KD+8*s+2*j)}, {v(KD+8*s+2*j+1) if j<3 else "0"}')
    k.I(f'v_or_b32 {v(O+4*s+3)}, {sTagH}, {v(O+4*s+3)}')
    k.I(f'buffer_store_dwordx4 {v(O+4*s,4)}, v143, {sWS}, {sA0 if s==0 else sA1} offen sc1')
k.label('L_KV3'); k.nop(4)
k.I('s_barrier')
stamp(4)
k.vm=[(set(),'k4')]
KVE=[9,10,11][:int(OPT.get('kve','0'))]
emit_list(s2_dmas([5,6,7,8]+[x for x in [9,10,11] if x not in KVE]))
wait_ks([4]); emit_list(s2_reads([3,4])); k.waitcnt(lg=0); emit_list(s2_dmas([12,13]))
wait_ks([5,6,7,8]); emit_list(s2_reads([5,6,7,8])); k.waitcnt(lg=0); emit_list(s2_dmas([14]))
k.I(fl0)
stamp(9)
k.I('s_branch L_S2')
k.label('L_KV1'); k.set_state(st)
emit_list(v_tile(1,VV[1],152)+v_tile(2,VV[2],176))
emit_list(s2_dmas(KVE,True))
emit_list(feat2(Pp,E,S,True,O)+wr_tile(O,PHI[2],8))
k.force_wait(vm=0,lg=0)
k.I('s_branch L_KV2')

k.label('L_Q'); k.set_state(st_q)
k.c('Q role')
srd(sM,2,16*1568)
k.I(f'''s_sub_u32 {sRole}, {sRole}, 14
s_lshl_b32 {sH0}, {sRole}, 3
s_add_u32 {sH0}, {sH0}, {sWave}
s_mul_i32 {sA1}, {sH0}, 56
s_sub_u32 {sA1}, {sA1}, {sB0}
s_lshl_b32 {sA0}, {sA0}, 6
s_mul_i32 {sA2}, {sH0}, 1568
s_lshl_b32 {sA3}, {sWave}, 11
s_add_u32 {sT2}, {sA3}, {MISC}''')
wphi_lane(148, sT2)
k.I(f'''v_lshl_add_u32 v26, v29, 3, {sA1}
v_mov_b32 v1, {sA0}
v_cmp_eq_u32 vcc, 7, v29
v_cndmask_b32 v26, v26, v1, vcc''')
a_addr(0,26)
k.I(f'''v_and_b32 v2, 3, v0
v_lshlrev_b32 v2, 6, v2
v_xor_b32 v2, v2, v1
v_lshl_add_u32 v9, v0, 9, v2
s_mul_i32 {sT1}, {sWave}, 43
s_lshr_b32 {sT1}, {sT1}, 7
s_mul_i32 {sT1}, {sT1}, 3
s_sub_u32 {sT1}, {sWave}, {sT1}
s_lshl_b32 {sT1}, {sT1}, 15
v_add_u32 v9, {sT1}, v9''')
tags()
def gate(s):
    lab=newlab('g')
    if s==0: k.I('v_mov_b32 v34, v32\nv_mov_b32 v35, 0')
    k.I(f's_cmp_lg_u32 {sWave}, {s}\ns_cbranch_scc1 {lab}')
    k.I('ds_write_b64 v9, v[34:35]')
    k.label(lab)
WP=128; EQ=24
r0=wphi_reads(48,148,0)
QSET=f'''v_and_b32 v1, 3, v0
v_bfe_u32 v2, v0, 3, 1
v_lshl_add_u32 v1, v2, 2, v1
v_bfe_u32 v2, v0, 4, 1
v_bfe_u32 v3, v0, 2, 1
v_lshl_add_u32 v3, v2, 1, v3
v_mul_u32_u24 v3, 7, v3
v_add_u32 v3, v3, v1
v_lshl_add_u32 v2, v2, 3, v1
v_cmp_eq_u32 s[86:87], 15, v2
v_mov_b32 v2, 28
v_cmp_eq_u32 vcc, 7, v1
v_cndmask_b32 v3, v3, v2, vcc
v_lshlrev_b32 v20, 2, v3
v_add_u32 v36, 128, v20
v_mov_b32 v21, 0x3f800000
v_mov_b32 v22, 0x3f80
v_lshlrev_b32 v23, 7, v0
s_and_b32 s84, {sTB}, 1
s_lshl_b32 s84, s84, 2
s_and_b32 s85, {sH0}, 11
s_add_u32 s84, s84, s85
s_lshl_b32 s84, s84, 3
s_lshr_b32 s85, {sTB}, 1
s_add_u32 s84, s84, s85
s_lshl_b32 {sA1}, s84, 9
s_add_u32 {sA1}, {sA1}, {WS_P2}
s_lshl_b32 {sA0}, s84, 13
s_add_u32 {sA0}, {sA0}, {WS_P1}'''.split('\n')
ex={4:r0[:8],5:r0[8:],6:wphi_pack(48,WP),19:[(f'buffer_load_dword v147, v23, {sWS}, {sA0} offen','pf')]}
emit_list(QSET)
gemm1(1,4,{},S1+[dma(vL16, sM, sA2, sA3, MISC, 's1'), dma(vL16, sM, (sA2,1024), sA3, MISC+1024, 's1')],masked=True,pre_barrier=gate,extra=ex)
stamp(2)
PK=88;E=136;S=164;GG=168
k.I('v_mov_b32 v19, v36')
PP=[96,112]
emit_list(feat(ACC, WP, PK, PP[0]))
for t in range(4): k.I(f'v_mul_f32 {v(GG+t)}, s40, {v(ACC+16*t+12)}')
for t in range(4): k.I(f'v_min_f32 {v(GG+t)}, {f2u(86.0)}, {v(GG+t)}')
for t in range(4): k.I(f'v_exp_f32 {v(GG+t)}, {v(GG+t)}')
for t in range(4): k.I(f'v_mul_f32 {v(GG+t)}, s40, {v(GG+t)}')
for t in range(4): k.I(f'v_mov_b32 {v(172+t)}, {v(GG+t)}')
for t in range(4): k.I(f'v_permlane32_swap_b32 {v(172+t)}, {v(GG+t)}')
k.I(f's_cmp_lg_u32 {sH0}, 0\ns_cbranch_scc1 L_Q1')
st=k.state()
k.I(f'''v_cndmask_b32 v2, {v(GG)}, {v(GG+1)}, {sHi}
v_cndmask_b32 v10, {v(GG+2)}, {v(GG+3)}, {sHi}
v_add_f32 v2, s40, v2
v_add_f32 v10, s40, v10
v_rcp_f32 v2, v2
v_rcp_f32 v10, v10
v_mov_b32 v3, {sTag}
v_mov_b32 v11, {sTag}
v_lshlrev_b32 v1, 3, v0
s_lshl_b32 {sT1}, {sTB}, 10
s_add_u32 {sT1}, {sT1}, {WS_G}
buffer_store_dwordx2 v[2:3], v1, {sWS}, {sT1} offen sc1
buffer_store_dwordx2 v[10:11], v1, {sWS}, {sT1} offen offset:512 sc1''')
k.label('L_Q1'); k.set_state(st)
emit_list(feat(ACC+16, WP, 176, PP[1]))
for a_,b_ in zip(feat2(PP[0],E,S,True,EQ), feat2(PP[1],ACC,ACC+28,True,EQ+16)): k.I(a_); k.I(b_)
emit_list(feat(ACC+32, WP, PK, PP[0])+feat(ACC+48, WP, 176, PP[1]))
for a_,b_ in zip(feat2(PP[0],E,S,True,EQ+32), feat2(PP[1],ACC,ACC+28,True,EQ+48)): k.I(a_); k.I(b_)
stamp(3)
k.I(f'''s_lshl_b32 {sA2}, {sH0}, 12
s_add_u32 {sA2}, {sA2}, {WS_P2}
s_cmp_ge_u32 {sWave}, 4
s_cbranch_scc1 L_Q2''')
k.I(f's_add_u32 {sT1}, {sA0}, 4096')
R0=96; U0=ACC
poll([f'buffer_load_dwordx4 {v(R0+4*i,4)}, {v(vL16)}, {sWS}, {[sA0,sT1][i>>2]} offen offset:{(i&3)*1024} sc1' for i in range(8)],
     [(R0+4*i+3,sT16,1) for i in range(8)],'p1')
stamp(6)
if 'nodot' in OPT:
    for i in range(8):
        for j in range(4):
            k.I(f'v_lshlrev_b32 {v(U0+8*i+2*j)}, 16, {v(R0+4*i+j)}')
            k.I(f'v_and_b32 {v(U0+8*i+2*j+1)}, 0xffff0000, {v(R0+4*i+j)}')
    for st_ in (32,16,8):
        for j in range(0,st_,2): k.I(f'v_pk_add_f32 {v(U0+j,2)}, {v(U0+j,2)}, {v(U0+st_+j,2)}')
else:
    for j in range(4):
        k.I(f'v_lshlrev_b32 {v(U0+2*j)}, 16, {v(R0+j)}')
        k.I(f'v_and_b32 {v(U0+2*j+1)}, 0xffff0000, {v(R0+j)}')
    for i in range(1,8):
        for j in range(7):
            k.I(f'v_dot2c_f32_bf16 {v(U0+j)}, {v(R0+4*i+j//2)}, {v(22 if j%2==0 else 21)}')
    k.nop(3)
for j in range(4): k.I(f'v_permlane32_swap_b32 {v(U0+j)}, {v(U0+4+j)}')
for j in range(0,4,2): k.I(f'v_pk_add_f32 {v(U0+j,2)}, {v(U0+j,2)}, {v(U0+4+j,2)}')
k.I(f'''v_cvt_pk_bf16_f32 v12, {v(U0)}, {v(U0+1)}
v_cvt_pk_bf16_f32 v13, {v(U0+2)}, {v(U0+3)}
ds_bpermute_b32 v8, v20, v12
ds_bpermute_b32 v9, v20, v13
ds_bpermute_b32 v10, v19, v12
ds_bpermute_b32 v11, v19, v13
v_and_b32 v11, 0xffff, v11
v_or_b32 v11, {sTagH}, v11
s_not_b64 exec, {sHi}
buffer_store_dwordx4 v[8:11], {v(vL16)}, {sWS}, {sA1} offen sc1
s_mov_b64 exec, -1''')
k.label('L_Q2'); k.nop(2)
if 'nop2bar' not in OPT: k.I('s_barrier')
stamp(7)
KV=136
k.I(f'''s_lshl_b32 {sA0}, {sTB}, 6
s_add_u32 {sA0}, {sA0}, {sH0}
s_lshl_b32 {sA0}, {sA0}, 11
s_add_u32 {sA0}, {sA0}, {WS_O}
s_mov_b32 {sT1}, {f2u(1e-6)}''')
poll([f'buffer_load_dwordx4 {v(KV+4*i,4)}, {v(vL16)}, {sWS}, {sA2} offen offset:{i*1024} sc1' for i in range(4)],
     [(KV+4*i+3,sT16,1) for i in range(4)],'p2')
stamp(4)
def omf(t):
    d=v(ACC+16*t,16)
    return [f'v_mfma_f32_32x32x16_bf16 {d}, {v(KV+4*i,4)}, {v(EQ+16*t+4*i,4)}, {"0" if i==0 else d}' for i in range(4)]
def ofin(t):
    p=ACC+16*t; o=96+8*t; c=8+t
    L=[f'v_add_f32 {v(c)}, {sT1}, {v(p+7)}', f'v_rcp_f32 {v(c)}, {v(c)}', f'v_mul_f32 {v(c)}, {v(c)}, {v(GG+t)}']
    for s in range(2):
        L+=[f'v_mul_f32 {v(p+8*s+j)}, {v(c)}, {v(p+8*s+j)}' for j in range(7)]
        L+=[f'v_cvt_pk_bf16_f32 {v(o+4*s+j)}, {v(p+8*s+2*j)}, {v(p+8*s+2*j+1) if j<3 else "0"}' for j in range(4)]
        L.append(f'v_or_b32 {v(o+4*s+3)}, {sTagH}, {v(o+4*s+3)}')
        L.append(f'buffer_store_dwordx4 {v(o+4*s,4)}, {v(vL16)}, {sWS}, {sA0} offen offset:{1024*s} sc1')
    L.append(f's_add_u32 {sA0}, {sA0}, 32768')
    return L
emit_list(omf(0)+omf(1))
emit_list(interleave(omf(2),ofin(0)))
emit_list(interleave(omf(3),ofin(1)))
emit_list(ofin(2)+ofin(3))
k.I(f'''s_lshl_b32 {sA0}, {sTB}, 4
s_add_u32 {sA0}, {sA0}, {sH0}
s_lshl_b32 {sA0}, {sA0}, 7
s_add_u32 {sA0}, {sA0}, {WS_FO}''')
flag_store(sA0)
stamp(5)
k.I(f's_cmp_lg_u32 s2, 0\ns_cbranch_scc1 L_Qend\ns_cmp_lg_u32 {sWave}, 0\ns_cbranch_scc1 L_Qend')
k.I('v_lshlrev_b32 v1, 7, v0')
k.I(f's_mov_b32 {sA0}, {WS_FA}\ns_mov_b32 {sA1}, {WS_FA+8192}\ns_mov_b32 {sT0}, {WS_FO}\ns_mov_b32 {sT1}, {WS_FO+8192}\ns_mov_b32 {sT2}, {WS_FO+16384}\ns_mov_b32 {sT3}, {WS_FO+24576}')
poll([f'buffer_load_dword {v(8+i)}, v1, {sWS}, {s} offen sc1' for i,s in enumerate([sA0,sA1,sT0,sT1,sT2,sT3])],[(8+i,sTag,0) for i in range(6)],'ep')
k.I(f's_mov_b32 {sA0}, {WS_EPOCH}')
flag_store(sA0)
k.label('L_Qend'); k.nop(2)
stamp(15)
dump_stamps()
k.label('L_end')
k.I('s_endpgm')
k.label('L_codeend')
k.raw(f""".section .rodata,"a"
.p2align 6
.amdhsa_kernel {NAME}_kernel
  .amdhsa_next_free_vgpr 256
  .amdhsa_next_free_sgpr 102
  .amdhsa_accum_offset 256
  .amdhsa_group_segment_fixed_size 0
  .amdhsa_kernarg_size 96
  .amdhsa_user_sgpr_count 2
  .amdhsa_user_sgpr_kernarg_segment_ptr 1
  .amdhsa_system_sgpr_workgroup_id_x 1
.end_amdhsa_kernel""")
open(OUT,'w').write(k.text())
print('instructions', k.nins)
```

```python
import sys, struct
from emit import K, interleave
NAME = "gated_mix__linear_kernel_hedgehog__dense_activation_mish__prompt"
TS = '--ts' in sys.argv
CLK = 's_memtime' if '--cyc' in sys.argv else 's_memrealtime'
OPT = {a[2:].split('=')[0]:(a.split('=')[1] if '=' in a else '1') for a in sys.argv[1:] if a.startswith('--')}
OUT = [a for a in sys.argv[1:] if not a.startswith('--')][0]

def f2u(x): return struct.unpack('<I', struct.pack('<f', x))[0]
LOG2E = 1.4426950408889634; LN2 = 0.6931471805599453

WB=int(OPT.get('wb','0'),0)
WS_EPOCH=0; WS_FA=WB+0x20000; WS_FO=WB+0x24000; WS_G=WB+0x2C000; WS_P2=WB+0x30000; WS_P1=WB+0x100000; WS_O=WB+0x500000; WS_ACT=WB+0x800000; WS_TS=0xF000000
WR=0; XR=96*1024; MISC=144*1024; LDS_BYTES=160*1024
SPIN=200000

sRot='s3'; sR6='s6'; sR7='s7'
sX='s[8:11]'; sW='s[12:15]'; sWS='s[16:19]'; sW2='s[20:23]'; sWO='s[24:27]'; sOUT='s[28:31]'; sM='s[32:35]'; sG='s[36:39]'
sL2='s[40:41]'
sLn='s[42:43]'
sWave='s44'; sTB='s45'; sRole='s46'; sT64='s47'; sCT='s48'; sTag='s49'; sTagH='s50'
sLW='s51'
sT0='s52'; sT1='s53'; sT2='s54'; sT3='s55'
sMask='s[56:57]'; sHi='s[58:59]'
sW2b='s60'; sWOb='s61'; sL4='s62'; sL2k='s63'
sSpin='s88'; sH0='s89'; sA0='s90'; sA1='s91'
sTS=92
sI='s94'; sStr='s95'; sB0='s96'; sE='s97'; sA2='s98'; sA3='s99'
sRa='s4'; sRb='s5'
sFA='s81'; sAC='s82'; sGB='s83'; sOB='s78'; sFO='s79'
sT16='s80'
P = lambda i: 64+2*i

def v(a,n=1): return f'v{a}' if n==1 else f'v[{a}:{a+n-1}]'

k=K()
nlab=[0]
def newlab(p):
    nlab[0]+=1; return f'L_{p}_{nlab[0]}'

def srd(dst, ptr, size):
    d=int(dst[2:dst.index(':')])
    k.I(f's_mov_b32 s{d}, s{P(ptr)}\ns_mov_b32 s{d+1}, s{P(ptr)+1}\ns_mov_b32 s{d+2}, {size}\ns_mov_b32 s{d+3}, 0x20000')

NSTAMP=16
def tsreg(i): return sTS+i if i<2 else 64+i-2
def stamp(i):
    if 'probe' in OPT:
        if i==int(OPT['probe']):
            k.I('s_memrealtime s[100:101]'); k.force_wait(lg=0); k.I(f's_mov_b32 s{sTS+1}, s100')
        return
    if 'gts' in OPT and i not in (1,2,15): return
    if 's2ts' in OPT and i not in (2,6,10,11,15): return
    gstamp(i)
def gstamp(i):
    if not TS: return
    k.I(CLK+' s[100:101]'); k.force_wait(lg=0); k.I(f's_mov_b32 s{tsreg(i)}, s100')
def stamp_init():
    if 'probe' in OPT: k.I(f's_mov_b32 s{sTS+1}, s{sTS}')
    if not TS: return
    for i in range(1,NSTAMP): k.I(f's_mov_b32 s{tsreg(i)}, 0')
def dump_stamps():
    if 'padto' in OPT:
        lab=newlab('pad'); k.label(lab)
        k.I('s_memrealtime s[100:101]'); k.force_wait(lg=0)
        k.I(f's_sub_u32 {sT0}, s100, s{sTS+(1 if "probe" in OPT else 0)}\ns_cmp_lt_u32 {sT0}, {OPT["padto"]}\ns_cbranch_scc1 {lab}')
        return
    if not TS: return
    k.I('s_mov_b64 exec, 1')
    k.I(f's_lshl_b32 {sT0}, s2, 3\ns_add_u32 {sT0}, {sT0}, {sWave}\ns_lshl_b32 {sT0}, {sT0}, 7\ns_add_u32 {sT0}, {sT0}, {WS_TS}\nv_mov_b32 v1, 0\nv_mov_b32 v3, 0')
    for i in range(NSTAMP):
        k.I(f'v_mov_b32 v2, s{tsreg(i)}')
        k.I(f'buffer_store_dwordx2 v[2:3], v1, {sWS}, {sT0} offen offset:{8*i}')

vLane=0; vW=4; vX=5; vW2=6; vL16=7
vA=8; vB=16; vC=20
WREG=24
FB=152; FA=160; ACC=192
vPF=143
vS2=136

def dma(voff, srd_, soff, ldsbase, ldsconst, tag, masked=False, pre='', post=''):
    L=[]
    if pre: L.append(pre)
    L.append(f's_add_u32 m0, {ldsbase}, {ldsconst}')
    so=sT0
    if isinstance(soff,int): L.append(f's_mov_b32 {sT0}, {soff}')
    elif isinstance(soff,str): so=soff
    else: L.append(f's_add_u32 {sT0}, {soff[0]}, {soff[1]}')
    if masked: L.append(f's_mov_b64 exec, {sMask}')
    L.append(f'buffer_load_dwordx4 {v(voff)}, {srd_}, {so} offen lds')
    if masked: L.append('s_mov_b64 exec, -1')
    if post: L.append(post)
    return ('\n'.join(L), tag)

ROT0 = 'rot7' in OPT
def chunk_expr(s, dst, tmp):
    if ROT0: return f's_add_u32 {dst}, {sRot}, {s}\ns_sub_u32 {tmp}, {dst}, 7\ns_cmp_ge_u32 {dst}, 7\ns_cselect_b32 {dst}, {tmp}, {dst}'
    if s==0: return f's_mov_b32 {dst}, 0'
    return f's_add_u32 {dst}, {sRot}, {s}\ns_sub_u32 {tmp}, {dst}, 6\ns_cmp_ge_u32 {dst}, 7\ns_cselect_b32 {dst}, {tmp}, {dst}'
def s1_dmas(s, masked=False):
    slot=s%3; L=[]
    pre=chunk_expr(s,sR6,sR7)+f'\ns_mul_i32 {sR7}, {sR6}, {sStr}\ns_lshl_b32 {sR7}, {sR7}, 2\ns_lshl_b32 {sR6}, {sR6}, 7'
    for m in range(2): L.append(dma(vX, sX, (sR6,64*m*896) if m else sR6, sLW, XR+slot*16384+m*8192, f's{s}', pre=pre if m==0 else ''))
    for m in range(4): L.append(dma(vW, sW, sR7, sLW, WR+slot*32768+m*8192, f's{s}', masked, post=f's_add_u32 {sR7}, {sR7}, {sStr}' if m<3 else ''))
    return L

PSLOT=[1,2,0,1,2,0]
def ks_lds(ks):
    p,i=divmod(ks,3); s=PSLOT[p]
    if i<2: return ('W', WR+s*32768+i*2048)
    return ('X', s*16384)
def kidx(ks, dst, tmp):
    if 'norot2' in OPT: return f's_mov_b32 {dst}, {ks}'
    if ks<8: return f's_add_u32 {dst}, {sRa}, {ks}\ns_and_b32 {dst}, {dst}, 7'
    return f's_add_u32 {dst}, {sRb}, {ks}\ns_sub_u32 {tmp}, {dst}, 6\ns_cmp_ge_u32 {dst}, 14\ns_cselect_b32 {dst}, {tmp}, {dst}'
def s2_dma_ks(ks, both=False):
    kind,off=ks_lds(ks)
    base = sL4 if kind=='W' else sL2k
    dl = 16384 if kind=='W' else 8192
    tag=f'k{ks}'
    m=lambda x: x & 0xffffffff
    if ks<14:
        T=[dma(vW2, sW2, (sW2b,(16*ks+8*h)*896), base, off+1024*h, tag) for h in range(2)]
        if both: T+=[dma(vW2, sW2, (sW2b,m((16*ks+8*h-4*224)*896)), base, m(off+1024*h-dl), tag) for h in range(2)]
        return T
    assert not both
    hd,s=divmod(ks-14,2)
    return [dma(vW2, sWO, (sWOb,(28*hd+14*s+8*h)*896), base, off+1024*h, tag) for h in range(2)]
def s2_dmas(kss, both=False): return [d for ks in kss for d in s2_dma_ks(ks,both)]
def wait_ks(kss):
    for ks in kss: k.wait_tag(f'k{ks}')
def wreg(ks,ct): return WREG+8*ks+4*ct
def s2_reads(kss, base=None, obase=None):
    base = vS2 if base is None else base
    L=[]
    for ks in kss:
        kind,off=ks_lds(ks)
        if ks<14:
            if kind=='W':
                a=base
                if off>=65536: a+=2; off-=65536
            else: a=base+4
            st=1024
        else:
            a = obase if kind=='W' else obase+2
            st=512
        for ct in range(2):
            for i in range(2):
                L.append(f'ds_read_b64_tr_b16 {v(wreg(ks,ct)+2*i,2)}, {v(a+ct)} offset:{off+st*i}')
    return L
R3=lambda a,b: list(range(a,b))

def emit_list(L):
    for x in L:
        if callable(x): x()
        elif isinstance(x,tuple): k.I(x[0],x[1])
        else: k.I(x)

def gemm1(NA, NB, tail, first, masked=False, pre_barrier=None, extra=None):
    extra = extra or {}
    if MPG>=0: extra.setdefault(MPG,[]).extend(MPF)
    if 'dose' in OPT:
        g0=int(OPT['dose']); stp=int(OPT.get('dstep','3')); nd_=-(-49//DL)
        for j in range(nd_):
            extra.setdefault(g0+stp*j,[]).append((f's_mov_b32 {sT0}, {j*DL*128}\nbuffer_load_dword v{146+(j&1)}, v144, {sW2}, {sT0} offen','pf'))
        extra.setdefault(g0+stp*nd_,[]).append((f'buffer_load_dword v150, v145, {sWO}, 0 offen','pf'))
    if NB==1: fa=lambda b,t: FA+16*b+4*t; fb=lambda b,t: FB+4*b
    else:     fa=lambda b,t: FB+4*b;      fb=lambda b,t: FA+16*b+4*t
    def reads(g):
        s,ks=divmod(g,4); slot=s%3; b=g&1; A=[];B=[]
        for t in range(NB):
            B.append(f'ds_read_b128 {v(fb(b,t),4)}, {v(vB+ks)} offset:{slot*16384+t*4096}')
        for t in range(NA):
            a=vA+t+(4 if slot==2 else 0); off=(slot&1)*32768+ks*8192
            A.append([f'ds_read_b64_tr_b16 {v(fa(b,t)+2*i,2)}, {v(a)} offset:{off+2048*i}' for i in range(2)])
        if NB==1: return B+[x for l in A for x in l]
        return A[0]+B
    def mfmas(g):
        b=g&1; L=[]
        for ta in range(NA):
            for tb in range(NB):
                d=v(ACC+16*(ta*NB+tb),16)
                c = '0' if g==0 else d
                L.append(f'v_mfma_f32_32x32x16_bf16 {d}, {v(fa(b,ta),4)}, {v(fb(b,tb),4)}, {c}')
        return L
    emit_list(first)
    if 'earlytag' not in OPT: tags2()
    if pre_barrier: pre_barrier(0)
    k.wait_tag('s0'); k.force_wait(lg=0); k.I('s_barrier')
    stamp(1)
    emit_list(reads(0))
    pend=s1_dmas(2,masked)
    for g in range(28):
        M=mfmas(g)
        if (g+1)%4==0:
            s=(g+1)//4
            if pre_barrier and s<7: pre_barrier(s)
            k.force_wait(lg=0)
            k.I(M[0]); M=M[1:]
            if s<7: k.wait_tag(f's{s}')
            k.I('s_barrier')
            if 'gts' in OPT and s<7: gstamp(8+s)
            n=s+2
            pend = s1_dmas(n,masked) if n<7 else list(tail.get(n,[]))
        ex = reads(g+1) if g+1<28 else []
        nd = 2 if g<27 else 0
        d=pend[:nd]; pend=pend[nd:]
        if (g+2)%4==0 and g<27: d+=pend; pend=[]
        emit_list(interleave(M, ex+d+extra.get(g,[])))

def cmp_all(checks):
    first=True
    for r,s,hi in checks:
        dst = 'vcc' if first else sMask
        if hi: k.I(f'v_cmp_ne_u16_sdwa {dst}, {v(r)}, {s} src0_sel:WORD_1 src1_sel:WORD_0')
        else: k.I(f'v_cmp_ne_u32 {dst}, {s}, {v(r)}')
        if not first: k.I(f's_or_b64 vcc, vcc, {sMask}')
        first=False
    k.nop(1)
def poll(loads, checks, name):
    lab=newlab(name); done=newlab(name+'d')
    k.I(f's_mov_b32 {sSpin}, {SPIN}')
    k.nop(2)
    k.label(lab)
    for l in loads: k.I(l)
    k.force_wait(vm=0)
    cmp_all(checks)
    k.I(f's_cmp_eq_u64 vcc, 0\ns_cbranch_scc1 {done}')
    if 'sleep' in OPT: k.I(f's_sleep {OPT["sleep"]}')
    k.I(f's_sub_u32 {sSpin}, {sSpin}, 1\ns_cmp_lg_u32 {sSpin}, 0\ns_cbranch_scc1 {lab}')
    k.label(done)
def check_or_poll(loads, checks, name, hint=None):
    done=newlab(name+'ok')
    cmp_all(checks)
    k.I(f's_cmp_eq_u64 vcc, 0\ns_cbranch_scc1 {done}')
    st=k.state()
    if hint: poll(hint[0],hint[1],name+'h')
    poll(loads,checks,name)
    k.label(done); k.set_state(st)

def flag_store(soff_sgpr):
    k.I(f'v_mov_b32 v1, {sTag}\nv_mov_b32 v2, 0\ns_mov_b64 exec, 1')
    k.I(f'buffer_store_dword v1, v2, {sWS}, {soff_sgpr} offen sc1')
    k.I('s_mov_b64 exec, -1')

k.raw(f'; @launch grid=(256,1,1) block=(512,1,1) lds={LDS_BYTES}')
k.raw('.amdgcn_target "amdgcn-amd-amdhsa--gfx950"\n.text')
k.raw(f'.globl {NAME}_kernel\n.p2align 8\n.type {NAME}_kernel,@function\n{NAME}_kernel:')
k.I('s_cmp_ge_u32 s2, 256\ns_cbranch_scc1 L_end')
k.I('s_load_dwordx16 s[64:79], s[0:1], 0\ns_load_dwordx8 s[80:87], s[0:1], 64')
if TS or 'padto' in OPT: k.I(CLK+' s[100:101]')
k.I('s_getpc_b64 s[4:5]'); k.label('L_pc')
k.I(f'''v_lshrrev_b32 v1, 6, v0
s_lshr_b32 {sI}, s2, 3
v_and_b32 v2, 1, v0
v_readfirstlane_b32 {sWave}, v1
v_lshl_add_u32 v2, v1, 1, v2
s_lshl_b32 {sT0}, {sI}, 4
v_add_lshl_u32 v2, v2, {sT0}, 7
v_min_u32 v2, L_codeend-L_pc-4, v2
v_and_b32 v0, 63, v0''')
if 'nocpf' not in OPT: k.I(f'global_load_dword {v(vPF)}, v2, s[4:5]','cpf')
NR = 7 if ROT0 else 6
k.I(f'''s_and_b32 {sT0}, s2, 7
s_lshr_b32 {sT3}, {sT0}, 1
s_lshl_b32 {sT1}, {sT3}, 4
s_sub_u32 {sT1}, {sT1}, 16
s_mul_i32 {sT2}, {sT3}, 12
s_add_u32 {sT2}, {sT2}, 60
s_cmp_lt_u32 {sI}, 16
s_cselect_b32 {sT1}, {sT2}, {sT1}
s_lshl_b32 {sT2}, {sT3}, 2
s_add_u32 {sT2}, {sT2}, 112
s_cmp_lt_u32 {sI}, 4
s_cselect_b32 {sT1}, {sT2}, {sT1}
s_add_u32 {sT1}, {sT1}, {sI}
s_lshr_b32 {sRole}, {sT1}, 3
s_and_b32 {sT1}, {sT1}, 7
s_and_b32 {sTB}, s2, 1
s_lshl_b32 {sTB}, {sTB}, 3
s_add_u32 {sTB}, {sTB}, {sT1}
s_lshl_b32 {sLW}, {sWave}, 10
s_mul_i32 {sT1}, {sRole}, 448
s_and_b32 {sT1}, {sT1}, 0xffffff80
s_lshl_b32 {sT2}, {sRole}, 7
s_sub_u32 {sT2}, {sT2}, 128
s_mul_i32 {sT3}, {sRole}, 384
s_sub_u32 {sT3}, {sT3}, {14*384}
s_cmp_lt_u32 {sRole}, 14
s_cselect_b32 {sB0}, {sT2}, {sT3}
s_cselect_b32 {sE}, 640, 0
s_cmp_lt_u32 {sRole}, 8
s_cselect_b32 {sB0}, {sT1}, {sB0}
s_cselect_b32 {sE}, 0, {sE}
s_movk_i32 {sStr}, 2688
s_cselect_b32 {sStr}, 3584, {sStr}
s_cmp_eq_u32 {sRole}, 14
s_cselect_b32 {sA0}, 7, 8
s_cmp_eq_u32 {sRole}, 15
s_cselect_b32 {sA0}, 0, {sA0}
s_add_u32 {sRot}, {sRole}, {sTB}
s_mul_i32 {sT1}, {sRot}, {37 if ROT0 else 43}
s_lshr_b32 {sT1}, {sT1}, 8
s_mul_i32 {sT1}, {sT1}, {NR}
s_sub_u32 {sRot}, {sRot}, {sT1}''')
if 'norot' in OPT: k.I(f's_mov_b32 {sRot}, 0')
if OPT.get('rmod')=='2': k.I(f's_and_b32 {sRot}, {sRot}, 1\ns_mul_i32 {sRot}, {sRot}, 3')
if OPT.get('rmod')=='3': k.I(f's_sub_u32 {sT1}, {sRot}, 3\ns_cmp_ge_u32 {sRot}, 3\ns_cselect_b32 {sRot}, {sT1}, {sRot}\ns_lshl_b32 {sRot}, {sRot}, 1')
k.I(f'''v_lshrrev_b32 v1, 3, v0
s_lshl_b32 {sT1}, {sWave}, 3
v_add_u32 v1, {sT1}, v1
v_lshrrev_b32 v2, 1, v1
v_xor_b32 v2, v2, v0
v_and_b32 v2, 7, v2
v_mul_u32_u24 v1, 896, v1
v_lshl_add_u32 v1, v2, 4, v1
s_mul_i32 {sT1}, {sTB}, {128*896}
v_add_u32 {v(vX)}, {sT1}, v1''')
k.I(f'''v_lshrrev_b32 v3, 5, v0
s_lshl_b32 {sT1}, {sWave}, 1
v_add_u32 v24, {sT1}, v3
v_and_b32 v25, 3, v24
v_lshlrev_b32 v25, 2, v25
v_and_b32 v26, 31, v0
v_xor_b32 v25, v25, v26
v_mul_u32_u24 v24, {sStr}, v24
v_lshl_add_u32 v24, v25, 4, v24
v_lshrrev_b32 v26, 4, v25
v_mul_u32_u24 v26, {sE}, v26
v_add3_u32 {v(vW)}, v24, v26, {sB0}
v_lshrrev_b32 v25, 2, v25
v_cmp_ne_u32 {sMask}, {sA0}, v25
s_mov_b32 s10, {2048*896}
s_mov_b32 s11, 0x20000
s_mov_b32 s15, 0x20000
s_mul_i32 s14, {sStr}, 448''')
WPF=int(OPT.get('wpf','0'))
if WPF:
    base = 256 if WPF in (12,24) else 0
    msk = 15 if WPF<20 else 7
    k.I(f'''s_and_b32 {sT1}, {sTB}, {msk}
s_lshl_b32 {sT1}, {sT1}, 3
s_add_u32 {sT1}, {sT1}, {sWave}
s_mul_i32 {sT1}, {sT1}, {WPF}
s_add_u32 {sT1}, {sT1}, {base}
v_min_u32 v39, {WPF-1}, v0
v_add_u32 v39, {sT1}, v39
v_lshrrev_b32 v40, 2, v39
v_mul_u32_u24 v40, {sStr}, v40
v_bfe_u32 v41, v39, 1, 1
v_mul_u32_u24 v41, {sE}, v41
v_and_b32 v39, 3, v39
v_lshl_add_u32 v39, v39, 7, v40
v_add3_u32 v39, v39, v41, {sB0}''')
k.I(f's_lshl_b32 {sStr}, {sStr}, 4')
k.force_wait(lg=0)
if TS or 'padto' in OPT: k.I(f's_mov_b32 s{sTS}, s100')
k.I(f'''s_mov_b32 s8, s{P(0)}
s_mov_b32 s9, s{P(0)+1}
s_cmp_lt_u32 {sRole}, 8
s_cselect_b32 s12, s{P(5)}, s{P(1)}
s_cselect_b32 s13, s{P(5)+1}, s{P(1)+1}''')
if WPF and 'wpf0' in OPT: k.I(f'buffer_load_dword v147, v39, {sW}, 0 offen','pf')
emit_list(s1_dmas(0,True))
if WPF and 'wpf0' not in OPT: k.I(f'buffer_load_dword v147, v39, {sW}, 0 offen','pf')
if 'sts' in OPT: k.I('s_memrealtime s[100:101]'); k.force_wait(lg=0); k.I('s_mov_b32 s88, s100')
k.I(f's_load_dword {sTag}, s[{P(11)}:{P(11)+1}], {WS_EPOCH}')
srd(sG,8,896)
if ROT0: k.I(f's_add_u32 {sT1}, {sWave}, {sRot}\ns_sub_u32 {sT2}, {sT1}, 7\ns_cmp_ge_u32 {sT1}, 7\ns_cselect_b32 {sT1}, {sT2}, {sT1}')
else: k.I(f's_add_u32 {sT1}, {sWave}, {sRot}\ns_sub_u32 {sT2}, {sT1}, 6\ns_cmp_ge_u32 {sT1}, 7\ns_cselect_b32 {sT1}, {sT2}, {sT1}\ns_cmp_eq_u32 {sWave}, 0\ns_cselect_b32 {sT1}, 0, {sT1}')
k.I(f's_lshl_b32 {sT1}, {sT1}, 7\nv_lshlrev_b32 v1, 1, v0\nbuffer_load_ushort v32, v1, {sG}, {sT1} offen')
k.I('s_barrier')
S1=s1_dmas(1,True)
NPRE=int(OPT.get('npre','2'))
emit_list(S1[:NPRE]); S1=S1[NPRE:]
srd(sWS,11,0x10000000); srd(sW2,7,1792*896); srd(sWO,3,448*896); srd(sOUT,9,2048*896)
DL=int(OPT.get('dl','10'))
k.I(f'''s_lshl_b32 {sT0}, {sI}, 3
s_add_u32 {sT0}, {sT0}, {sWave}
s_mul_i32 {sT1}, {sT0}, 49
s_mul_i32 {sT2}, {sT0}, 13
v_min_u32 v1, {DL-1}, v0
v_min_u32 v2, 12, v0
v_add_lshl_u32 v144, v1, {sT1}, 7
v_add_lshl_u32 v145, v2, {sT2}, 7
s_and_b32 {sT0}, s2, 7
s_mul_i32 {sT3}, {sT0}, 7
s_add_u32 {sT1}, {sT1}, {sT3}
s_lshl_b32 {sT3}, {sT0}, 1
s_add_u32 {sT2}, {sT2}, {sT3}
v_min_u32 v1, 6, v0
v_min_u32 v2, 1, v0
v_add_lshl_u32 v150, v1, {sT1}, 7
v_add_lshl_u32 v151, v2, {sT2}, 7''')
if 'kqpf' in OPT:
    k.I(f'''s_lshl_b32 {sT0}, {sI}, 3
s_add_u32 {sT0}, {sT0}, {sWave}
s_mul_i32 {sT1}, {sT0}, 98
s_mul_i32 {sT2}, {sT0}, 25
v_min_u32 v1, 48, v0
v_min_u32 v2, 24, v0
v_add_lshl_u32 v144, v1, {sT1}, 7
v_add_lshl_u32 v145, v2, {sT2}, 7''')
def kqpf(ex,g):
    if 'kqpf' not in OPT: return
    ex.setdefault(g,[]).extend([(f'buffer_load_dword v149, v144, {sW2}, 0 offen','pf'),(f's_mov_b32 {sT0}, {49*128}\nbuffer_load_dword v149, v144, {sW2}, {sT0} offen','pf'),(f'buffer_load_dword v149, v145, {sWO}, 0 offen','pf')])
def pf(a):
    return [(f'buffer_load_dword v146, {v(a)}, {sW2}, 0 offen','pf'),(f'buffer_load_dword v147, {v(a+1)}, {sWO}, 0 offen','pf')]
k.I(f's_lshl_b32 {sT0}, s2, 3\ns_add_u32 {sT0}, {sT0}, {sWave}\ns_and_b32 {sT0}, {sT0}, 1023\ns_lshl_b32 {sT0}, {sT0}, 7\ns_add_u32 {sT0}, {sT0}, {WS_FA}\nv_mov_b32 v33, {sT0}')
MPF=([] if 'nompf' in OPT else pf(150))+([] if 'notouch' in OPT else [(f'buffer_load_dword v33, v33, {sWS}, 0 offen','pf')])
if 'otouch' in OPT:
    k.I(f's_lshl_b32 {sT0}, s2, 3\ns_add_u32 {sT0}, {sT0}, {sWave}\ns_lshl_b32 {sT0}, {sT0}, 10\ns_add_u32 {sT0}, {sT0}, {WS_O}\nv_and_b32 v42, 7, v0\nv_lshl_add_u32 v42, v42, 7, {sT0}')
    MPF.append((f'buffer_load_dword v146, v42, {sWS}, 0 offen','pf'))
MPG=int(OPT.get('mpg','9'))
if MPG<0: S1=S1+MPF
if 'tlbt' in OPT:
    sh=int(OPT['tlbt'])
    k.I(f'v_lshlrev_b32 v37, {sh}, v0\nv_min_u32 v38, {WB+0xf00000-128}, v37')
    TL=[(f'buffer_load_dword v146, v38, {sWS}, 0 offen','pf'),(f'buffer_load_dword v146, v37, {sW2}, 0 offen','pf'),(f'buffer_load_dword v146, v37, {sWO}, 0 offen','pf'),(f'buffer_load_dword v146, v37, {sOUT}, 0 offen','pf')]
    if 'tlbe' in OPT: emit_list(TL)
    else: S1=S1+TL
PFG=int(OPT.get('pfg','18'))
L2PF = pf(144) if 'l2pf' in OPT else []
k.I(f'''s_mov_b32 s40, {f2u(LOG2E)}
s_mov_b32 s41, {f2u(LOG2E)}
s_mov_b32 s42, {f2u(LOG2E)}
s_mov_b32 s43, {f2u(-LOG2E)}
s_mov_b32 s58, 0
s_mov_b32 s59, -1
v_lshlrev_b32 {v(vL16)}, 4, {v(vLane)}''')
k.I(f'''v_and_b32 v1, 31, v0
v_bfe_u32 v2, v0, 1, 3
v_xor_b32 v2, v2, v3
v_lshlrev_b32 v2, 4, v2
v_lshl_add_u32 v1, v1, 7, v2
s_and_b32 {sT0}, {sWave}, 3
s_lshl_b32 {sT0}, {sT0}, 12
s_cmp_lt_u32 {sRole}, 14
s_cselect_b32 {sT0}, {sT0}, 0
s_add_u32 {sT0}, {sT0}, {XR}
v_add_u32 {v(vB)}, {sT0}, v1
v_xor_b32 {v(vB+1)}, 32, {v(vB)}
v_xor_b32 {v(vB+2)}, 64, {v(vB)}
v_xor_b32 {v(vB+3)}, 96, {v(vB)}''')
k.I(f'''v_bfe_u32 v28, v0, 2, 2
v_lshl_add_u32 v27, v3, 3, v28
v_lshlrev_b32 v27, 9, v27
v_lshlrev_b32 v28, 6, v28
v_bfe_u32 v29, v0, 4, 1
v_and_b32 v26, 3, v0
v_lshl_add_u32 v29, v29, 2, v26''')
k.I(f's_cmp_ge_u32 {sRole}, 14\ns_cbranch_scc1 L_Q')
st_q=k.state()
def s2_setup():
    t0,t1,t2,t3='s84','s85','s86','s87'
    T=f'''s_sub_u32 {t1}, {sI}, 4
s_mul_i32 {t2}, {t1}, 37
s_lshr_b32 {t2}, {t2}, 8
s_mul_i32 {t3}, {t2}, 7
s_sub_u32 {sCT}, {t1}, {t3}
s_and_b32 {t0}, s2, 6
s_lshl_b32 {sT64}, {t0}, 1
s_andn2_b32 {t0}, 1, s2
s_lshl_b32 {t0}, {t0}, 4
s_add_u32 {sT64}, {sT64}, {t0}
s_add_u32 {sT64}, {sT64}, {t2}
s_lshl_b32 {sRa}, {t2}, 1
s_add_u32 {sRa}, {sRa}, {sCT}
s_mul_i32 {t0}, {sRa}, 43
s_lshr_b32 {t0}, {t0}, 8
s_mul_i32 {t0}, {t0}, 6
s_sub_u32 {sRb}, {sRa}, {t0}
s_mul_i32 {sW2b}, {sWave}, {224*896}
s_mul_i32 {sWOb}, {sWave}, {56*896}
s_lshl_b32 {sL4}, {sWave}, 12
s_lshl_b32 {sL2k}, {sWave}, 11
s_add_u32 {sL2k}, {sL2k}, {XR}
v_lshrrev_b32 v1, 3, v0
v_lshlrev_b32 v2, 1, v1
v_and_b32 v2, 4, v2
v_and_b32 v3, 7, v0
v_xor_b32 v2, v2, v3
v_mul_u32_u24 v1, 896, v1
v_lshl_add_u32 v1, v2, 4, v1
s_lshl_b32 {t0}, {sCT}, 7
v_add_u32 {v(vW2)}, {t0}, v1
v_lshrrev_b32 v1, 5, v0
v_lshlrev_b32 v1, 9, v1
v_bfe_u32 v2, v0, 2, 2
v_lshl_add_u32 v1, v2, 7, v1
v_lshrrev_b32 v2, 1, v2
v_lshl_add_u32 v1, v2, 6, v1
v_bfe_u32 v2, v0, 4, 1
v_lshl_add_u32 v1, v2, 5, v1
v_and_b32 v2, 3, v0
v_lshl_add_u32 v1, v2, 3, v1
v_xor_b32 v2, 64, v1
v_add_u32 {v(vS2)}, {sL4}, v1
v_add_u32 {v(vS2+1)}, {sL4}, v2
v_add_u32 {v(vS2+2)}, 0x10000, {v(vS2)}
v_add_u32 {v(vS2+3)}, 0x10000, {v(vS2+1)}
v_add_u32 {v(vS2+4)}, {sL2k}, v1
v_add_u32 {v(vS2+5)}, {sL2k}, v2
s_lshr_b32 {t1}, {sT64}, 1
s_lshl_b32 {sFA}, {t1}, 3
s_add_u32 {sFA}, {sFA}, {sWave}
s_lshl_b32 {sFA}, {sFA}, 7
s_and_b32 {t2}, {sT64}, 1
s_lshl_b32 {t2}, {t2}, 3
s_add_u32 {sFA}, {sFA}, {t2}
s_add_u32 {sFA}, {sFA}, {WS_FA}
s_mul_i32 {sAC}, {sT64}, 224
s_mul_i32 {t2}, {sWave}, 14
s_add_u32 {sAC}, {sAC}, {t2}
s_lshl_b32 {sAC}, {sAC}, 10
s_add_u32 {sAC}, {sAC}, {WS_ACT}
s_lshl_b32 {sGB}, {sT64}, 9
s_add_u32 {sGB}, {sGB}, {WS_G}
s_lshl_b32 {t2}, {sWave}, 1
s_lshl_b32 {sOB}, {sT64}, 5
s_add_u32 {sOB}, {sOB}, {t2}
s_lshl_b32 {sOB}, {sOB}, 11
s_add_u32 {sOB}, {sOB}, {WS_O}
s_add_u32 {sB0}, {sOB}, 32768
s_lshl_b32 {t1}, {t1}, 4
s_add_u32 {t1}, {t1}, {t2}
s_lshl_b32 {sFO}, {t1}, 7
s_add_u32 {sFO}, {sFO}, {WS_FO}'''
    return T.split('\n')
fl0=f'v_and_b32 v4, 1, v0\nv_lshlrev_b32 v4, 2, v4\nbuffer_load_dword v5, v4, {sWS}, {sFA} offen offset:32 sc1'
def tags():
    if 'earlytag' in OPT: tags2()
def tags2():
    k.force_wait(lg=0)
    k.I(f'''s_lshr_b32 {sT16}, {sTag}, 16
    s_add_u32 {sT16}, {sT16}, 0x2a5b
    s_and_b32 {sT16}, {sT16}, 0x3fff
    s_lshl_b32 {sTagH}, {sT16}, 16
    s_mul_i32 {sTag}, {sTag}, 1664525
    s_add_u32 {sTag}, {sTag}, 1013904223
    s_lshr_b32 {sTag}, {sTag}, 16
    s_or_b32 {sTag}, {sTag}, {sTagH}''')
    stamp_init(); stamp(8)
    if 'sts' in OPT: k.I(f's_mov_b32 s{tsreg(7)}, s88')
def a_addr(t, colexpr_v):
    k.I(f'''v_xor_b32 {v(vA+t)}, {v(colexpr_v)}, v28
    v_add_u32 {v(vA+t)}, {v(vA+t)}, v27
    v_add_u32 {v(vA+4+t)}, 0x10000, {v(vA+t)}''')
def spread(L, g0, g1, ex):
    n=g1-g0;
    for i in range(n):
        ex.setdefault(g0+i,[]).extend(L[i*len(L)//n:(i+1)*len(L)//n])
k.I(f's_cmp_ge_u32 {sRole}, 8\ns_cbranch_scc1 L_KV')
st_kv=k.state()

k.c('F role')
srd(sM,6,1792*2)
k.I(f'''s_mul_i32 {sT0}, {sRole}, 448
s_lshl_b32 {sT1}, {sWave}, 6
s_add_u32 {sT1}, {sT1}, {sT0}
v_and_b32 v1, 31, v0
v_lshlrev_b32 v2, 1, v1
buffer_load_ushort v148, v2, {sM}, {sT1} offen
s_lshl_b32 {sT1}, {sWave}, 7
s_add_u32 {sT1}, {sT1}, {MISC}
v_lshl_add_u32 v149, v1, 2, {sT1}
s_and_b32 {sT1}, {sT0}, 127
s_lshr_b32 {sA1}, {sWave}, 2
s_lshl_b32 {sT2}, {sA1}, 9
s_lshl_b32 {sA1}, {sA1}, 8
s_add_u32 {sA1}, {sT1}, {sA1}
s_add_u32 {sT2}, {sT2}, {MISC}
v_lshl_add_u32 v142, v3, 4, {sT2}''')
for t in range(4):
    k.I(f'v_lshl_add_u32 v26, v29, 3, {sA1}\nv_add_u32 v26, {64*t}, v26')
    a_addr(t,26)
tags()
FSET=f'''v_mov_b32 {v(vC)}, 0.5
v_mov_b32 {v(vC+1)}, 0.5
v_mov_b32 {v(vC+2)}, 1.0
v_mov_b32 {v(vC+3)}, 1.0
s_lshl_b32 {sA2}, {sTB}, 2
s_and_b32 s84, {sWave}, 3
s_add_u32 {sA2}, {sA2}, s84
s_mul_i32 {sA2}, {sA2}, 112
s_mul_i32 s84, {sRole}, 14
s_add_u32 {sA2}, {sA2}, s84
s_and_b32 s84, {sWave}, 4
s_lshl_b32 s84, s84, 1
s_add_u32 {sA2}, {sA2}, s84
s_lshl_b32 {sA2}, {sA2}, 10
s_add_u32 {sA2}, {sA2}, {WS_ACT}
s_add_u32 {sA3}, {sA2}, 4096
s_lshl_b32 {sA0}, {sTB}, 3
s_add_u32 {sA0}, {sA0}, {sRole}
s_lshl_b32 {sA0}, {sA0}, 7
s_lshl_b32 s84, {sWave}, 2
s_add_u32 {sA0}, {sA0}, s84
s_add_u32 {sA0}, {sA0}, {WS_FA}'''.split('\n')
emit_list(s2_setup()+FSET)
k.I(f's_cmp_ge_u32 {sWave}, 4\ns_cbranch_scc1 L_F3')
st_f3=k.state()

BI=104
def bias_reads(t):
    return [f'ds_read_b128 {v(BI+16*(t&1)+4*q,4)}, v142 offset:{128*t+32*q}' for q in range(4)]
def mish_tile(t, T, U, O):
    L=[]
    for hh in range(2):
        a=ACC+16*t+8*hh; b=BI+16*(t&1)+8*hh
        for i in range(0,8,2): L.append(f'v_pk_fma_f32 {v(a+i,2)}, {v(a+i,2)}, {sL2}, {v(b+i,2)}')
        for i in range(8): L.append(f'v_exp_f32 {v(T+i)}, {v(a+i)}')
        for i in range(0,8,2): L.append(f'v_pk_fma_f32 {v(U+i,2)}, {v(T+i,2)}, {v(vC,2)}, {v(vC+2,2)}')
        for i in range(0,8,2): L.append(f'v_pk_fma_f32 {v(U+i,2)}, {v(U+i,2)}, {v(T+i,2)}, {v(vC+2,2)}')
        for i in range(8): L.append(f'v_rcp_f32 {v(U+i)}, {v(U+i)}')
        for i in range(0,8,2): L.append(f'v_pk_fma_f32 {v(U+i,2)}, {v(a+i,2)}, {v(U+i,2)}, {v(a+i,2)} neg_lo:[1,0,0] neg_hi:[1,0,0]')
        for i in range(0,8,2): L.append(f'v_cvt_pk_bf16_f32 {v(O+4*hh+i//2)}, {v(U+i)}, {v(U+i+1)}')
    return L

def f_role(NT):
    ex={6:[f'v_lshlrev_b32 v148, 16, v148', f'v_mul_f32 v148, s40, v148', 'ds_write_b32 v149, v148'],
        20:bias_reads(0), 21:bias_reads(1), 25:[lambda: wait_ks(R3(0,3))]+s2_reads(R3(0,3))[:6], 26:s2_reads(R3(0,3))[6:]}
    gemm1(NT,1,{7:s2_dmas(R3(0,3)),8:s2_dmas(R3(3,6))},S1,extra=ex)
    stamp(2)
    T=168;U=176;O=184
    def tile(t):
        L=mish_tile(t,T,U,O)
        n=len(L)//2
        st=lambda hh: f'buffer_store_dwordx4 {v(O+4*hh,4)}, {v(vL16)}, {sWS}, {sA2 if t<2 else sA3} offen offset:{(2*(t&1)+hh)*1024} sc1'
        if 'noact' in OPT: st=lambda hh: 's_nop 0'
        return L[:n]+[st(0)]+L[n:n+6]+(bias_reads(t+2) if t+2<NT else [])+L[n+6:]+[st(1)]
    if NT==4:
        FA_T=int(OPT.get('fat','3'))
        for t in range(4):
            emit_list(tile(t))
            if t==FA_T:
                k.force_wait(vm=2*(t-1)); k.I(f's_add_u32 {sA1}, {sA0}, 32'); flag_store(sA1)
        k.I(fl0)
        stamp(9)
        emit_list(s2_reads(R3(3,6)))
        k.I('s_barrier')
        k.force_wait(vm=0)
        flag_store(sA0)
        stamp(4)
    else:
        emit_list(s2_dmas(R3(6,12),True))
        wait_ks(R3(3,6)); emit_list(s2_reads(R3(3,6)))
        stamp(5)
        BT=int(OPT.get('bt','1'))
        L=tile(0)+tile(1)+tile(2)
        BP=int(OPT.get('bp','30'))
        emit_list(L[:BP]); wait_ks(R3(6,12)); k.I('s_barrier')
        if 'f3prio' in OPT: k.I('s_setprio 2')
        emit_list(L[BP:])
        k.I(fl0)
        stamp(9)
        k.force_wait(vm=0)
        flag_store(sA0)
        stamp(4)
        k.waitcnt(lg=0)
        k.I('s_branch L_S2')
    k.waitcnt(lg=0)
    stamp(3)

f_role(4)

k.label('L_S2'); k.reset_state(); k.nop(2)
k.c('stage 2: k-steps 0-5 in regs, 6-11 in LDS (after the barrier for sRa=1), flag A value in v5')
if 's2prio' in OPT: k.I(f's_cmp_lt_u32 {sWave}, 4\ns_cbranch_scc1 L_np\ns_setprio 2'); k.label('L_np')
check_or_poll([f'buffer_load_dword v5, v4, {sWS}, {sFA} offen offset:32 sc1'],[(5,sTag,0)],'fa')
stamp(6)
LA=int(OPT.get('la','4'))
AD=8; OAD=14
LATE=range(120,168)
free=[168,172,176,180,184,188,20,120,124,128,132,144,148,152,156,160,164]; where={}
def act_load(ks):
    b0=free.pop(0); b1=free.pop(0)
    if ks<14:
        where[(ks,0)]=b0; where[(ks,1)]=b1
        L=[]
        for tt,b in enumerate((b0,b1)):
            off=(tt*112+ks)*1024
            L.append(f's_add_u32 {sA0}, {sAC}, {off&~4095}\nbuffer_load_dwordx4 {v(b,4)}, {v(vL16)}, {sWS}, {sA0} offen offset:{off&4095} sc1')
        return L
    tt,q=divmod(2*(ks-14),4); L=[]
    for b in (b0,b1):
        ob[(q,tt)]=b
        L.append(f'buffer_load_dwordx4 {v(b,4)}, {v(vL16)}, {sWS}, {sOB if tt==0 else sB0} offen offset:{q*1024} sc1'); q+=1
    oloads.extend(L)
    return L
ob={}; oloads=[]
flB=f'buffer_load_dword v5, v4, {sWS}, {sFA} offen sc1'
fl1=f'buffer_load_dword v2, v4, {sWS}, {sFA} offen offset:16 sc1'
hload=f'buffer_load_dword v3, v1, {sWS}, {sFO} offen sc1'
FD=int(OPT.get('fd','2'))
assert LA<=4
FBP=int(OPT.get('fbp','2'))
for ks in range(LA):
    if ks==FBP: k.I(flB)
    emit_list(act_load(ks))
if FBP>=LA: k.I(flB)
for i in range(6): k.I(f'v_mov_b32 {v(AD+i)}, {v(vS2+i)}')
k.I(f'''v_lshrrev_b32 v2, 5, v0
v_mul_u32_u24 v2, 7, v2
v_bfe_u32 v3, v0, 2, 2
v_add_u32 v2, v2, v3
v_bfe_u32 v3, v2, 1, 1
v_lshlrev_b32 v2, 7, v2
v_lshl_add_u32 v2, v3, 6, v2
v_bfe_u32 v3, v0, 4, 1
v_lshl_add_u32 v2, v3, 5, v2
v_and_b32 v3, 3, v0
v_lshl_add_u32 v2, v3, 3, v2
v_xor_b32 v3, 64, v2
v_add_u32 {v(OAD)}, {sL4}, v2
v_add_u32 {v(OAD+1)}, {sL4}, v3
v_add_u32 {v(OAD+2)}, {sL2k}, v2
v_add_u32 {v(OAD+3)}, {sL2k}, v3
v_lshlrev_b32 v1, 5, v4''')
emit_list(s2_reads(R3(6,12),AD,OAD))
SCHED=[ks+1+LA for ks in range(14)]
if 'sched' in OPT: SCHED=[int(x) for x in OPT['sched'].split(',')]
nl=LA
F1=min(ks for ks in range(14) if SCHED[ks]>8)-FD
F2=min([ks for ks in range(14) if SCHED[ks]>14]+[14])-FD
S2T={0:4,2:5,4:7,6:8,7:9,8:12,10:13,12:14}
if 's2ts' in OPT: gstamp(3)
def acc2(tt,ct): return ACC+32*tt+16*ct
wd=s2_dmas(R3(12,18))
WD0=int(OPT.get('wd0','0'))
post=[]
for ks in range(14):
    M=[]
    for tt in range(2):
        for ct in range(2):
            d=v(acc2(tt,ct),16)
            M.append(f'v_mfma_f32_32x32x16_bf16 {d}, {v(wreg(ks,ct),4)}, {v(where[(ks,tt)],4)}, {"0" if ks==0 else d}')
    if ks>=2:
        free += [b for b in [where[(ks-2,0)],where[(ks-2,1)],wreg(ks-2,0),wreg(ks-2,1)] if b not in LATE]
    if ks==3: free=[b for b in free if b not in LATE]
    X=[]
    tgt=min(18, SCHED[ks])
    while nl<tgt:
        if nl==4:
            emit_list(X); X=[]; check_or_poll([flB],[(5,sTag,0)],'fab')
        if nl==8:
            emit_list(X); X=[]; check_or_poll([fl1],[(2,sTag,0)],'fa1')
        if nl==14 and 'nohint' not in OPT:
            emit_list(X); X=[]; check_or_poll([hload],[(3,sTag,0)],'foh')
        X+=act_load(nl); nl+=1
    if ks==F1: X.append(fl1)
    if ks==F2 and 'nohint' not in OPT: X.append(hload)
    if ks==WD0+3: X.append(lambda: k.waitcnt(lg=0))
    if WD0<=ks<WD0+6: X+=wd[2*(ks-WD0):2*(ks-WD0)+2]
    if ks==9:
        assert all(where.get((j,t),0) not in LATE for j in range(8,14) for t in range(2))
        X+= [lambda: wait_ks(R3(12,15))]+s2_reads(R3(12,15),AD,OAD)
    if ks==11:
        X+= [lambda: wait_ks(R3(15,18))]+s2_reads(R3(15,18),AD,OAD)
    if ks==8:
        a0=free.pop(0); a1=free.pop(0); a2=free.pop(0); a3=free.pop(0); a4=free.pop(0)
        u1,u2,u3=a4,a4+1,a4+2
        t0,t1='s84','s85'
        post=f'''v_and_b32 {v(a2)}, 31, v0
v_lshrrev_b32 {v(a2+1)}, 5, v0
v_and_b32 {v(a2+2)}, 4, v0
v_bfe_u32 {v(a2+3)}, v0, 1, 1
v_or_b32 {v(a2+2)}, {v(a2+2)}, {v(a2+3)}
v_and_b32 {v(a2+3)}, 1, v0
v_lshl_or_b32 {v(a2+2)}, {v(a2+3)}, 1, {v(a2+2)}
v_xor_b32 {v(a2+1)}, {v(a2+1)}, {v(a2+2)}
v_lshlrev_b32 {v(a2+1)}, 4, {v(a2+1)}
v_lshl_or_b32 {v(a2+2)}, {v(a2)}, 7, {v(a2+1)}
v_add_u32 {v(a0)}, {sL4}, {v(a2+2)}
v_xor_b32 {v(a0+1)}, 32, {v(a0)}
v_xor_b32 {v(a0+2)}, 64, {v(a0)}
v_xor_b32 {v(a0+3)}, 96, {v(a0)}
v_lshrrev_b32 {v(a2)}, 4, {v(a2)}
v_mul_u32_u24 {v(a2)}, {16384-2048}, {v(a2)}
v_add3_u32 {v(a1)}, {v(a2)}, {v(a2+2)}, {sL2k}
v_xor_b32 {v(a1+1)}, 32, {v(a1)}
v_xor_b32 {v(a1+2)}, 64, {v(a1)}
v_xor_b32 {v(a1+3)}, 96, {v(a1)}
v_add_u32 {v(a2)}, 0x10000, {v(a0)}
v_add_u32 {v(a2+1)}, 0x10000, {v(a0+1)}
v_add_u32 {v(a2+2)}, 0x10000, {v(a0+2)}
v_add_u32 {v(a2+3)}, 0x10000, {v(a0+3)}
v_lshrrev_b32 {v(u1)}, 3, v0
v_lshlrev_b32 {v(a4+3)}, 3, {v(u1)}
v_and_b32 {v(u2)}, 3, v0
v_bfe_u32 {v(u3)}, v0, 3, 1
v_xor_b32 {v(u2)}, {v(u2)}, {v(u3)}
v_bfe_u32 {v(u3)}, v0, 4, 1
v_lshl_or_b32 {v(u2)}, {v(u2)}, 1, {v(u3)}
v_and_b32 {v(u3)}, 4, {v(u1)}
v_xor_b32 {v(u2)}, {v(u2)}, {v(u3)}
v_lshlrev_b32 {v(u2)}, 4, {v(u2)}
v_lshl_or_b32 {v(u2)}, {v(u1)}, 7, {v(u2)}
v_bfe_u32 {v(u3)}, v0, 2, 1
s_and_b32 {t0}, {sWave}, 3
s_lshl_b32 {t0}, {t0}, 10
s_lshr_b32 {t1}, {sWave}, 2
s_lshl_b32 {t1}, {t1}, 16
s_add_u32 {t0}, {t0}, {t1}
v_lshl_add_u32 {v(a3)}, {v(u3)}, 15, {t0}
v_add_u32 {v(a3)}, {v(a3)}, {v(u2)}
s_and_b32 {t0}, {sWave}, 1
s_lshl_b32 {t0}, {t0}, 10
s_and_b32 {t1}, {sWave}, 2
s_lshl_b32 {t1}, {t1}, 13
s_add_u32 {t0}, {t0}, {t1}
s_add_u32 {t0}, {t0}, {XR}
v_add_u32 {v(u2)}, {t0}, {v(u2)}
s_lshr_b32 {t1}, {sWave}, 2
v_and_b32 {v(u3)}, {t1}, {v(u3)}
v_cmp_eq_u32 s[86:87], 1, {v(u3)}
v_mov_b32 {v(a3+2)}, 4096
v_mov_b32 {v(a3+3)}, 2048
v_cndmask_b32 {v(a3)}, {v(a3)}, {v(u2)}, s[86:87]
v_cndmask_b32 {v(a3+2)}, {v(a3+2)}, {v(a3+3)}, s[86:87]
v_xor_b32 {v(a3+1)}, 16, {v(a3)}
v_and_b32 {v(u2)}, 7, v0
v_mul_u32_u24 {v(u1)}, 896, {v(u1)}
v_lshl_add_u32 {v(u1)}, {v(u2)}, 4, {v(u1)}
s_lshl_b32 {sA2}, {sT64}, 3
s_add_u32 {sA2}, {sA2}, {sWave}
s_lshl_b32 {sGB}, {sA2}, 6
s_add_u32 {sGB}, {sGB}, {WS_G}
s_mul_i32 {sA2}, {sA2}, {8*896}
s_lshl_b32 {t1}, {sCT}, 7
s_add_u32 {sA2}, {sA2}, {t1}'''.split('\n')
    if ks>=8 and post:
        X+=post[:16]; post=post[16:]
    gload=f'buffer_load_dwordx2 v[4:5], {v(a4+3)}, {sWS}, {sGB} offen sc1' if ks>=8 else None
    if ks==12: assert not post; X.append(gload)
    emit_list(interleave(M,X))
    if 's2ts' in OPT and ks in S2T: gstamp(S2T[ks])
stamp(10)
def wr(tt,ct):
    t=2*tt+ct
    a,off = [(a0,0),(a0,32768),(a2,0),(a1,0)][t]
    return [f'ds_write_b128 {v(a+q)}, {v(acc2(tt,ct)+4*q,4)} offset:{off}' for q in range(4)]
k.waitcnt(lg=0)
for st_ in range(4):
    tt,q0=divmod(2*st_,4)
    while nl<=14+st_: emit_list(act_load(nl)); nl+=1
    if 'noo' not in OPT: check_or_poll(oloads[2*st_:2*st_+2],[(ob[(q,tt)]+3,sT16,1) for q in (q0,q0+1)],f'fo{st_}')
    if st_==0: stamp(11)
    for q in (q0,q0+1): k.I(f'v_and_b32 {v(ob[(q,tt)]+3)}, 0xffff, {v(ob[(q,tt)]+3)}')
    M=[]
    for ct in range(2):
        for q in (q0,q0+1):
            d=v(acc2(tt,ct),16)
            M.append(f'v_mfma_f32_32x32x16_bf16 {d}, {v(wreg(14+q,ct),4)}, {v(ob[(q,tt)],4)}, {d}')
    X=[]
    if nl<18: X+=act_load(nl); nl+=1
    if st_==2: X+=wr(0,0)
    if st_==3: X+=wr(0,1)
    emit_list(interleave(M,X))
emit_list(wr(1,0))
stamp(12)
check_or_poll([gload],[(5,sTag,0)],'fg')
emit_list(wr(1,1))
k.waitcnt(lg=0); stamp(13); k.I('s_barrier')
RB=ACC
for s in range(8):
    for c in range(2):
        k.I(f'ds_read_b128 {v(RB+8*s+4*c,4)}, {v(a3+c)}')
    if s<7: k.I(f'v_add_u32 {v(a3)}, {v(a3)}, {v(a3+2)}\nv_add_u32 {v(a3+1)}, {v(a3+1)}, {v(a3+2)}')
for s in range(1,8):
    for i in range(0,8,2): k.I(f'v_pk_add_f32 {v(RB+i,2)}, {v(RB+i,2)}, {v(RB+8*s+i,2)}')
for i in range(0,8,2): k.I(f'v_pk_mul_f32 {v(RB+i,2)}, {v(RB+i,2)}, v[4:5] op_sel_hi:[1,0]')
for i in range(4): k.I(f'v_cvt_pk_bf16_f32 {v(a0+i)}, {v(RB+2*i)}, {v(RB+2*i+1)}')
k.I(f'buffer_store_dwordx4 {v(a0,4)}, {v(u1)}, {sOUT}, {sA2} offen {OPT.get("outfl","sc1").replace("+"," ")}')
stamp(15)
dump_stamps()
k.I('s_endpgm')

k.label('L_F3'); k.set_state(st_f3)
f_role(3)

RV=[0,1,2,3,4,5,6,8,9,10,11,12,13,14]
def wphi_lane(dst, base_sgpr):
    k.I(f'''v_and_b32 v30, 3, v0
    v_bfe_u32 v31, v0, 3, 2
    v_lshl_add_u32 v30, v31, 2, v30
    v_lshrrev_b32 v31, 3, v30
    v_sub_u32 v30, v30, v31
    v_bfe_u32 v31, v0, 2, 1
    v_mul_u32_u24 v31, 14, v31
    v_add_u32 v30, v30, v31
    v_min_u32 v30, 27, v30
    v_lshlrev_b32 v30, 1, v30
    v_mul_u32_u24 v31, 224, v3
    v_add3_u32 {v(dst)}, v30, v31, {base_sgpr}''')
def wphi_reads(dst16, addr, off):
    return [f'ds_read_u16 {v(dst16+8*s+j)}, {v(addr)} offset:{off+(16*s+(j&3)+8*(j>>2))*56}' for s in range(2) for j in range(8)]
def wphi_pack(src16,dst8):
    L=[f'v_lshl_or_b32 {v(dst8+i)}, {v(src16+2*i+1)}, 16, {v(src16+2*i)}' for i in range(8)]
    L+=[f'v_cndmask_b32 {v(dst8+i)}, {v(dst8+i)}, 0, {sHi}' for i in (6,7)]
    return L
def feat(a, wp, PK, Pp):
    L=[f'v_cvt_pk_bf16_f32 {v(PK+i)}, {v(a+2*i)}, {v(a+2*i+1)}' for i in range(8)]
    L.append(f'v_mfma_f32_32x32x16_bf16 {v(Pp,16)}, {v(wp,4)}, {v(PK,4)}, 0')
    L.append(f'v_mfma_f32_32x32x16_bf16 {v(Pp,16)}, {v(wp+4,4)}, {v(PK+4,4)}, {v(Pp,16)}')
    return L
def feat2(Pp, E, S, norm, O):
    L=[]; A=L.append
    A(f'v_max_f32 {v(S)}, {v(Pp+RV[0])}, {v(Pp+RV[1])}')
    A(f'v_max_f32 {v(S+1)}, -{v(Pp+RV[0])}, -{v(Pp+RV[1])}')
    for i in range(2,14,2):
        A(f'v_max3_f32 {v(S)}, {v(S)}, {v(Pp+RV[i])}, {v(Pp+RV[i+1])}')
        A(f'v_max3_f32 {v(S+1)}, {v(S+1)}, -{v(Pp+RV[i])}, -{v(Pp+RV[i+1])}')
    A(f'v_permlane32_swap_b32 {v(S)}, {v(S+1)}')
    A(f'v_max_f32 {v(S)}, {v(S)}, {v(S+1)}')
    A(f'v_mul_f32 {v(S)}, s43, {v(S)}')
    A(f'v_mov_b32 {v(S+1)}, {v(S)}')
    A(f'v_permlane32_swap_b32 {v(S)}, {v(S+1)}')
    for i,r in enumerate(RV):
        h=r&1
        A(f'v_pk_fma_f32 {v(E+2*i,2)}, {v(Pp+r-h,2)}, {sLn}, {v(S,2)} op_sel:[{h},0,0] op_sel_hi:[{h},1,1]')
    for r in range(28): A(f'v_exp_f32 {v(E+r)}, {v(E+r)}')
    if norm:
        A(f'v_pk_add_f32 {v(S,2)}, {v(E,2)}, {v(E+2,2)}')
        A(f'v_pk_add_f32 {v(S+2,2)}, {v(E+4,2)}, {v(E+6,2)}')
        for r in range(4,14):
            s=S+2*(r&1)
            A(f'v_pk_add_f32 {v(s,2)}, {v(s,2)}, {v(E+2*r,2)}')
        A(f'v_pk_add_f32 {v(S,2)}, {v(S,2)}, {v(S+2,2)}')
        A(f'v_permlane32_swap_b32 {v(S)}, {v(S+1)}')
        A(f'v_add_f32 {v(S)}, {v(S)}, {v(S+1)}')
        A(f'v_rcp_f32 {v(S)}, {v(S)}')
        A(f'v_mov_b32 {v(S+1)}, {v(S)}')
        A(f'v_permlane32_swap_b32 {v(S)}, {v(S+1)}')
        for r in range(14): A(f'v_pk_mul_f32 {v(E+2*r,2)}, {v(E+2*r,2)}, {v(S,2)}')
    for sg in range(2):
        for s in range(2):
            for j in range(4):
                i=7*s+2*j
                A(f'v_cvt_pk_bf16_f32 {v(O+8*sg+4*s+j)}, {v(E+2*i+sg)}, {v(E+2*i+2+sg) if j<3 else "0"}')
    return L

k.label('L_KV'); k.set_state(st_kv)
k.c('KV role')
srd(sM,2,16*1568)
k.I(f'''s_sub_u32 {sRole}, {sRole}, 8
s_lshl_b32 {sT0}, {sRole}, 2
s_lshr_b32 {sH0}, 0xDA8630, {sT0}
s_and_b32 {sH0}, {sH0}, 15
s_lshl_b32 {sT2}, {sRole}, 7
s_mul_i32 {sA1}, {sH0}, 56
s_sub_u32 {sA1}, {sA1}, {sT2}
s_mul_i32 {sA2}, {sH0}, 1568
s_add_u32 {sA2}, {sA2}, {sLW}''')
k.I(f's_lshr_b32 {sT1}, {sWave}, 2\ns_mul_i32 {sT2}, {sT1}, 3136\ns_add_u32 {sT2}, {sT2}, {MISC}')
wphi_lane(148, sT2)
k.I(f'v_min_u32 v29, 6, v29')
for t,(o0,o1) in enumerate([(0,112),(56,312),(256,368)]):
    k.I(f's_mul_i32 {sT2}, {sT1}, {o1-o0}\ns_add_u32 {sT2}, {sT2}, {sA1}\ns_add_u32 {sT2}, {sT2}, {o0}\nv_lshl_add_u32 v26, v29, 3, {sT2}')
    a_addr(t,26)
tags()
PHI=[0,16384,98304]; VV=[131072,131072+64,147456]
WA=240; RA=20
t0,t1,t2,t3='s84','s85','s86','s87'
KSET=f'''v_and_b32 v1, 5, v0
v_and_b32 v2, 2, v0
v_lshl_or_b32 v1, v2, 2, v1
v_bfe_u32 v2, v0, 3, 1
v_lshl_or_b32 v1, v2, 1, v1
v_lshrrev_b32 v2, 5, v0
v_xor_b32 v1, v1, v2
v_and_b32 v2, 31, v0
v_lshlrev_b32 v2, 7, v2
v_lshl_or_b32 v1, v1, 3, v2
s_and_b32 {t0}, {sWave}, 3
s_lshl_b32 {t0}, {t0}, 12
v_add_u32 {v(WA)}, {t0}, v1'''.split('\n')
KSET+=[f'v_xor_b32 {v(WA+c)}, {16*c}, {v(WA)}' for c in range(1,8)]
KSET+=[f'v_add_u32 {v(WA+8+c)}, {XR}, {v(WA+c)}' for c in range(8)]
KSET+=f'''v_bfe_u32 v1, v0, 2, 2
v_lshrrev_b32 v2, 5, v0
v_lshl_add_u32 v3, v2, 3, v1
v_lshlrev_b32 v3, 7, v3
v_and_b32 v20, 1, v1
v_lshl_or_b32 v20, v2, 1, v20
v_lshrrev_b32 v1, 1, v1
v_lshl_or_b32 v20, v1, 3, v20
v_bfe_u32 v1, v0, 4, 1
v_and_b32 v2, 3, v0
v_lshl_add_u32 v1, v1, 2, v2
v_xor_b32 v20, v20, v1
v_lshl_add_u32 v20, v20, 3, v3
s_lshr_b32 {t0}, {sWave}, 1
s_and_b32 {t1}, {sWave}, 1
s_lshl_b32 {t1}, {t1}, 6
s_and_b32 {t2}, {t0}, 1
s_lshl_b32 {sA0}, {t2}, 6
s_lshl_b32 {t2}, {t2}, 14
s_lshr_b32 {t3}, {t0}, 1
s_mul_i32 {sA1}, {t3}, 98304
s_add_u32 {t2}, {t2}, {sA1}
s_lshl_b32 {t3}, {t3}, 14
s_add_u32 {t3}, {t3}, 131072
v_xor_b32 v22, {sA0}, v20
v_xor_b32 v20, {t1}, v20
v_xor_b32 v21, 32, v20
v_xor_b32 v23, 32, v22
v_add_u32 v20, {t2}, v20
v_add_u32 v21, {t2}, v21
v_add_u32 v22, {t3}, v22
v_add_u32 v23, {t3}, v23
s_add_u32 {sA0}, {sH0}, {t0}
s_lshl_b32 {sA0}, {sA0}, 1
s_and_b32 {t1}, {sWave}, 1
s_add_u32 {sA0}, {sA0}, {t1}
s_lshl_b32 {sA0}, {sA0}, 6
s_add_u32 {sA0}, {sA0}, {sTB}
s_lshl_b32 {sA0}, {sA0}, 9
s_add_u32 {sA0}, {sA0}, {WS_P1}
s_add_u32 {sA1}, {sA0}, 16384
v_lshrrev_b32 v1, 5, v0
v_and_b32 v2, 31, v0
v_lshlrev_b32 v2, 4, v2
v_lshl_or_b32 v143, v1, 13, v2'''.split('\n')
WP=120
PK=64;Pp=72;E=88;S=116;O=160;PK2=48;Pp2=176
r0=wphi_reads(64,148,0); r1=wphi_reads(80,148,1568)
ex={4:r0[:11],5:r0[11:]+r1[:6],6:r1[6:], 7:wphi_pack(64,WP), 8:wphi_pack(80,WP+8), 25:[lambda: wait_ks(R3(0,3))]+s2_reads(R3(0,3))[:6], 26:s2_reads(R3(0,3))[6:]}
emit_list(s2_setup()+KSET)
kqpf(ex,int(OPT.get('kqpf','27')))
gemm1(3,1,{7:s2_dmas(R3(0,3)),8:s2_dmas([3,4])},S1+[dma(vL16, sM, sA2, sLW, MISC, 's1')],extra=ex)
stamp(2)
def wr_tile(src, base, n):
    hi = 4 if (base&64) else 0; b=base&~64
    if b>=XR: hi+=8; b-=XR
    return [f'ds_write_b64 {v(WA+hi+q)}, {v(src+2*q,2)} offset:{b}' for q in range(n)]
def v_tile(t, arr, tmp):
    a=ACC+16*t
    L=[f'v_cndmask_b32 {v(a+12)}, {v(a+12)}, 1.0, {sHi}']
    L+=[f'v_cvt_pk_bf16_f32 {v(tmp+i)}, {v(a+2*i)}, {v(a+2*i+1)}' for i in range(8)]
    return L+wr_tile(tmp, arr, 4)
emit_list(feat(ACC, WP, PK, Pp))
k.I(f's_cmp_ge_u32 {sWave}, 4\ns_cbranch_scc1 L_KV1')
st=k.state()
emit_list(feat(ACC+16, WP+8, PK2, Pp2))
emit_list(v_tile(2,VV[0],152))
E2=ACC; S2_=ACC+28; O2=ACC+32
if 'kvzip' in OPT:
    for a_,b_ in zip(feat2(Pp,E,S,True,O)+wr_tile(O,PHI[0],8), feat2(Pp2,E2,S2_,True,O2)+wr_tile(O2,PHI[1],8)): k.I(a_); k.I(b_)
else: emit_list(feat2(Pp,E,S,True,O)+wr_tile(O,PHI[0],8)+feat2(Pp2,E2,S2_,True,O2)+wr_tile(O2,PHI[1],8))
k.force_wait(lg=0)
k.label('L_KV2'); k.nop(2)
k.I('s_barrier')
stamp(3)
k.I(f's_cmp_ge_u32 {sWave}, 6\ns_cbranch_scc1 L_KV3')
KA=64; KB=96; KD=176
for ks in range(8):
    for i in range(2):
        k.I(f'ds_read_b64_tr_b16 {v(KA+4*ks+2*i,2)}, {v(RA+i)} offset:{2048*ks+512*i}')
        k.I(f'ds_read_b64_tr_b16 {v(KB+4*ks+2*i,2)}, {v(RA+2+i)} offset:{2048*ks+512*i}')
    if ks>=2: k.I(f'v_mfma_f32_32x32x16_bf16 {v(KD,16)}, {v(KA+4*(ks-2),4)}, {v(KB+4*(ks-2),4)}, {"0" if ks==2 else v(KD,16)}')
for ks in (6,7): k.I(f'v_mfma_f32_32x32x16_bf16 {v(KD,16)}, {v(KA+4*ks,4)}, {v(KB+4*ks,4)}, {v(KD,16)}')
for s in range(2):
    for j in range(4): k.I(f'v_cvt_pk_bf16_f32 {v(O+4*s+j)}, {v(KD+8*s+2*j)}, {v(KD+8*s+2*j+1) if j<3 else "0"}')
    k.I(f'v_or_b32 {v(O+4*s+3)}, {sTagH}, {v(O+4*s+3)}')
    k.I(f'buffer_store_dwordx4 {v(O+4*s,4)}, v143, {sWS}, {sA0 if s==0 else sA1} offen sc1')
k.label('L_KV3'); k.nop(4)
k.I('s_barrier')
stamp(4)
k.vm=[]
KVE=[9,10,11][:int(OPT.get('kve','0'))]
emit_list(s2_dmas([5,6,7,8]+[x for x in [9,10,11] if x not in KVE]))
k.I(fl0)
wait_ks([5]); emit_list(s2_reads([3,4,5]))
k.force_wait(vm=0,lg=0)
stamp(9)
k.I('s_branch L_S2')
k.label('L_KV1'); k.set_state(st)
if 'kvprio' in OPT: k.I('s_setprio 1')
emit_list(v_tile(1,VV[1],152)+v_tile(2,VV[2],176))
emit_list(s2_dmas(KVE,True))
emit_list(feat2(Pp,E,S,True,O)+wr_tile(O,PHI[2],8))
k.force_wait(vm=0,lg=0)
if 'kvprio' in OPT: k.I('s_setprio 0')
k.I('s_branch L_KV2')

k.label('L_Q'); k.set_state(st_q)
k.c('Q role')
srd(sM,2,16*1568)
k.I(f'''s_sub_u32 {sRole}, {sRole}, 14
s_lshl_b32 {sH0}, {sRole}, 3
s_add_u32 {sH0}, {sH0}, {sWave}
s_mul_i32 {sA1}, {sH0}, 56
s_sub_u32 {sA1}, {sA1}, {sB0}
s_lshl_b32 {sA0}, {sA0}, 6
s_mul_i32 {sA2}, {sH0}, 1568
s_lshl_b32 {sA3}, {sWave}, 11
s_add_u32 {sT2}, {sA3}, {MISC}''')
wphi_lane(148, sT2)
k.I(f'''v_lshl_add_u32 v26, v29, 3, {sA1}
v_mov_b32 v1, {sA0}
v_cmp_eq_u32 vcc, 7, v29
v_cndmask_b32 v26, v26, v1, vcc''')
a_addr(0,26)
k.I(f'''v_and_b32 v2, 3, v0
v_lshlrev_b32 v2, 6, v2
v_xor_b32 v2, v2, v1
v_lshl_add_u32 v9, v0, 9, v2
s_mul_i32 {sT1}, {sWave}, 43
s_lshr_b32 {sT1}, {sT1}, 7
s_mul_i32 {sT1}, {sT1}, 3
s_sub_u32 {sT1}, {sWave}, {sT1}
s_lshl_b32 {sT1}, {sT1}, 15
v_add_u32 v9, {sT1}, v9''')
tags()
def gate(s):
    lab=newlab('g')
    if s==0: k.I('v_mov_b32 v34, v32\nv_mov_b32 v35, 0')
    k.I(f's_cmp_lg_u32 {sWave}, {s}\ns_cbranch_scc1 {lab}')
    k.I('ds_write_b64 v9, v[34:35]')
    k.label(lab)
WP=128; EQ=24
r0=wphi_reads(48,148,0)
QSET=f'''v_and_b32 v1, 3, v0
v_bfe_u32 v2, v0, 3, 1
v_lshl_add_u32 v1, v2, 2, v1
v_bfe_u32 v2, v0, 4, 1
v_bfe_u32 v3, v0, 2, 1
v_lshl_add_u32 v3, v2, 1, v3
v_mul_u32_u24 v3, 7, v3
v_add_u32 v3, v3, v1
v_lshl_add_u32 v2, v2, 3, v1
v_cmp_eq_u32 s[86:87], 15, v2
v_mov_b32 v2, 28
v_cmp_eq_u32 vcc, 7, v1
v_cndmask_b32 v3, v3, v2, vcc
v_lshlrev_b32 v20, 2, v3
v_add_u32 v36, 128, v20
v_mov_b32 v21, 0x3f800000
v_mov_b32 v22, 0x3f80
v_lshlrev_b32 v23, 7, v0
s_and_b32 s84, {sTB}, 1
s_lshl_b32 s84, s84, 2
s_and_b32 s85, {sH0}, 11
s_add_u32 s84, s84, s85
s_lshl_b32 s84, s84, 3
s_lshr_b32 s85, {sTB}, 1
s_add_u32 s84, s84, s85
s_lshl_b32 {sA1}, s84, 9
s_add_u32 {sA1}, {sA1}, {WS_P2}
s_lshl_b32 {sA0}, s84, 13
s_add_u32 {sA0}, {sA0}, {WS_P1}'''.split('\n')
ex={4:r0[:8],5:r0[8:],6:wphi_pack(48,WP),19:[(f'buffer_load_dword v147, v23, {sWS}, {sA0} offen','pf')]}
emit_list(QSET)
kqpf(ex,int(OPT.get('qpg','20')))
gemm1(1,4,{},S1+[dma(vL16, sM, sA2, sA3, MISC, 's1'), dma(vL16, sM, (sA2,1024), sA3, MISC+1024, 's1')],masked=True,pre_barrier=gate,extra=ex)
stamp(2)
PK=88;E=136;S=164;GG=168
k.I('v_mov_b32 v19, v36')
PP=[96,112]
emit_list(feat(ACC, WP, PK, PP[0]))
for t in range(4): k.I(f'v_mul_f32 {v(GG+t)}, s40, {v(ACC+16*t+12)}')
for t in range(4): k.I(f'v_min_f32 {v(GG+t)}, {f2u(86.0)}, {v(GG+t)}')
for t in range(4): k.I(f'v_exp_f32 {v(GG+t)}, {v(GG+t)}')
for t in range(4): k.I(f'v_mul_f32 {v(GG+t)}, s40, {v(GG+t)}')
for t in range(4): k.I(f'v_mov_b32 {v(172+t)}, {v(GG+t)}')
for t in range(4): k.I(f'v_permlane32_swap_b32 {v(172+t)}, {v(GG+t)}')
k.I(f's_cmp_lg_u32 {sH0}, 0\ns_cbranch_scc1 L_Q1')
st=k.state()
k.I(f'''v_cndmask_b32 v2, {v(GG)}, {v(GG+1)}, {sHi}
v_cndmask_b32 v10, {v(GG+2)}, {v(GG+3)}, {sHi}
v_add_f32 v2, s40, v2
v_add_f32 v10, s40, v10
v_rcp_f32 v2, v2
v_rcp_f32 v10, v10
v_mov_b32 v3, {sTag}
v_mov_b32 v11, {sTag}
v_lshlrev_b32 v1, 3, v0
s_lshl_b32 {sT1}, {sTB}, 10
s_add_u32 {sT1}, {sT1}, {WS_G}
buffer_store_dwordx2 v[2:3], v1, {sWS}, {sT1} offen sc1
buffer_store_dwordx2 v[10:11], v1, {sWS}, {sT1} offen offset:512 sc1''')
k.label('L_Q1'); k.set_state(st)
emit_list(feat(ACC+16, WP, 176, PP[1]))
for a_,b_ in zip(feat2(PP[0],E,S,True,EQ), feat2(PP[1],ACC,ACC+28,True,EQ+16)): k.I(a_); k.I(b_)
emit_list(feat(ACC+32, WP, PK, PP[0])+feat(ACC+48, WP, 176, PP[1]))
for a_,b_ in zip(feat2(PP[0],E,S,True,EQ+32), feat2(PP[1],ACC,ACC+28,True,EQ+48)): k.I(a_); k.I(b_)
stamp(3)
k.I(f'''s_lshl_b32 {sA2}, {sH0}, 12
s_add_u32 {sA2}, {sA2}, {WS_P2}
s_cmp_ge_u32 {sWave}, 4
s_cbranch_scc1 L_Q2''')
k.I(f's_add_u32 {sT1}, {sA0}, 4096')
R0=96; U0=ACC
poll([f'buffer_load_dwordx4 {v(R0+4*i,4)}, {v(vL16)}, {sWS}, {[sA0,sT1][i>>2]} offen offset:{(i&3)*1024} sc1' for i in range(8)],
     [(R0+4*i+3,sT16,1) for i in range(8)],'p1')
stamp(6)
if 'nodot' in OPT:
    for i in range(8):
        for j in range(4):
            k.I(f'v_lshlrev_b32 {v(U0+8*i+2*j)}, 16, {v(R0+4*i+j)}')
            k.I(f'v_and_b32 {v(U0+8*i+2*j+1)}, 0xffff0000, {v(R0+4*i+j)}')
    for st_ in (32,16,8):
        for j in range(0,st_,2): k.I(f'v_pk_add_f32 {v(U0+j,2)}, {v(U0+j,2)}, {v(U0+st_+j,2)}')
else:
    for j in range(4):
        k.I(f'v_lshlrev_b32 {v(U0+2*j)}, 16, {v(R0+j)}')
        k.I(f'v_and_b32 {v(U0+2*j+1)}, 0xffff0000, {v(R0+j)}')
    for i in range(1,8):
        for j in range(7):
            k.I(f'v_dot2c_f32_bf16 {v(U0+j)}, {v(R0+4*i+j//2)}, {v(22 if j%2==0 else 21)}')
    k.nop(3)
for j in range(4): k.I(f'v_permlane32_swap_b32 {v(U0+j)}, {v(U0+4+j)}')
for j in range(0,4,2): k.I(f'v_pk_add_f32 {v(U0+j,2)}, {v(U0+j,2)}, {v(U0+4+j,2)}')
k.I(f'''v_cvt_pk_bf16_f32 v12, {v(U0)}, {v(U0+1)}
v_cvt_pk_bf16_f32 v13, {v(U0+2)}, {v(U0+3)}
ds_bpermute_b32 v8, v20, v12
ds_bpermute_b32 v9, v20, v13
ds_bpermute_b32 v10, v19, v12
ds_bpermute_b32 v11, v19, v13
v_and_b32 v11, 0xffff, v11
v_or_b32 v11, {sTagH}, v11
s_not_b64 exec, {sHi}
buffer_store_dwordx4 v[8:11], {v(vL16)}, {sWS}, {sA1} offen sc1
s_mov_b64 exec, -1''')
k.label('L_Q2'); k.nop(2)
if 'nop2bar' not in OPT: k.I('s_barrier')
stamp(7)
KV=136
k.I(f'''s_lshl_b32 {sA0}, {sTB}, 6
s_add_u32 {sA0}, {sA0}, {sH0}
s_lshl_b32 {sA0}, {sA0}, 11
s_add_u32 {sA0}, {sA0}, {WS_O}
s_mov_b32 {sT1}, {f2u(1e-6)}''')
poll([f'buffer_load_dwordx4 {v(KV+4*i,4)}, {v(vL16)}, {sWS}, {sA2} offen offset:{i*1024} sc1' for i in range(4)],
     [(KV+4*i+3,sT16,1) for i in range(4)],'p2')
stamp(4)
def omf(t):
    d=v(ACC+16*t,16)
    return [f'v_mfma_f32_32x32x16_bf16 {d}, {v(KV+4*i,4)}, {v(EQ+16*t+4*i,4)}, {"0" if i==0 else d}' for i in range(4)]
def ofin(t):
    p=ACC+16*t; o=96+8*t; c=8+t
    L=[f'v_add_f32 {v(c)}, {sT1}, {v(p+7)}', f'v_rcp_f32 {v(c)}, {v(c)}', f'v_mul_f32 {v(c)}, {v(c)}, {v(GG+t)}']
    for s in range(2):
        L+=[f'v_mul_f32 {v(p+8*s+j)}, {v(c)}, {v(p+8*s+j)}' for j in range(7)]
        L+=[f'v_cvt_pk_bf16_f32 {v(o+4*s+j)}, {v(p+8*s+2*j)}, {v(p+8*s+2*j+1) if j<3 else "0"}' for j in range(4)]
        L.append(f'v_or_b32 {v(o+4*s+3)}, {sTagH}, {v(o+4*s+3)}')
        L.append(f'buffer_store_dwordx4 {v(o+4*s,4)}, {v(vL16)}, {sWS}, {sA0} offen offset:{1024*s} sc1')
    L.append(f's_add_u32 {sA0}, {sA0}, 32768')
    return L
emit_list(omf(0)+omf(1))
emit_list(interleave(omf(2),ofin(0)))
emit_list(interleave(omf(3),ofin(1)))
emit_list(ofin(2)+ofin(3))
k.I(f'''s_lshl_b32 {sA0}, {sTB}, 4
s_add_u32 {sA0}, {sA0}, {sH0}
s_lshl_b32 {sA0}, {sA0}, 7
s_add_u32 {sA0}, {sA0}, {WS_FO}''')
flag_store(sA0)
stamp(5)
k.I(f's_cmp_lg_u32 s2, 0\ns_cbranch_scc1 L_Qend\ns_cmp_lg_u32 {sWave}, 0\ns_cbranch_scc1 L_Qend')
k.I('v_lshlrev_b32 v1, 7, v0')
k.I(f's_mov_b32 {sA0}, {WS_FA}\ns_mov_b32 {sA1}, {WS_FA+8192}\ns_mov_b32 {sT0}, {WS_FO}\ns_mov_b32 {sT1}, {WS_FO+8192}\ns_mov_b32 {sT2}, {WS_FO+16384}\ns_mov_b32 {sT3}, {WS_FO+24576}')
poll([f'buffer_load_dword {v(8+i)}, v1, {sWS}, {s} offen sc1' for i,s in enumerate([sA0,sA1,sT0,sT1,sT2,sT3])],[(8+i,sTag,0) for i in range(6)],'ep')
k.I(f's_mov_b32 {sA0}, {WS_EPOCH}')
flag_store(sA0)
k.label('L_Qend'); k.nop(2)
stamp(15)
dump_stamps()
k.label('L_end')
k.I('s_endpgm')
k.label('L_codeend')
k.raw(f""".section .rodata,"a"
.p2align 6
.amdhsa_kernel {NAME}_kernel
  .amdhsa_next_free_vgpr 256
  .amdhsa_next_free_sgpr 102
  .amdhsa_accum_offset 256
  .amdhsa_group_segment_fixed_size 0
  .amdhsa_kernarg_size 96
  .amdhsa_user_sgpr_count 2
  .amdhsa_user_sgpr_kernarg_segment_ptr 1
  .amdhsa_system_sgpr_workgroup_id_x 1
.end_amdhsa_kernel""")
T=k.text()
if 'noalign' not in OPT:
    from align import align
    T=align(T,int(OPT.get('minrun','3')))
open(OUT,'w').write(T)
print('instructions', k.nins)
```

```python
import sys, struct
from emit import K, interleave
NAME = "gated_mix__linear_kernel_hedgehog__dense_activation_mish__prompt"
TS = '--ts' in sys.argv
CLK = 's_memtime' if '--cyc' in sys.argv else 's_memrealtime'
OPT = {a[2:].split('=')[0]:(a.split('=')[1] if '=' in a else '1') for a in sys.argv[1:] if a.startswith('--')}
OUT = [a for a in sys.argv[1:] if not a.startswith('--')][0]

def f2u(x): return struct.unpack('<I', struct.pack('<f', x))[0]
LOG2E = 1.4426950408889634; LN2 = 0.6931471805599453

WB=int(OPT.get('wb','0'),0)
WS_EPOCH=0; WS_FA=WB+0x20000; WS_FO=WB+0x24000; WS_G=WB+0x2C000; WS_P2=WB+0x30000; WS_P1=WB+0x100000; WS_O=WB+0x500000; WS_ACT=WB+0x800000; WS_TS=0xF000000
WR=0; XR=96*1024; MISC=144*1024; LDS_BYTES=160*1024
SPIN=200000

sRot='s3'; sR6='s6'; sR7='s7'
sX='s[8:11]'; sW='s[12:15]'; sWS='s[16:19]'; sW2='s[20:23]'; sWO='s[24:27]'; sOUT='s[28:31]'; sM='s[32:35]'; sG='s[36:39]'
sL2='s[40:41]'
sLn='s[42:43]'
sWave='s44'; sTB='s45'; sRole='s46'; sT64='s47'; sCT='s48'; sTag='s49'; sTagH='s50'
sLW='s51'
sT0='s52'; sT1='s53'; sT2='s54'; sT3='s55'
sMask='s[56:57]'; sHi='s[58:59]'
sW2b='s60'; sWOb='s61'; sL4='s62'; sL2k='s63'
sSpin='s88'; sH0='s89'; sA0='s90'; sA1='s91'
sTS=92
sI='s94'; sStr='s95'; sB0='s96'; sE='s97'; sA2='s98'; sA3='s99'
sRa='s4'; sRb='s5'
sFA='s81'; sAC='s82'; sGB='s83'; sOB='s78'; sFO='s79'
sT16='s80'
P = lambda i: 64+2*i

def v(a,n=1): return f'v{a}' if n==1 else f'v[{a}:{a+n-1}]'

k=K()
nlab=[0]
def newlab(p):
    nlab[0]+=1; return f'L_{p}_{nlab[0]}'

def srd(dst, ptr, size):
    d=int(dst[2:dst.index(':')])
    k.I(f's_mov_b32 s{d}, s{P(ptr)}\ns_mov_b32 s{d+1}, s{P(ptr)+1}\ns_mov_b32 s{d+2}, {size}\ns_mov_b32 s{d+3}, 0x20000')

NSTAMP=16
def tsreg(i): return sTS+i if i<2 else 64+i-2
def stamp(i):
    if 'probe' in OPT:
        if i==int(OPT['probe']):
            k.I('s_memrealtime s[100:101]'); k.force_wait(lg=0); k.I(f's_mov_b32 s{sTS+1}, s100')
        return
    if 'gts' in OPT and i not in (1,2,15): return
    if 's2ts' in OPT and i not in (2,6,10,11,15): return
    gstamp(i)
def gstamp(i):
    if not TS: return
    k.I(CLK+' s[100:101]'); k.force_wait(lg=0); k.I(f's_mov_b32 s{tsreg(i)}, s100')
def stamp_init():
    if 'probe' in OPT: k.I(f's_mov_b32 s{sTS+1}, s{sTS}')
    if not TS: return
    for i in range(1,NSTAMP): k.I(f's_mov_b32 s{tsreg(i)}, 0')
def dump_stamps():
    if 'padto' in OPT:
        lab=newlab('pad'); k.label(lab)
        k.I('s_memrealtime s[100:101]'); k.force_wait(lg=0)
        k.I(f's_sub_u32 {sT0}, s100, s{sTS+(1 if "probe" in OPT else 0)}\ns_cmp_lt_u32 {sT0}, {OPT["padto"]}\ns_cbranch_scc1 {lab}')
        return
    if not TS: return
    lab=newlab('w'); k.label(lab); k.I('s_memrealtime s[100:101]'); k.force_wait(lg=0)
    if CLK=='s_memrealtime': k.I(f's_sub_u32 {sT0}, s100, s{sTS}\ns_cmp_lt_u32 {sT0}, 2400\ns_cbranch_scc1 {lab}')
    else: k.I('s_barrier')
    k.I('s_mov_b64 exec, 1')
    k.I(f's_lshl_b32 {sT0}, s2, 3\ns_add_u32 {sT0}, {sT0}, {sWave}\ns_lshl_b32 {sT0}, {sT0}, 7\ns_add_u32 {sT0}, {sT0}, {WS_TS}\nv_mov_b32 v1, 0\nv_mov_b32 v3, 0')
    for i in range(NSTAMP):
        k.I(f'v_mov_b32 v2, s{tsreg(i)}')
        k.I(f'buffer_store_dwordx2 v[2:3], v1, {sWS}, {sT0} offen offset:{8*i}')

vLane=0; vW=4; vX=5; vW2=6; vL16=7
vA=8; vB=16; vC=20
WREG=24
FB=152; FA=160; ACC=192
vPF=143
vS2=136

def dma(voff, srd_, soff, ldsbase, ldsconst, tag, masked=False, pre='', post=''):
    L=[]
    if pre: L.append(pre)
    L.append(f's_add_u32 m0, {ldsbase}, {ldsconst}')
    so=sT0
    if isinstance(soff,int): L.append(f's_mov_b32 {sT0}, {soff}')
    elif isinstance(soff,str): so=soff
    else: L.append(f's_add_u32 {sT0}, {soff[0]}, {soff[1]}')
    if masked: L.append(f's_mov_b64 exec, {sMask}')
    L.append(f'buffer_load_dwordx4 {v(voff)}, {srd_}, {so} offen lds')
    if masked: L.append('s_mov_b64 exec, -1')
    if post: L.append(post)
    return ('\n'.join(L), tag)

ROT0 = 'rot7' in OPT
def chunk_expr(s, dst, tmp):
    if ROT0: return f's_add_u32 {dst}, {sRot}, {s}\ns_sub_u32 {tmp}, {dst}, 7\ns_cmp_ge_u32 {dst}, 7\ns_cselect_b32 {dst}, {tmp}, {dst}'
    if s==0: return f's_mov_b32 {dst}, 0'
    return f's_add_u32 {dst}, {sRot}, {s}\ns_sub_u32 {tmp}, {dst}, 6\ns_cmp_ge_u32 {dst}, 7\ns_cselect_b32 {dst}, {tmp}, {dst}'
def s1_dmas(s, masked=False):
    slot=s%3; L=[]
    pre=chunk_expr(s,sR6,sR7)+f'\ns_mul_i32 {sR7}, {sR6}, {sStr}\ns_lshl_b32 {sR7}, {sR7}, 2\ns_lshl_b32 {sR6}, {sR6}, 7'
    for m in range(2): L.append(dma(vX, sX, (sR6,64*m*896) if m else sR6, sLW, XR+slot*16384+m*8192, f's{s}', pre=pre if m==0 else ''))
    for m in range(4): L.append(dma(vW, sW, sR7, sLW, WR+slot*32768+m*8192, f's{s}', masked, post=f's_add_u32 {sR7}, {sR7}, {sStr}' if m<3 else ''))
    return L

NP=int(OPT.get('np','3'))
def _slot(s): return [('W',WR+s*32768),('W',WR+s*32768+2048),('X',s*16384)]
LOC=[('X',49152)]*NP+_slot(1)+_slot(2)+_slot(0)+_slot(1)+[('X',49152),('X',32768),('X',0),('W',0),('W',2048),('X',16384)]
def ks_lds(ks): return LOC[ks]
KA_=NP+6
KL_=NP+13
def s2_dma_ks(ks, both=False):
    kind,off=ks_lds(ks)
    base = sL4 if kind=='W' else sL2k
    dl = 16384 if kind=='W' else 8192
    tag=f'k{ks}'
    m=lambda x: x & 0xffffffff
    if ks<14:
        T=[dma(vW2, sW2, (sW2b,(16*ks+8*h)*896), base, off+1024*h, tag) for h in range(2)]
        if both: T+=[dma(vW2, sW2, (sW2b,m((16*ks+8*h-4*224)*896)), base, m(off+1024*h-dl), tag) for h in range(2)]
        return T
    hd,s=divmod(ks-14,2)
    T=[dma(vW2, sWO, (sWOb,(28*hd+14*s+8*h)*896), base, off+1024*h, tag) for h in range(2)]
    if both: T+=[dma(vW2, sWO, (sWOb,m((28*hd+14*s+8*h-4*56)*896)), base, m(off+1024*h-dl), tag) for h in range(2)]
    return T
def s2_dmas(kss, both=False): return [d for ks in kss for d in s2_dma_ks(ks,both)]
def wait_ks(kss):
    for ks in kss: k.wait_tag(f'k{ks}')
def wreg(ks,ct): return WREG+8*ks+4*ct
def s2_reads(kss, base=None, obase=None):
    base = vS2 if base is None else base
    L=[]
    for ks in kss:
        kind,off=ks_lds(ks)
        if ks<14:
            if kind=='W':
                a=base
                if off>=65536: a+=2; off-=65536
            else: a=base+4
            st=1024
        else:
            a = obase if kind=='W' else obase+2
            st=512
        for ct in range(2):
            for i in range(2):
                L.append(f'ds_read_b64_tr_b16 {v(wreg(ks,ct)+2*i,2)}, {v(a+ct)} offset:{off+st*i}')
    return L
R3=lambda a,b: list(range(a,b))

def emit_list(L):
    for x in L:
        if callable(x): x()
        elif isinstance(x,tuple): k.I(x[0],x[1])
        else: k.I(x)

def gemm1(NA, NB, tail, first, masked=False, pre_barrier=None, extra=None, init=None, pt=None):
    extra = extra or {}
    pt = pt or {}
    if MPG>=0: extra.setdefault(MPG,[]).extend(MPF)
    if 'dose' in OPT:
        g0=int(OPT['dose']); stp=int(OPT.get('dstep','3')); nd_=-(-49//DL)
        for j in range(nd_):
            extra.setdefault(g0+stp*j,[]).append((f's_mov_b32 {sT0}, {j*DL*128}\nbuffer_load_dword v{146+(j&1)}, v144, {sW2}, {sT0} offen','pf'))
        extra.setdefault(g0+stp*nd_,[]).append((f'buffer_load_dword v150, v145, {sWO}, 0 offen','pf'))
    if NB==1: fa=lambda b,t: FA+16*b+4*t; fb=lambda b,t: FB+4*b
    else:     fa=lambda b,t: FB+4*b;      fb=lambda b,t: FA+16*b+4*t
    def reads(g):
        s,ks=divmod(g,4); slot=s%3; b=g&1; A=[];B=[]
        for t in range(NB):
            B.append(f'ds_read_b128 {v(fb(b,t),4)}, {v(vB+ks)} offset:{slot*16384+t*4096}')
        for t in range(NA):
            a=vA+t+(4 if slot==2 else 0); off=(slot&1)*32768+ks*8192
            A.append([f'ds_read_b64_tr_b16 {v(fa(b,t)+2*i,2)}, {v(a)} offset:{off+2048*i}' for i in range(2)])
        if NB==1: return B+[x for l in A for x in l]
        return A[0]+B
    def mfmas(g):
        b=g&1; L=[]
        for ta in range(NA):
            for tb in range(NB):
                d=v(ACC+16*(ta*NB+tb),16)
                c = '0' if (g==0 and not init) else d
                L.append(f'v_mfma_f32_32x32x16_bf16 {d}, {v(fa(b,ta),4)}, {v(fb(b,tb),4)}, {c}')
        return L
    emit_list(first)
    if 'earlytag' not in OPT: tags2()
    if pre_barrier: pre_barrier(0)
    k.wait_tag('s0'); k.force_wait(lg=0); k.I('s_barrier')
    stamp(1)
    if 'gprio' in OPT: lab=newlab('gp'); k.I(f's_cmp_lt_u32 {sWave}, 4\ns_cbranch_scc1 {lab}\ns_setprio 1'); k.label(lab)
    emit_list(reads(0))
    if init: emit_list(init)
    pend=s1_dmas(2,masked)
    for g in range(28):
        M=mfmas(g)
        if (g+1)%4==0:
            s=(g+1)//4
            if pre_barrier and s<7: pre_barrier(s)
            if s-1 in pt and pt[s-1]<NP: wait_ks([pt[s-1]]); emit_list(s2_reads([pt[s-1]]))
            k.force_wait(lg=0)
            nb=int(OPT.get('nb','1')); emit_list(M[:nb]); M=M[nb:]
            if s<7: k.wait_tag(f's{s}')
            k.I('s_barrier')
            if 'gts' in OPT and s<7: gstamp(8+s)
            n=s+2
            pend = s1_dmas(n,masked) if n<7 else list(tail.get(n,[]))
            if s in pt: pend = s2_dmas([pt[s]])+pend
        ex = reads(g+1) if g+1<28 else []
        nd = 2 if g<27 else 0
        d=pend[:nd]; pend=pend[nd:]
        if (g+2)%4==0 and g<27: d+=pend; pend=[]
        mode=OPT.get('gm','0')
        if mode=='0': emit_list(interleave(M, ex+d+extra.get(g,[])))
        elif mode=='1': emit_list(M[:1]+ex+interleave(M[1:], d+extra.get(g,[])))
        elif mode=='2': emit_list(interleave(M, d+ex+extra.get(g,[])))
        elif mode=='3': emit_list(ex[:3]+interleave(M, ex[3:]+d+extra.get(g,[])))

def gend():
    if 'gprio' in OPT: k.I('s_setprio 0')
def cmp_all(checks):
    first=True
    for r,s,hi in checks:
        dst = 'vcc' if first else sMask
        if hi: k.I(f'v_cmp_ne_u16_sdwa {dst}, {v(r)}, {s} src0_sel:WORD_1 src1_sel:WORD_0')
        else: k.I(f'v_cmp_ne_u32 {dst}, {s}, {v(r)}')
        if not first: k.I(f's_or_b64 vcc, vcc, {sMask}')
        first=False
    k.nop(1)
def poll(loads, checks, name):
    lab=newlab(name); done=newlab(name+'d')
    k.I(f's_mov_b32 {sSpin}, {SPIN}')
    k.nop(2)
    k.label(lab)
    for l in loads: k.I(l)
    k.force_wait(vm=0)
    cmp_all(checks)
    k.I(f's_cmp_eq_u64 vcc, 0\ns_cbranch_scc1 {done}')
    if 'sleep' in OPT: k.I(f's_sleep {OPT["sleep"]}')
    k.I(f's_sub_u32 {sSpin}, {sSpin}, 1\ns_cmp_lg_u32 {sSpin}, 0\ns_cbranch_scc1 {lab}')
    k.label(done)
def check_or_poll(loads, checks, name, hint=None):
    done=newlab(name+'ok')
    cmp_all(checks)
    k.I(f's_cmp_eq_u64 vcc, 0\ns_cbranch_scc1 {done}')
    st=k.state()
    if hint: poll(hint[0],hint[1],name+'h')
    poll(loads,checks,name)
    k.label(done); k.set_state(st)

def flag_store(soff_sgpr):
    k.I(f'v_mov_b32 v1, {sTag}\nv_mov_b32 v2, 0\ns_mov_b64 exec, 1')
    k.I(f'buffer_store_dword v1, v2, {sWS}, {soff_sgpr} offen sc1')
    k.I('s_mov_b64 exec, -1')

k.raw(f'; @launch grid=(256,1,1) block=(512,1,1) lds={LDS_BYTES}')
k.raw('.amdgcn_target "amdgcn-amd-amdhsa--gfx950"\n.text')
k.raw(f'.globl {NAME}_kernel\n.p2align 8\n.type {NAME}_kernel,@function\n{NAME}_kernel:')
k.I('s_cmp_ge_u32 s2, 256\ns_cbranch_scc1 L_end')
k.I('s_load_dwordx16 s[64:79], s[0:1], 0\ns_load_dwordx8 s[80:87], s[0:1], 64')
if TS or 'padto' in OPT: k.I(CLK+' s[100:101]')
k.I('s_getpc_b64 s[4:5]'); k.label('L_pc')
k.I(f'''v_lshrrev_b32 v1, 6, v0
s_lshr_b32 {sI}, s2, 3
v_and_b32 v2, 1, v0
v_readfirstlane_b32 {sWave}, v1
v_lshl_add_u32 v2, v1, 1, v2
s_lshl_b32 {sT0}, {sI}, 4
v_add_lshl_u32 v2, v2, {sT0}, 7
v_min_u32 v2, L_codeend-L_pc-4, v2
v_and_b32 v0, 63, v0''')
if 'nocpf' not in OPT: k.I(f'global_load_dword {v(vPF)}, v2, s[4:5]','cpf')
NR = 7 if ROT0 else 6
k.I(f'''s_and_b32 {sT0}, s2, 7
s_lshr_b32 {sT3}, {sT0}, 1
s_lshl_b32 {sT1}, {sT3}, 4
s_sub_u32 {sT1}, {sT1}, 16
s_mul_i32 {sT2}, {sT3}, 12
s_add_u32 {sT2}, {sT2}, 60
s_cmp_lt_u32 {sI}, 16
s_cselect_b32 {sT1}, {sT2}, {sT1}
s_lshl_b32 {sT2}, {sT3}, 2
s_add_u32 {sT2}, {sT2}, 112
s_cmp_lt_u32 {sI}, 4
s_cselect_b32 {sT1}, {sT2}, {sT1}
s_add_u32 {sT1}, {sT1}, {sI}
s_lshr_b32 {sRole}, {sT1}, 3
s_and_b32 {sT1}, {sT1}, 7
s_and_b32 {sTB}, s2, 1
s_lshl_b32 {sTB}, {sTB}, 3
s_add_u32 {sTB}, {sTB}, {sT1}
s_lshl_b32 {sLW}, {sWave}, 10
s_mul_i32 {sT1}, {sRole}, 448
s_and_b32 {sT1}, {sT1}, 0xffffff80
s_lshl_b32 {sT2}, {sRole}, 7
s_sub_u32 {sT2}, {sT2}, 128
s_mul_i32 {sT3}, {sRole}, 384
s_sub_u32 {sT3}, {sT3}, {14*384}
s_cmp_lt_u32 {sRole}, 14
s_cselect_b32 {sB0}, {sT2}, {sT3}
s_cselect_b32 {sE}, 640, 0
s_cmp_lt_u32 {sRole}, 8
s_cselect_b32 {sB0}, {sT1}, {sB0}
s_cselect_b32 {sE}, 0, {sE}
s_movk_i32 {sStr}, 2688
s_cselect_b32 {sStr}, 3584, {sStr}
s_cmp_eq_u32 {sRole}, 14
s_cselect_b32 {sA0}, 7, 8
s_cmp_eq_u32 {sRole}, 15
s_cselect_b32 {sA0}, 0, {sA0}
s_add_u32 {sRot}, {sRole}, {sTB}
s_mul_i32 {sT1}, {sRot}, {37 if ROT0 else 43}
s_lshr_b32 {sT1}, {sT1}, 8
s_mul_i32 {sT1}, {sT1}, {NR}
s_sub_u32 {sRot}, {sRot}, {sT1}''')
if 'norot' in OPT: k.I(f's_mov_b32 {sRot}, 0')
if OPT.get('rmod')=='2': k.I(f's_and_b32 {sRot}, {sRot}, 1\ns_mul_i32 {sRot}, {sRot}, 3')
if OPT.get('rmod')=='3': k.I(f's_sub_u32 {sT1}, {sRot}, 3\ns_cmp_ge_u32 {sRot}, 3\ns_cselect_b32 {sRot}, {sT1}, {sRot}\ns_lshl_b32 {sRot}, {sRot}, 1')
k.I(f'''v_lshrrev_b32 v1, 3, v0
s_lshl_b32 {sT1}, {sWave}, 3
v_add_u32 v1, {sT1}, v1
v_lshrrev_b32 v2, 1, v1
v_xor_b32 v2, v2, v0
v_and_b32 v2, 7, v2
v_mul_u32_u24 v1, 896, v1
v_lshl_add_u32 v1, v2, 4, v1
s_mul_i32 {sT1}, {sTB}, {128*896}
v_add_u32 {v(vX)}, {sT1}, v1''')
k.I(f'''v_lshrrev_b32 v3, 5, v0
s_lshl_b32 {sT1}, {sWave}, 1
v_add_u32 v24, {sT1}, v3
v_and_b32 v25, 3, v24
v_lshlrev_b32 v25, 2, v25
v_and_b32 v26, 31, v0
v_xor_b32 v25, v25, v26
v_mul_u32_u24 v24, {sStr}, v24
v_lshl_add_u32 v24, v25, 4, v24
v_lshrrev_b32 v26, 4, v25
v_mul_u32_u24 v26, {sE}, v26
v_add3_u32 {v(vW)}, v24, v26, {sB0}
v_lshrrev_b32 v25, 2, v25
v_cmp_ne_u32 {sMask}, {sA0}, v25
s_mov_b32 s10, {2048*896}
s_mov_b32 s11, 0x20000
s_mov_b32 s15, 0x20000
s_mul_i32 s14, {sStr}, 448''')
WPF=int(OPT.get('wpf','0'))
if WPF:
    base = 256 if WPF in (12,24) else 0
    msk = 15 if WPF<20 else 7
    k.I(f'''s_and_b32 {sT1}, {sTB}, {msk}
s_lshl_b32 {sT1}, {sT1}, 3
s_add_u32 {sT1}, {sT1}, {sWave}
s_mul_i32 {sT1}, {sT1}, {WPF}
s_add_u32 {sT1}, {sT1}, {base}
v_min_u32 v39, {WPF-1}, v0
v_add_u32 v39, {sT1}, v39
v_lshrrev_b32 v40, 2, v39
v_mul_u32_u24 v40, {sStr}, v40
v_bfe_u32 v41, v39, 1, 1
v_mul_u32_u24 v41, {sE}, v41
v_and_b32 v39, 3, v39
v_lshl_add_u32 v39, v39, 7, v40
v_add3_u32 v39, v39, v41, {sB0}''')
k.I(f's_lshl_b32 {sStr}, {sStr}, 4')
k.force_wait(lg=0)
if TS or 'padto' in OPT: k.I(f's_mov_b32 s{sTS}, s100')
k.I(f'''s_mov_b32 s8, s{P(0)}
s_mov_b32 s9, s{P(0)+1}
s_cmp_lt_u32 {sRole}, 8
s_cselect_b32 s12, s{P(5)}, s{P(1)}
s_cselect_b32 s13, s{P(5)+1}, s{P(1)+1}''')
if WPF and 'wpf0' in OPT: k.I(f'buffer_load_dword v147, v39, {sW}, 0 offen','pf')
emit_list(s1_dmas(0,True))
if WPF and 'wpf0' not in OPT: k.I(f'buffer_load_dword v147, v39, {sW}, 0 offen','pf')
if 'sts' in OPT: k.I('s_memrealtime s[100:101]'); k.force_wait(lg=0); k.I('s_mov_b32 s88, s100')
k.I(f's_load_dword {sTag}, s[{P(11)}:{P(11)+1}], {WS_EPOCH}')
k.I(f'''s_add_u32 {sT1}, {sWave}, {sRot}
s_sub_u32 {sT2}, {sT1}, 6
s_cmp_ge_u32 {sT1}, 7
s_cselect_b32 {sT1}, {sT2}, {sT1}
s_cmp_eq_u32 {sWave}, 0
s_cselect_b32 {sT1}, 0, {sT1}
s_lshl_b32 {sT1}, {sT1}, 7
s_mul_i32 {sT2}, {sRole}, 448
s_lshl_b32 {sT3}, {sWave}, 6
s_add_u32 {sT2}, {sT2}, {sT3}
s_cmp_lt_u32 {sRole}, 8
s_cselect_b32 {sT1}, {sT2}, {sT1}
s_cselect_b32 s36, s{P(6)}, s{P(8)}
s_cselect_b32 s37, s{P(6)+1}, s{P(8)+1}
s_movk_i32 s38, 896
s_cselect_b32 s38, 3584, s38
s_mov_b32 s39, 0x20000
v_lshlrev_b32 v1, 1, v0
buffer_load_ushort v32, v1, {sG}, {sT1} offen''')
k.I('s_barrier')
S1=s1_dmas(1,True)
NPRE=int(OPT.get('npre','2'))
emit_list(S1[:NPRE]); S1=S1[NPRE:]
srd(sWS,11,0x10000000); srd(sW2,7,1792*896); srd(sWO,3,448*896); srd(sOUT,9,2048*896)
DL=int(OPT.get('dl','10'))
k.I(f'''s_lshl_b32 {sT0}, {sI}, 3
s_add_u32 {sT0}, {sT0}, {sWave}
s_mul_i32 {sT1}, {sT0}, 49
s_mul_i32 {sT2}, {sT0}, 13
v_min_u32 v1, {DL-1}, v0
v_min_u32 v2, 12, v0
v_add_lshl_u32 v144, v1, {sT1}, 7
v_add_lshl_u32 v145, v2, {sT2}, 7
s_and_b32 {sT0}, s2, 7
s_mul_i32 {sT3}, {sT0}, 7
s_add_u32 {sT1}, {sT1}, {sT3}
s_lshl_b32 {sT3}, {sT0}, 1
s_add_u32 {sT2}, {sT2}, {sT3}
v_min_u32 v1, 6, v0
v_min_u32 v2, 1, v0
v_add_lshl_u32 v150, v1, {sT1}, 7
v_add_lshl_u32 v151, v2, {sT2}, 7''')
if 'kqpf' in OPT:
    k.I(f'''s_lshl_b32 {sT0}, {sI}, 3
s_add_u32 {sT0}, {sT0}, {sWave}
s_mul_i32 {sT1}, {sT0}, 98
s_mul_i32 {sT2}, {sT0}, 25
v_min_u32 v1, 48, v0
v_min_u32 v2, 24, v0
v_add_lshl_u32 v144, v1, {sT1}, 7
v_add_lshl_u32 v145, v2, {sT2}, 7''')
def kqpf(ex,g):
    if 'kqpf' not in OPT: return
    ex.setdefault(g,[]).extend([(f'buffer_load_dword v149, v144, {sW2}, 0 offen','pf'),(f's_mov_b32 {sT0}, {49*128}\nbuffer_load_dword v149, v144, {sW2}, {sT0} offen','pf'),(f'buffer_load_dword v149, v145, {sWO}, 0 offen','pf')])
def pf(a):
    return [(f'buffer_load_dword v146, {v(a)}, {sW2}, 0 offen','pf'),(f'buffer_load_dword v147, {v(a+1)}, {sWO}, 0 offen','pf')]
k.I(f's_lshl_b32 {sT0}, s2, 3\ns_add_u32 {sT0}, {sT0}, {sWave}\ns_and_b32 {sT0}, {sT0}, 1023\ns_lshl_b32 {sT0}, {sT0}, 7\ns_add_u32 {sT0}, {sT0}, {WS_FA}\nv_mov_b32 v33, {sT0}')
MPF=([] if 'nompf' in OPT else pf(150))+([] if 'notouch' in OPT else [(f'buffer_load_dword v33, v33, {sWS}, 0 offen','pf')])
if 'otouch' in OPT:
    k.I(f's_lshl_b32 {sT0}, s2, 3\ns_add_u32 {sT0}, {sT0}, {sWave}\ns_lshl_b32 {sT0}, {sT0}, 10\ns_add_u32 {sT0}, {sT0}, {WS_O}\nv_and_b32 v42, 7, v0\nv_lshl_add_u32 v42, v42, 7, {sT0}')
    MPF.append((f'buffer_load_dword v146, v42, {sWS}, 0 offen','pf'))
MPG=int(OPT.get('mpg','5'))
if MPG<0: S1=S1+MPF
if 'tlbt' in OPT:
    sh=int(OPT['tlbt'])
    k.I(f'v_lshlrev_b32 v37, {sh}, v0\nv_min_u32 v38, {WB+0xf00000-128}, v37')
    TL=[(f'buffer_load_dword v146, v38, {sWS}, 0 offen','pf'),(f'buffer_load_dword v146, v37, {sW2}, 0 offen','pf'),(f'buffer_load_dword v146, v37, {sWO}, 0 offen','pf'),(f'buffer_load_dword v146, v37, {sOUT}, 0 offen','pf')]
    if 'tlbe' in OPT: emit_list(TL)
    else: S1=S1+TL
PFG=int(OPT.get('pfg','18'))
L2PF = pf(144) if 'l2pf' in OPT else []
k.I(f'''s_mov_b32 s40, {f2u(LOG2E)}
s_mov_b32 s41, {f2u(LOG2E)}
s_mov_b32 s42, {f2u(LOG2E)}
s_mov_b32 s43, {f2u(-LOG2E)}
s_mov_b32 s58, 0
s_mov_b32 s59, -1
v_lshlrev_b32 {v(vL16)}, 4, {v(vLane)}''')
k.I(f'''v_and_b32 v1, 31, v0
v_bfe_u32 v2, v0, 1, 3
v_xor_b32 v2, v2, v3
v_lshlrev_b32 v2, 4, v2
v_lshl_add_u32 v1, v1, 7, v2
s_and_b32 {sT0}, {sWave}, 3
s_lshl_b32 {sT0}, {sT0}, 12
s_cmp_lt_u32 {sRole}, 14
s_cselect_b32 {sT0}, {sT0}, 0
s_add_u32 {sT0}, {sT0}, {XR}
v_add_u32 {v(vB)}, {sT0}, v1
v_xor_b32 {v(vB+1)}, 32, {v(vB)}
v_xor_b32 {v(vB+2)}, 64, {v(vB)}
v_xor_b32 {v(vB+3)}, 96, {v(vB)}''')
k.I(f'''v_bfe_u32 v28, v0, 2, 2
v_lshl_add_u32 v27, v3, 3, v28
v_lshlrev_b32 v27, 9, v27
v_lshlrev_b32 v28, 6, v28
v_bfe_u32 v29, v0, 4, 1
v_and_b32 v26, 3, v0
v_lshl_add_u32 v29, v29, 2, v26''')
k.I(f's_cmp_ge_u32 {sRole}, 14\ns_cbranch_scc1 L_Q')
st_q=k.state()
def s2_setup():
    t0,t1,t2,t3='s84','s85','s86','s87'
    T=f'''s_sub_u32 {t1}, {sI}, 4
s_mul_i32 {t2}, {t1}, 37
s_lshr_b32 {t2}, {t2}, 8
s_mul_i32 {t3}, {t2}, 7
s_sub_u32 {sCT}, {t1}, {t3}
s_and_b32 {t0}, s2, 6
s_lshl_b32 {sT64}, {t0}, 1
s_andn2_b32 {t0}, 1, s2
s_lshl_b32 {t0}, {t0}, 4
s_add_u32 {sT64}, {sT64}, {t0}
s_add_u32 {sT64}, {sT64}, {t2}
s_lshl_b32 {sRa}, {t2}, 1
s_add_u32 {sRa}, {sRa}, {sCT}
s_mul_i32 {t0}, {sRa}, 43
s_lshr_b32 {t0}, {t0}, 8
s_mul_i32 {t0}, {t0}, 6
s_sub_u32 {sRb}, {sRa}, {t0}
s_mul_i32 {sW2b}, {sWave}, {224*896}
s_mul_i32 {sWOb}, {sWave}, {56*896}
s_lshl_b32 {sL4}, {sWave}, 12
s_lshl_b32 {sL2k}, {sWave}, 11
s_add_u32 {sL2k}, {sL2k}, {XR}
v_lshrrev_b32 v1, 3, v0
v_lshlrev_b32 v2, 1, v1
v_and_b32 v2, 4, v2
v_and_b32 v3, 7, v0
v_xor_b32 v2, v2, v3
v_mul_u32_u24 v1, 896, v1
v_lshl_add_u32 v1, v2, 4, v1
s_lshl_b32 {t0}, {sCT}, 7
v_add_u32 {v(vW2)}, {t0}, v1
v_lshrrev_b32 v1, 5, v0
v_lshlrev_b32 v1, 9, v1
v_bfe_u32 v2, v0, 2, 2
v_lshl_add_u32 v1, v2, 7, v1
v_lshrrev_b32 v2, 1, v2
v_lshl_add_u32 v1, v2, 6, v1
v_bfe_u32 v2, v0, 4, 1
v_lshl_add_u32 v1, v2, 5, v1
v_and_b32 v2, 3, v0
v_lshl_add_u32 v1, v2, 3, v1
v_xor_b32 v2, 64, v1
v_add_u32 {v(vS2)}, {sL4}, v1
v_add_u32 {v(vS2+1)}, {sL4}, v2
v_add_u32 {v(vS2+2)}, 0x10000, {v(vS2)}
v_add_u32 {v(vS2+3)}, 0x10000, {v(vS2+1)}
v_add_u32 {v(vS2+4)}, {sL2k}, v1
v_add_u32 {v(vS2+5)}, {sL2k}, v2
s_lshr_b32 {t1}, {sT64}, 1
s_lshl_b32 {sFA}, {t1}, 3
s_add_u32 {sFA}, {sFA}, {sWave}
s_lshl_b32 {sFA}, {sFA}, 7
s_and_b32 {t2}, {sT64}, 1
s_lshl_b32 {t2}, {t2}, 3
s_add_u32 {sFA}, {sFA}, {t2}
s_add_u32 {sFA}, {sFA}, {WS_FA}
s_mul_i32 {sAC}, {sT64}, 224
s_mul_i32 {t2}, {sWave}, 14
s_add_u32 {sAC}, {sAC}, {t2}
s_lshl_b32 {sAC}, {sAC}, 10
s_add_u32 {sAC}, {sAC}, {WS_ACT}
s_lshl_b32 {sGB}, {sT64}, 9
s_add_u32 {sGB}, {sGB}, {WS_G}
s_lshl_b32 {t2}, {sWave}, 1
s_lshl_b32 {sOB}, {sT64}, 5
s_add_u32 {sOB}, {sOB}, {t2}
s_lshl_b32 {sOB}, {sOB}, 11
s_add_u32 {sOB}, {sOB}, {WS_O}
s_add_u32 {sB0}, {sOB}, 32768
s_lshl_b32 {t1}, {t1}, 4
s_add_u32 {t1}, {t1}, {t2}
s_lshl_b32 {sFO}, {t1}, 7
s_add_u32 {sFO}, {sFO}, {WS_FO}'''
    return T.split('\n')
fl0=f'v_and_b32 v4, 1, v0\nv_lshlrev_b32 v4, 2, v4\nbuffer_load_dword v5, v4, {sWS}, {sFA} offen offset:32 sc1'
def tags():
    if 'earlytag' in OPT: tags2()
def tags2():
    k.force_wait(lg=0)
    k.I(f'''s_lshr_b32 {sT16}, {sTag}, 16
    s_add_u32 {sT16}, {sT16}, 0x2a5b
    s_and_b32 {sT16}, {sT16}, 0x3fff
    s_lshl_b32 {sTagH}, {sT16}, 16
    s_mul_i32 {sTag}, {sTag}, 1664525
    s_add_u32 {sTag}, {sTag}, 1013904223
    s_lshr_b32 {sTag}, {sTag}, 16
    s_or_b32 {sTag}, {sTag}, {sTagH}''')
    stamp_init(); stamp(8)
    if 'sts' in OPT: k.I(f's_mov_b32 s{tsreg(7)}, s88')
def a_addr(t, colexpr_v):
    k.I(f'''v_xor_b32 {v(vA+t)}, {v(colexpr_v)}, v28
    v_add_u32 {v(vA+t)}, {v(vA+t)}, v27
    v_add_u32 {v(vA+4+t)}, 0x10000, {v(vA+t)}''')
def spread(L, g0, g1, ex):
    n=g1-g0;
    for i in range(n):
        ex.setdefault(g0+i,[]).extend(L[i*len(L)//n:(i+1)*len(L)//n])
k.I(f's_cmp_ge_u32 {sRole}, 8\ns_cbranch_scc1 L_KV')
st_kv=k.state()

k.c('F role')
k.I(f'''s_mul_i32 {sT0}, {sRole}, 448
s_lshl_b32 {sT1}, {sWave}, 7
s_add_u32 {sT1}, {sT1}, {MISC}
v_lshl_add_u32 v149, v0, 2, {sT1}
s_and_b32 {sT1}, {sT0}, 127
s_lshr_b32 {sA1}, {sWave}, 2
s_lshl_b32 {sT2}, {sA1}, 9
s_lshl_b32 {sA1}, {sA1}, 8
s_add_u32 {sA1}, {sT1}, {sA1}
s_add_u32 {sT2}, {sT2}, {MISC}
v_lshl_add_u32 v142, v3, 4, {sT2}''')
for t in range(4):
    k.I(f'v_lshl_add_u32 v26, v29, 3, {sA1}\nv_add_u32 v26, {64*t}, v26')
    a_addr(t,26)
tags()
FSET=f'''v_mov_b32 {v(vC)}, 0.5
v_mov_b32 {v(vC+1)}, 0.5
v_mov_b32 {v(vC+2)}, 1.0
v_mov_b32 {v(vC+3)}, 1.0
s_lshl_b32 {sA2}, {sTB}, 2
s_and_b32 s84, {sWave}, 3
s_add_u32 {sA2}, {sA2}, s84
s_mul_i32 {sA2}, {sA2}, 112
s_mul_i32 s84, {sRole}, 14
s_add_u32 {sA2}, {sA2}, s84
s_and_b32 s84, {sWave}, 4
s_lshl_b32 s84, s84, 1
s_add_u32 {sA2}, {sA2}, s84
s_lshl_b32 {sA2}, {sA2}, 10
s_add_u32 {sA2}, {sA2}, {WS_ACT}
s_add_u32 {sA3}, {sA2}, 4096
s_lshl_b32 {sA0}, {sTB}, 3
s_add_u32 {sA0}, {sA0}, {sRole}
s_lshl_b32 {sA0}, {sA0}, 7
s_lshl_b32 s84, {sWave}, 2
s_add_u32 {sA0}, {sA0}, s84
s_add_u32 {sA0}, {sA0}, {WS_FA}'''.split('\n')
emit_list(s2_setup()+FSET)
k.I(f's_cmp_ge_u32 {sWave}, 4\ns_cbranch_scc1 L_F3')
st_f3=k.state()

def mish_tile(t, T, U, O):
    L=[]
    for hh in range(2):
        a=ACC+16*t+8*hh
        for i in range(0,8,2): L.append(f'v_pk_mul_f32 {v(a+i,2)}, {v(a+i,2)}, {sL2}')
        for i in range(8): L.append(f'v_exp_f32 {v(T+i)}, {v(a+i)}')
        for i in range(0,8,2): L.append(f'v_pk_fma_f32 {v(U+i,2)}, {v(T+i,2)}, {v(vC,2)}, {v(vC+2,2)}')
        for i in range(0,8,2): L.append(f'v_pk_fma_f32 {v(U+i,2)}, {v(U+i,2)}, {v(T+i,2)}, {v(vC+2,2)}')
        for i in range(8): L.append(f'v_rcp_f32 {v(U+i)}, {v(U+i)}')
        for i in range(0,8,2): L.append(f'v_pk_fma_f32 {v(U+i,2)}, {v(a+i,2)}, {v(U+i,2)}, {v(a+i,2)} neg_lo:[1,0,0] neg_hi:[1,0,0]')
        for i in range(0,8,2): L.append(f'v_cvt_pk_bf16_f32 {v(O+4*hh+i//2)}, {v(U+i)}, {v(U+i+1)}')
    return L
P1_=R3(NP,NP+3); P2_=R3(NP+3,NP+6); P3_=R3(NP+6,NP+9); P4_=R3(NP+9,NP+12); KM=NP+12
LASTRD={25:[lambda: wait_ks(P1_)]+s2_reads(P1_)[:6], 26:s2_reads(P1_)[6:]}
def f_role(NT):
    ex={g:list(x) for g,x in LASTRD.items()}
    def biasw(s):
        if s==0: k.I('v_lshlrev_b32 v34, 16, v32\nds_write_b32 v149, v34')
    init=[f'ds_read_b128 {v(ACC+16*t+4*q,4)}, v142 offset:{128*t+32*q}' for t in range(NT) for q in range(4)]
    pt={6-NP+i:i for i in range(NP)}; pt[6]=KM
    gemm1(NT,1,{7:s2_dmas(P1_),8:s2_dmas(P2_)},S1,extra=ex,pre_barrier=biasw,init=init,pt=pt)
    gend(); stamp(2)
    T=168;U=176;O=184
    def tile(t):
        L=mish_tile(t,T,U,O)
        n=len(L)//2
        st=lambda hh: f'buffer_store_dwordx4 {v(O+4*hh,4)}, {v(vL16)}, {sWS}, {sA2 if t<2 else sA3} offen offset:{(2*(t&1)+hh)*1024} sc1'
        return L[:n]+[st(0)]+L[n:]+[st(1)]
    if NT==4:
        FA_T=int(OPT.get('fat','3'))
        for t in range(4):
            emit_list(tile(t))
            if t==FA_T:
                k.force_wait(vm=2*(t-1)); k.I(f's_add_u32 {sA1}, {sA0}, 32'); flag_store(sA1)
        k.I(fl0)
        stamp(9)
        emit_list(s2_reads(P2_))
        k.I('s_barrier')
        k.force_wait(vm=0)
        flag_store(sA0)
        stamp(4)
    else:
        emit_list(s2_dmas(P3_+P4_,True))
        wait_ks(P2_); emit_list(s2_reads(P2_))
        stamp(5)
        L=tile(0)+tile(1)+tile(2)
        BP=int(OPT.get('bp','30'))
        emit_list(L[:BP]); wait_ks(P3_+P4_); k.I('s_barrier')
        k.I('s_setprio 2')
        emit_list(L[BP:])
        k.I(fl0)
        stamp(9)
        k.force_wait(vm=0)
        flag_store(sA0)
        stamp(4)
        k.waitcnt(lg=0)
        k.I('s_branch L_S2')
    k.waitcnt(lg=0)

f_role(4)

k.label('L_S2'); k.reset_state(); k.nop(2)
k.c('stage 2: k-steps 0-5 in regs, 6-11 in LDS (after the barrier for sRa=1), flag A value in v5')
if 'nos2prio' not in OPT: k.I(f's_cmp_lt_u32 {sWave}, 4\ns_cbranch_scc1 L_np\ns_setprio 2'); k.label('L_np')
check_or_poll([f'buffer_load_dword v5, v4, {sWS}, {sFA} offen offset:32 sc1'],[(5,sTag,0)],'fa')
stamp(6)
LA=int(OPT.get('la','3'))
AD=8; OAD=14
LATE=range(136,168)
free=[168,172,176,180,184,188,20,144,148,152,156,160,164]; where={}
def act_load(ks):
    b0=free.pop(0); b1=free.pop(0)
    if ks<14:
        where[(ks,0)]=b0; where[(ks,1)]=b1
        L=[]
        for tt,b in enumerate((b0,b1)):
            off=(tt*112+ks)*1024
            L.append(f's_add_u32 {sA0}, {sAC}, {off&~4095}\nbuffer_load_dwordx4 {v(b,4)}, {v(vL16)}, {sWS}, {sA0} offen offset:{off&4095} sc1')
        return L
    tt,q=divmod(2*(ks-14),4); L=[]
    for b in (b0,b1):
        ob[(q,tt)]=b
        L.append(f'buffer_load_dwordx4 {v(b,4)}, {v(vL16)}, {sWS}, {sOB if tt==0 else sB0} offen offset:{q*1024} sc1'); q+=1
    oloads.extend(L)
    return L
ob={}; oloads=[]
flB=f'buffer_load_dword v5, v4, {sWS}, {sFA} offen sc1'
fl1=f'buffer_load_dword v2, v4, {sWS}, {sFA} offen offset:16 sc1'
hload=f'buffer_load_dword v3, v1, {sWS}, {sFO} offen sc1'
FD=int(OPT.get('fd','2'))
assert LA<=4
FBP=int(OPT.get('fbp','2'))
for ks in range(LA):
    if ks==FBP: k.I(flB)
    emit_list(act_load(ks))
if FBP>=LA: k.I(flB)
for i in range(6): k.I(f'v_mov_b32 {v(AD+i)}, {v(vS2+i)}')
k.I(f'''v_lshrrev_b32 v2, 5, v0
v_mul_u32_u24 v2, 7, v2
v_bfe_u32 v3, v0, 2, 2
v_add_u32 v2, v2, v3
v_bfe_u32 v3, v2, 1, 1
v_lshlrev_b32 v2, 7, v2
v_lshl_add_u32 v2, v3, 6, v2
v_bfe_u32 v3, v0, 4, 1
v_lshl_add_u32 v2, v3, 5, v2
v_and_b32 v3, 3, v0
v_lshl_add_u32 v2, v3, 3, v2
v_xor_b32 v3, 64, v2
v_add_u32 {v(OAD)}, {sL4}, v2
v_add_u32 {v(OAD+1)}, {sL4}, v3
v_add_u32 {v(OAD+2)}, {sL2k}, v2
v_add_u32 {v(OAD+3)}, {sL2k}, v3
v_lshlrev_b32 v1, 5, v4''')
emit_list(s2_reads(R3(KA_,14),AD,OAD))
SCHED=[ks+1+LA for ks in range(14)]
if 'sched' in OPT: SCHED=[int(x) for x in OPT['sched'].split(',')]
nl=LA
F1=min(ks for ks in range(14) if SCHED[ks]>8)-FD
F2=min([ks for ks in range(14) if SCHED[ks]>14]+[14])-FD
S2T={0:4,2:5,4:7,6:8,7:9,8:12,10:13,12:14}
if 's2ts' in OPT: gstamp(3)
def acc2(tt,ct): return ACC+32*tt+16*ct
wd=s2_dmas(R3(KL_,18))
WD0=int(OPT.get('wd0','0'))
post=[]
R16='r32' not in OPT
for ks in range(14):
    M=[]
    for tt in range(2):
        for ct in range(2):
            d=v(acc2(tt,ct),16)
            M.append(f'v_mfma_f32_32x32x16_bf16 {d}, {v(wreg(ks,ct),4)}, {v(where[(ks,tt)],4)}, {"0" if ks==0 else d}')
    if ks>=2:
        free += [b for b in [where[(ks-2,0)],where[(ks-2,1)],wreg(ks-2,0),wreg(ks-2,1)] if b not in LATE]
    if ks==3: free=[b for b in free if b not in LATE]
    X=[]
    tgt=min(18, SCHED[ks])
    while nl<tgt:
        if nl==4:
            emit_list(X); X=[]; check_or_poll([flB],[(5,sTag,0)],'fab')
        if nl==8:
            emit_list(X); X=[]; check_or_poll([fl1],[(2,sTag,0)],'fa1')
        if nl==14 and 'nohint' not in OPT:
            emit_list(X); X=[]; check_or_poll([hload],[(3,sTag,0)],'foh')
        X+=act_load(nl); nl+=1
    if ks==F1: X.append(fl1)
    if ks==F2 and 'nohint' not in OPT: X.append(hload)
    if ks==1: X.append(lambda: k.waitcnt(lg=0))
    if ks>=1: X+=wd[2*(ks-1):2*ks]
    if ks==9:
        assert all(where.get((j,t),0) not in LATE for j in range(8,14) for t in range(2))
        X+= [lambda: wait_ks(R3(14,18))]+s2_reads(R3(14,16),AD,OAD)
    if ks==10: X+=s2_reads(R3(16,18),AD,OAD)
    if ks==8:
        a0=free.pop(0); a1=free.pop(0); a2=free.pop(0); a3=free.pop(0); a4=free.pop(0)
        u1,u2,u3=a4,a4+1,a4+2
        t0,t1='s84','s85'
        post=f'''v_and_b32 {v(a2)}, 31, v0
v_lshrrev_b32 {v(a2+1)}, 5, v0
v_and_b32 {v(a2+2)}, 4, v0
v_bfe_u32 {v(a2+3)}, v0, 1, 1
v_or_b32 {v(a2+2)}, {v(a2+2)}, {v(a2+3)}
v_and_b32 {v(a2+3)}, 1, v0
v_lshl_or_b32 {v(a2+2)}, {v(a2+3)}, 1, {v(a2+2)}
v_xor_b32 {v(a2+1)}, {v(a2+1)}, {v(a2+2)}
v_lshlrev_b32 {v(a2+1)}, 4, {v(a2+1)}
v_lshl_or_b32 {v(a2+2)}, {v(a2)}, 7, {v(a2+1)}
v_add_u32 {v(a0)}, {sL4}, {v(a2+2)}
v_xor_b32 {v(a0+1)}, 32, {v(a0)}
v_xor_b32 {v(a0+2)}, 64, {v(a0)}
v_xor_b32 {v(a0+3)}, 96, {v(a0)}
v_lshrrev_b32 {v(a2)}, 4, {v(a2)}
v_mul_u32_u24 {v(a2)}, {16384-2048}, {v(a2)}
v_add3_u32 {v(a1)}, {v(a2)}, {v(a2+2)}, {sL2k}
v_xor_b32 {v(a1+1)}, 32, {v(a1)}
v_xor_b32 {v(a1+2)}, 64, {v(a1)}
v_xor_b32 {v(a1+3)}, 96, {v(a1)}
v_add_u32 {v(a2)}, 0x10000, {v(a0)}
v_add_u32 {v(a2+1)}, 0x10000, {v(a0+1)}
v_add_u32 {v(a2+2)}, 0x10000, {v(a0+2)}
v_add_u32 {v(a2+3)}, 0x10000, {v(a0+3)}
v_lshrrev_b32 {v(u1)}, 3, v0
v_lshlrev_b32 {v(a4+3)}, 3, {v(u1)}
v_and_b32 {v(u2)}, 3, v0
v_bfe_u32 {v(u3)}, v0, 3, 1
v_xor_b32 {v(u2)}, {v(u2)}, {v(u3)}
v_bfe_u32 {v(u3)}, v0, 4, 1
v_lshl_or_b32 {v(u2)}, {v(u2)}, 1, {v(u3)}
v_and_b32 {v(u3)}, 4, {v(u1)}
v_xor_b32 {v(u2)}, {v(u2)}, {v(u3)}
v_lshlrev_b32 {v(u2)}, 4, {v(u2)}
v_lshl_or_b32 {v(u2)}, {v(u1)}, 7, {v(u2)}
v_bfe_u32 {v(u3)}, v0, 2, 1
s_and_b32 {t0}, {sWave}, 3
s_lshl_b32 {t0}, {t0}, 10
s_lshr_b32 {t1}, {sWave}, 2
s_lshl_b32 {t1}, {t1}, 16
s_add_u32 {t0}, {t0}, {t1}
v_lshl_add_u32 {v(a3)}, {v(u3)}, 15, {t0}
v_add_u32 {v(a3)}, {v(a3)}, {v(u2)}
s_and_b32 {t0}, {sWave}, 1
s_lshl_b32 {t0}, {t0}, 10
s_and_b32 {t1}, {sWave}, 2
s_lshl_b32 {t1}, {t1}, 13
s_add_u32 {t0}, {t0}, {t1}
s_add_u32 {t0}, {t0}, {XR}
v_add_u32 {v(u2)}, {t0}, {v(u2)}
s_lshr_b32 {t1}, {sWave}, 2
v_and_b32 {v(u3)}, {t1}, {v(u3)}
v_cmp_eq_u32 s[86:87], 1, {v(u3)}
v_mov_b32 {v(a3+2)}, 4096
v_mov_b32 {v(a3+3)}, 2048
v_cndmask_b32 {v(a3)}, {v(a3)}, {v(u2)}, s[86:87]
v_cndmask_b32 {v(a3+2)}, {v(a3+2)}, {v(a3+3)}, s[86:87]
v_xor_b32 {v(a3+1)}, 16, {v(a3)}
v_and_b32 {v(u2)}, 7, v0
v_mul_u32_u24 {v(u1)}, 896, {v(u1)}
v_lshl_add_u32 {v(u1)}, {v(u2)}, 4, {v(u1)}
s_lshl_b32 {sA2}, {sT64}, 3
s_add_u32 {sA2}, {sA2}, {sWave}
s_lshl_b32 {sGB}, {sA2}, 6
s_add_u32 {sGB}, {sGB}, {WS_G}
s_mul_i32 {sA2}, {sA2}, {8*896}
s_lshl_b32 {t1}, {sCT}, 7
s_add_u32 {sA2}, {sA2}, {t1}'''.split('\n')
        if R16: post=f'''v_and_b32 {v(a2)}, 31, v0
v_lshrrev_b32 {v(a2+1)}, 5, v0
v_and_b32 {v(a2+2)}, 7, v0
v_xor_b32 {v(a2+1)}, {v(a2+1)}, {v(a2+2)}
v_lshlrev_b32 {v(a2+1)}, 4, {v(a2+1)}
v_lshl_or_b32 {v(a2+1)}, {v(a2)}, 7, {v(a2+1)}
v_add_u32 {v(a0)}, {sL4}, {v(a2+1)}
v_xor_b32 {v(a0+1)}, 32, {v(a0)}
v_xor_b32 {v(a0+2)}, 64, {v(a0)}
v_xor_b32 {v(a0+3)}, 96, {v(a0)}
v_lshrrev_b32 {v(u1)}, 3, v0
v_lshlrev_b32 {v(a4+3)}, 3, {v(u1)}
v_xor_b32 {v(u2)}, {v(a2+2)}, {v(u1)}
v_lshlrev_b32 {v(u2)}, 4, {v(u2)}
v_lshl_or_b32 {v(u2)}, {v(u1)}, 7, {v(u2)}
s_and_b32 {t0}, {sWave}, 3
s_lshl_b32 {t0}, {t0}, 10
s_lshr_b32 {t1}, {sWave}, 2
s_lshl_b32 {t1}, {t1}, 15
s_add_u32 {t0}, {t0}, {t1}
v_add_u32 {v(a3)}, {t0}, {v(u2)}
v_mov_b32 {v(a3+1)}, 0x3f80
v_mov_b32 {v(a3+2)}, 0x3f800000
v_and_b32 {v(u3)}, 1, v0
v_cmp_eq_u32 s[86:87], 1, {v(u3)}
v_mul_u32_u24 {v(u1)}, 896, {v(u1)}
v_lshl_add_u32 {v(u1)}, {v(a2+2)}, 4, {v(u1)}
s_lshl_b32 {sA2}, {sT64}, 3
s_add_u32 {sA2}, {sA2}, {sWave}
s_lshl_b32 {sGB}, {sA2}, 6
s_add_u32 {sGB}, {sGB}, {WS_G}
s_mul_i32 {sA2}, {sA2}, {8*896}
s_lshl_b32 {t1}, {sCT}, 7
s_add_u32 {sA2}, {sA2}, {t1}'''.split('\n')
    if ks>=8 and post:
        X+=post[:16]; post=post[16:]
    gload=f'buffer_load_dwordx2 v[4:5], {v(a4+3)}, {sWS}, {sGB} offen sc1' if ks>=8 else None
    if ks==12: assert not post; X.append(gload)
    emit_list(interleave(M,X))
    if 's2ts' in OPT and ks in S2T: gstamp(S2T[ks])
stamp(10)
def wr(tt,ct):
    t=2*tt+ct
    if R16:
        p=acc2(tt,ct); L=[]
        for h in range(2):
            L+=[f'v_cvt_pk_bf16_f32 {v(p+8*h+j)}, {v(p+8*h+2*j)}, {v(p+8*h+2*j+1)}' for j in range(4)]
            L.append(f'ds_write_b128 {v(a0+2*ct+h)}, {v(p+8*h,4)} offset:{32768*tt}')
        return L
    a,off = [(a0,0),(a0,32768),(a2,0),(a1,0)][t]
    return [f'ds_write_b128 {v(a+q)}, {v(acc2(tt,ct)+4*q,4)} offset:{off}' for q in range(4)]
k.waitcnt(lg=0)
for st_ in range(4):
    tt,q0=divmod(2*st_,4)
    while nl<=14+st_: emit_list(act_load(nl)); nl+=1
    if 'noo' not in OPT: check_or_poll(oloads[2*st_:2*st_+2],[(ob[(q,tt)]+3,sT16,1) for q in (q0,q0+1)],f'fo{st_}')
    if st_==0: stamp(11)
    for q in (q0,q0+1): k.I(f'v_and_b32 {v(ob[(q,tt)]+3)}, 0xffff, {v(ob[(q,tt)]+3)}')
    M=[]
    for ct in range(2):
        for q in (q0,q0+1):
            d=v(acc2(tt,ct),16)
            M.append(f'v_mfma_f32_32x32x16_bf16 {d}, {v(wreg(14+q,ct),4)}, {v(ob[(q,tt)],4)}, {d}')
    X=[]
    if nl<18: X+=act_load(nl); nl+=1
    if st_==2: X+=wr(0,0)
    if st_==3: X+=wr(0,1)
    emit_list(interleave(M,X))
emit_list(wr(1,0))
stamp(12)
check_or_poll([gload],[(5,sTag,0)],'fg')
emit_list(wr(1,1))
k.waitcnt(lg=0); stamp(13); k.I('s_barrier')
RB=ACC
if R16:
    for s in range(8): k.I(f'ds_read_b128 {v(RB+16+4*s,4)}, {v(a3)} offset:{s*4096}')
    for s in range(2):
        for j in range(4):
            k.I(f'v_lshlrev_b32 {v(RB+8*s+2*j)}, 16, {v(RB+16+4*s+j)}\nv_and_b32 {v(RB+8*s+2*j+1)}, 0xffff0000, {v(RB+16+4*s+j)}')
    for s in range(2,8):
        for j in range(8): k.I(f'v_dot2c_f32_bf16 {v(RB+8*(s&1)+j)}, {v(RB+16+4*s+j//2)}, {v(a3+1+(j&1))}')
    k.nop(3)
    for i in range(0,8,2): k.I(f'v_pk_add_f32 {v(RB+i,2)}, {v(RB+i,2)}, {v(RB+8+i,2)}')
    for i in range(0,8,2): k.I(f'v_pk_mul_f32 {v(RB+i,2)}, {v(RB+i,2)}, v[4:5] op_sel_hi:[1,0]')
    if 'delta' in OPT:
        for i in range(int(OPT.get('dn','8'))): k.I(f'v_add_f32 {v(RB+i)}, {f2u(float(OPT["delta"]))}, {v(RB+i)}')
    for i in range(4): k.I(f'v_cvt_pk_bf16_f32 {v(a1+i)}, {v(RB+2*i)}, {v(RB+2*i+1)}')
    for i in range(2): k.I(f'v_cndmask_b32 {v(a2+i)}, {v(a1+2+i)}, {v(a1+i)}, s[86:87]')
    for i in range(2): k.I(f'v_mov_b32_dpp {v(a2+2+i)}, {v(a2+i)} quad_perm:[1,0,3,2] row_mask:0xf bank_mask:0xf')
    for i in range(2):
        k.I(f'v_cndmask_b32 {v(a0+i)}, {v(a1+i)}, {v(a2+2+i)}, s[86:87]')
        k.I(f'v_cndmask_b32 {v(a0+2+i)}, {v(a2+2+i)}, {v(a1+2+i)}, s[86:87]')
else:
    for s in range(8):
        for c in range(2):
            k.I(f'ds_read_b128 {v(RB+8*s+4*c,4)}, {v(a3+c)}')
        if s<7: k.I(f'v_add_u32 {v(a3)}, {v(a3)}, {v(a3+2)}\nv_add_u32 {v(a3+1)}, {v(a3+1)}, {v(a3+2)}')
    for s in range(1,8):
        for i in range(0,8,2): k.I(f'v_pk_add_f32 {v(RB+i,2)}, {v(RB+i,2)}, {v(RB+8*s+i,2)}')
    for i in range(0,8,2): k.I(f'v_pk_mul_f32 {v(RB+i,2)}, {v(RB+i,2)}, v[4:5] op_sel_hi:[1,0]')
    for i in range(4): k.I(f'v_cvt_pk_bf16_f32 {v(a0+i)}, {v(RB+2*i)}, {v(RB+2*i+1)}')
k.I(f'buffer_store_dwordx4 {v(a0,4)}, {v(u1)}, {sOUT}, {sA2} offen {OPT.get("outfl","sc1").replace("+"," ")}')
stamp(15)
dump_stamps()
k.I('s_endpgm')

k.label('L_F3'); k.set_state(st_f3)
f_role(3)

RV=[0,1,2,3,4,5,6,8,9,10,11,12,13,14]
def wphi_lane(dst, base_sgpr):
    k.I(f'''v_and_b32 v30, 3, v0
    v_bfe_u32 v31, v0, 3, 2
    v_lshl_add_u32 v30, v31, 2, v30
    v_lshrrev_b32 v31, 3, v30
    v_sub_u32 v30, v30, v31
    v_bfe_u32 v31, v0, 2, 1
    v_mul_u32_u24 v31, 14, v31
    v_add_u32 v30, v30, v31
    v_min_u32 v30, 27, v30
    v_lshlrev_b32 v30, 1, v30
    v_mul_u32_u24 v31, 224, v3
    v_add3_u32 {v(dst)}, v30, v31, {base_sgpr}''')
def wphi_reads(dst16, addr, off):
    return [f'ds_read_u16 {v(dst16+8*s+j)}, {v(addr)} offset:{off+(16*s+(j&3)+8*(j>>2))*56}' for s in range(2) for j in range(8)]
def wphi_pack(src16,dst8):
    L=[f'v_lshl_or_b32 {v(dst8+i)}, {v(src16+2*i+1)}, 16, {v(src16+2*i)}' for i in range(8)]
    L+=[f'v_cndmask_b32 {v(dst8+i)}, {v(dst8+i)}, 0, {sHi}' for i in (6,7)]
    return L
def feat(a, wp, PK, Pp):
    L=[f'v_cvt_pk_bf16_f32 {v(PK+i)}, {v(a+2*i)}, {v(a+2*i+1)}' for i in range(8)]
    L.append(f'v_mfma_f32_32x32x16_bf16 {v(Pp,16)}, {v(wp,4)}, {v(PK,4)}, 0')
    L.append(f'v_mfma_f32_32x32x16_bf16 {v(Pp,16)}, {v(wp+4,4)}, {v(PK+4,4)}, {v(Pp,16)}')
    return L
def feat2(Pp, E, S, norm, O):
    L=[]; A=L.append
    A(f'v_max_f32 {v(S)}, {v(Pp+RV[0])}, {v(Pp+RV[1])}')
    A(f'v_max_f32 {v(S+1)}, -{v(Pp+RV[0])}, -{v(Pp+RV[1])}')
    for i in range(2,14,2):
        A(f'v_max3_f32 {v(S)}, {v(S)}, {v(Pp+RV[i])}, {v(Pp+RV[i+1])}')
        A(f'v_max3_f32 {v(S+1)}, {v(S+1)}, -{v(Pp+RV[i])}, -{v(Pp+RV[i+1])}')
    A(f'v_permlane32_swap_b32 {v(S)}, {v(S+1)}')
    A(f'v_max_f32 {v(S)}, {v(S)}, {v(S+1)}')
    A(f'v_mul_f32 {v(S)}, s43, {v(S)}')
    A(f'v_mov_b32 {v(S+1)}, {v(S)}')
    A(f'v_permlane32_swap_b32 {v(S)}, {v(S+1)}')
    for i,r in enumerate(RV):
        h=r&1
        A(f'v_pk_fma_f32 {v(E+2*i,2)}, {v(Pp+r-h,2)}, {sLn}, {v(S,2)} op_sel:[{h},0,0] op_sel_hi:[{h},1,1]')
    for r in range(28): A(f'v_exp_f32 {v(E+r)}, {v(E+r)}')
    if norm:
        A(f'v_pk_add_f32 {v(S,2)}, {v(E,2)}, {v(E+2,2)}')
        A(f'v_pk_add_f32 {v(S+2,2)}, {v(E+4,2)}, {v(E+6,2)}')
        for r in range(4,14):
            s=S+2*(r&1)
            A(f'v_pk_add_f32 {v(s,2)}, {v(s,2)}, {v(E+2*r,2)}')
        A(f'v_pk_add_f32 {v(S,2)}, {v(S,2)}, {v(S+2,2)}')
        A(f'v_permlane32_swap_b32 {v(S)}, {v(S+1)}')
        A(f'v_add_f32 {v(S)}, {v(S)}, {v(S+1)}')
        A(f'v_rcp_f32 {v(S)}, {v(S)}')
        A(f'v_mov_b32 {v(S+1)}, {v(S)}')
        A(f'v_permlane32_swap_b32 {v(S)}, {v(S+1)}')
        for r in range(14): A(f'v_pk_mul_f32 {v(E+2*r,2)}, {v(E+2*r,2)}, {v(S,2)}')
    for sg in range(2):
        for s in range(2):
            for j in range(4):
                i=7*s+2*j
                A(f'v_cvt_pk_bf16_f32 {v(O+8*sg+4*s+j)}, {v(E+2*i+sg)}, {v(E+2*i+2+sg) if j<3 else "0"}')
    return L

k.label('L_KV'); k.set_state(st_kv)
k.c('KV role')
srd(sM,2,16*1568)
k.I(f'''s_sub_u32 {sRole}, {sRole}, 8
s_lshl_b32 {sT0}, {sRole}, 2
s_lshr_b32 {sH0}, 0xDA8630, {sT0}
s_and_b32 {sH0}, {sH0}, 15
s_lshl_b32 {sT2}, {sRole}, 7
s_mul_i32 {sA1}, {sH0}, 56
s_sub_u32 {sA1}, {sA1}, {sT2}
s_mul_i32 {sA2}, {sH0}, 1568
s_add_u32 {sA2}, {sA2}, {sLW}''')
k.I(f's_lshr_b32 {sT1}, {sWave}, 2\ns_mul_i32 {sT2}, {sT1}, 3136\ns_add_u32 {sT2}, {sT2}, {MISC}')
wphi_lane(148, sT2)
k.I(f'v_min_u32 v29, 6, v29')
for t,(o0,o1) in enumerate([(0,112),(56,312),(256,368)]):
    k.I(f's_mul_i32 {sT2}, {sT1}, {o1-o0}\ns_add_u32 {sT2}, {sT2}, {sA1}\ns_add_u32 {sT2}, {sT2}, {o0}\nv_lshl_add_u32 v26, v29, 3, {sT2}')
    a_addr(t,26)
tags()
PHI=[0,16384,98304]; VV=[131072,131072+64,147456]
WA=240; RA=20
t0,t1,t2,t3='s84','s85','s86','s87'
KSET=f'''v_and_b32 v1, 5, v0
v_and_b32 v2, 2, v0
v_lshl_or_b32 v1, v2, 2, v1
v_bfe_u32 v2, v0, 3, 1
v_lshl_or_b32 v1, v2, 1, v1
v_lshrrev_b32 v2, 5, v0
v_xor_b32 v1, v1, v2
v_and_b32 v2, 31, v0
v_lshlrev_b32 v2, 7, v2
v_lshl_or_b32 v1, v1, 3, v2
s_and_b32 {t0}, {sWave}, 3
s_lshl_b32 {t0}, {t0}, 12
v_add_u32 {v(WA)}, {t0}, v1'''.split('\n')
KSET+=[f'v_xor_b32 {v(WA+c)}, {16*c}, {v(WA)}' for c in range(1,8)]
KSET+=[f'v_add_u32 {v(WA+8+c)}, {XR}, {v(WA+c)}' for c in range(8)]
KSET+=f'''v_bfe_u32 v1, v0, 2, 2
v_lshrrev_b32 v2, 5, v0
v_lshl_add_u32 v3, v2, 3, v1
v_lshlrev_b32 v3, 7, v3
v_and_b32 v20, 1, v1
v_lshl_or_b32 v20, v2, 1, v20
v_lshrrev_b32 v1, 1, v1
v_lshl_or_b32 v20, v1, 3, v20
v_bfe_u32 v1, v0, 4, 1
v_and_b32 v2, 3, v0
v_lshl_add_u32 v1, v1, 2, v2
v_xor_b32 v20, v20, v1
v_lshl_add_u32 v20, v20, 3, v3
s_lshr_b32 {t0}, {sWave}, 1
s_and_b32 {t1}, {sWave}, 1
s_lshl_b32 {t1}, {t1}, 6
s_and_b32 {t2}, {t0}, 1
s_lshl_b32 {sA0}, {t2}, 6
s_lshl_b32 {t2}, {t2}, 14
s_lshr_b32 {t3}, {t0}, 1
s_mul_i32 {sA1}, {t3}, 98304
s_add_u32 {t2}, {t2}, {sA1}
s_lshl_b32 {t3}, {t3}, 14
s_add_u32 {t3}, {t3}, 131072
v_xor_b32 v22, {sA0}, v20
v_xor_b32 v20, {t1}, v20
v_xor_b32 v21, 32, v20
v_xor_b32 v23, 32, v22
v_add_u32 v20, {t2}, v20
v_add_u32 v21, {t2}, v21
v_add_u32 v22, {t3}, v22
v_add_u32 v23, {t3}, v23
s_add_u32 {sA0}, {sH0}, {t0}
s_lshl_b32 {sA0}, {sA0}, 1
s_and_b32 {t1}, {sWave}, 1
s_add_u32 {sA0}, {sA0}, {t1}
s_lshl_b32 {sA0}, {sA0}, 6
s_add_u32 {sA0}, {sA0}, {sTB}
s_lshl_b32 {sA0}, {sA0}, 9
s_add_u32 {sA0}, {sA0}, {WS_P1}
s_add_u32 {sA1}, {sA0}, 16384
v_lshrrev_b32 v1, 5, v0
v_and_b32 v2, 31, v0
v_lshlrev_b32 v2, 4, v2
v_lshl_or_b32 v143, v1, 13, v2'''.split('\n')
WP=120
PK=144;PK2=152;Pp=160;Pp2=176;E=ACC;S=ACC+28;O=ACC+32
r0=wphi_reads(88,148,0); r1=wphi_reads(104,148,1568)
ex={g:list(x) for g,x in LASTRD.items()}
ex.update({4:r0[:11],5:r0[11:]+r1[:6],6:r1[6:], 7:wphi_pack(88,WP), 8:wphi_pack(104,WP+8)})
emit_list(s2_setup()+KSET)
gemm1(3,1,{7:s2_dmas(P1_),8:s2_dmas(P2_[:2])},S1+[dma(vL16, sM, sA2, sLW, MISC, 's1')],extra=ex,pt={7-NP+i:i for i in range(NP)})
gend(); stamp(2)
def wr_tile(src, base, n):
    hi = 4 if (base&64) else 0; b=base&~64
    if b>=XR: hi+=8; b-=XR
    return [f'ds_write_b64 {v(WA+hi+q)}, {v(src+2*q,2)} offset:{b}' for q in range(n)]
def v_tile(t, arr, tmp):
    a=ACC+16*t
    L=[f'v_cndmask_b32 {v(a+12)}, {v(a+12)}, 1.0, {sHi}']
    L+=[f'v_cvt_pk_bf16_f32 {v(tmp+i)}, {v(a+2*i)}, {v(a+2*i+1)}' for i in range(8)]
    return L+wr_tile(tmp, arr, 4)
emit_list(feat(ACC, WP, PK, Pp))
k.I(f's_cmp_ge_u32 {sWave}, 4\ns_cbranch_scc1 L_KV1')
st=k.state()
emit_list(feat(ACC+16, WP+8, PK2, Pp2))
emit_list(v_tile(2,VV[0],8))
emit_list(feat2(Pp,E,S,True,O)+wr_tile(O,PHI[0],8)+feat2(Pp2,E,S,True,Pp)+wr_tile(Pp,PHI[1],8))
k.force_wait(lg=0)
k.label('L_KV2'); k.nop(2)
k.I('s_barrier')
stamp(3)
k.I(f's_cmp_ge_u32 {sWave}, 6\ns_cbranch_scc1 L_KV3')
KA=ACC; KB=144; KD=176; O=ACC+32
for ks in range(8):
    for i in range(2):
        k.I(f'ds_read_b64_tr_b16 {v(KA+4*ks+2*i,2)}, {v(RA+i)} offset:{2048*ks+512*i}')
        k.I(f'ds_read_b64_tr_b16 {v(KB+4*ks+2*i,2)}, {v(RA+2+i)} offset:{2048*ks+512*i}')
    if ks>=2: k.I(f'v_mfma_f32_32x32x16_bf16 {v(KD,16)}, {v(KA+4*(ks-2),4)}, {v(KB+4*(ks-2),4)}, {"0" if ks==2 else v(KD,16)}')
for ks in (6,7): k.I(f'v_mfma_f32_32x32x16_bf16 {v(KD,16)}, {v(KA+4*ks,4)}, {v(KB+4*ks,4)}, {v(KD,16)}')
for s in range(2):
    for j in range(4): k.I(f'v_cvt_pk_bf16_f32 {v(O+4*s+j)}, {v(KD+8*s+2*j)}, {v(KD+8*s+2*j+1) if j<3 else "0"}')
    k.I(f'v_or_b32 {v(O+4*s+3)}, {sTagH}, {v(O+4*s+3)}')
    k.I(f'buffer_store_dwordx4 {v(O+4*s,4)}, v143, {sWS}, {sA0 if s==0 else sA1} offen sc1')
k.label('L_KV3'); k.nop(4)
k.I('s_barrier')
stamp(4)
k.vm=[]
KVE=P4_[:int(OPT.get('kve','0'))]
emit_list(s2_dmas(P2_[2:]+P3_+[x for x in P4_ if x not in KVE]+[KM]))
k.I(fl0)
wait_ks(P2_); emit_list(s2_reads(P2_))
k.force_wait(vm=0,lg=0)
stamp(9)
k.I('s_branch L_S2')
k.label('L_KV1'); k.set_state(st)
emit_list(v_tile(1,VV[1],8)+v_tile(2,VV[2],PK2))
emit_list(s2_dmas(KVE,True))
emit_list(feat2(Pp,E,S,True,O)+wr_tile(O,PHI[2],8))
k.force_wait(vm=0,lg=0)
k.I('s_branch L_KV2')

k.label('L_Q'); k.set_state(st_q)
k.c('Q role')
srd(sM,2,16*1568)
k.I(f'''s_sub_u32 {sRole}, {sRole}, 14
s_lshl_b32 {sH0}, {sRole}, 3
s_add_u32 {sH0}, {sH0}, {sWave}
s_mul_i32 {sA1}, {sH0}, 56
s_sub_u32 {sA1}, {sA1}, {sB0}
s_lshl_b32 {sA0}, {sA0}, 6
s_mul_i32 {sA2}, {sH0}, 1568
s_lshl_b32 {sA3}, {sWave}, 11
s_add_u32 {sT2}, {sA3}, {MISC}''')
wphi_lane(148, sT2)
k.I(f'''v_lshl_add_u32 v26, v29, 3, {sA1}
v_mov_b32 v1, {sA0}
v_cmp_eq_u32 vcc, 7, v29
v_cndmask_b32 v26, v26, v1, vcc''')
a_addr(0,26)
k.I(f'''v_and_b32 v2, 3, v0
v_lshlrev_b32 v2, 6, v2
v_xor_b32 v2, v2, v1
v_lshl_add_u32 v9, v0, 9, v2
s_mul_i32 {sT1}, {sWave}, 43
s_lshr_b32 {sT1}, {sT1}, 7
s_mul_i32 {sT1}, {sT1}, 3
s_sub_u32 {sT1}, {sWave}, {sT1}
s_lshl_b32 {sT1}, {sT1}, 15
v_add_u32 v9, {sT1}, v9''')
tags()
def gate(s):
    lab=newlab('g')
    if s==0: k.I('v_mov_b32 v34, v32\nv_mov_b32 v35, 0')
    k.I(f's_cmp_lg_u32 {sWave}, {s}\ns_cbranch_scc1 {lab}')
    k.I('ds_write_b64 v9, v[34:35]')
    k.label(lab)
WP=128; EQ=24
r0=wphi_reads(48,148,0)
QSET=f'''v_and_b32 v1, 3, v0
v_bfe_u32 v2, v0, 3, 1
v_lshl_add_u32 v1, v2, 2, v1
v_bfe_u32 v2, v0, 4, 1
v_bfe_u32 v3, v0, 2, 1
v_lshl_add_u32 v3, v2, 1, v3
v_mul_u32_u24 v3, 7, v3
v_add_u32 v3, v3, v1
v_lshl_add_u32 v2, v2, 3, v1
v_cmp_eq_u32 s[86:87], 15, v2
v_mov_b32 v2, 28
v_cmp_eq_u32 vcc, 7, v1
v_cndmask_b32 v3, v3, v2, vcc
v_lshlrev_b32 v20, 2, v3
v_add_u32 v36, 128, v20
v_mov_b32 v21, 0x3f800000
v_mov_b32 v22, 0x3f80
v_lshlrev_b32 v23, 7, v0
s_and_b32 s84, {sTB}, 1
s_lshl_b32 s84, s84, 2
s_and_b32 s85, {sH0}, 11
s_add_u32 s84, s84, s85
s_lshl_b32 s84, s84, 3
s_lshr_b32 s85, {sTB}, 1
s_add_u32 s84, s84, s85
s_lshl_b32 {sA1}, s84, 9
s_add_u32 {sA1}, {sA1}, {WS_P2}
s_lshl_b32 {sA0}, s84, 13
s_add_u32 {sA0}, {sA0}, {WS_P1}'''.split('\n')
ex={4:r0[:8],5:r0[8:],6:wphi_pack(48,WP),19:[(f'buffer_load_dword v147, v23, {sWS}, {sA0} offen','pf')]}
emit_list(QSET)
kqpf(ex,int(OPT.get('qpg','20')))
gemm1(1,4,{},S1+[dma(vL16, sM, sA2, sA3, MISC, 's1'), dma(vL16, sM, (sA2,1024), sA3, MISC+1024, 's1')],masked=True,pre_barrier=gate,extra=ex)
gend(); stamp(2)
PK=88;E=136;S=164;GG=168
k.I('v_mov_b32 v19, v36')
PP=[96,112]
emit_list(feat(ACC, WP, PK, PP[0]))
for t in range(4): k.I(f'v_mul_f32 {v(GG+t)}, s40, {v(ACC+16*t+12)}')
for t in range(4): k.I(f'v_min_f32 {v(GG+t)}, {f2u(86.0)}, {v(GG+t)}')
for t in range(4): k.I(f'v_exp_f32 {v(GG+t)}, {v(GG+t)}')
for t in range(4): k.I(f'v_mul_f32 {v(GG+t)}, s40, {v(GG+t)}')
for t in range(4): k.I(f'v_mov_b32 {v(172+t)}, {v(GG+t)}')
for t in range(4): k.I(f'v_permlane32_swap_b32 {v(172+t)}, {v(GG+t)}')
k.I(f's_cmp_lg_u32 {sH0}, 0\ns_cbranch_scc1 L_Q1')
st=k.state()
k.I(f'''v_cndmask_b32 v2, {v(GG)}, {v(GG+1)}, {sHi}
v_cndmask_b32 v10, {v(GG+2)}, {v(GG+3)}, {sHi}
v_add_f32 v2, s40, v2
v_add_f32 v10, s40, v10
v_rcp_f32 v2, v2
v_rcp_f32 v10, v10
v_mov_b32 v3, {sTag}
v_mov_b32 v11, {sTag}
v_lshlrev_b32 v1, 3, v0
s_lshl_b32 {sT1}, {sTB}, 10
s_add_u32 {sT1}, {sT1}, {WS_G}
buffer_store_dwordx2 v[2:3], v1, {sWS}, {sT1} offen sc1
buffer_store_dwordx2 v[10:11], v1, {sWS}, {sT1} offen offset:512 sc1''')
k.label('L_Q1'); k.set_state(st)
emit_list(feat(ACC+16, WP, 176, PP[1]))
for a_,b_ in zip(feat2(PP[0],E,S,True,EQ), feat2(PP[1],ACC,ACC+28,True,EQ+16)): k.I(a_); k.I(b_)
emit_list(feat(ACC+32, WP, PK, PP[0])+feat(ACC+48, WP, 176, PP[1]))
for a_,b_ in zip(feat2(PP[0],E,S,True,EQ+32), feat2(PP[1],ACC,ACC+28,True,EQ+48)): k.I(a_); k.I(b_)
stamp(3)
k.I(f'''s_lshl_b32 {sA2}, {sH0}, 12
s_add_u32 {sA2}, {sA2}, {WS_P2}
s_cmp_ge_u32 {sWave}, 4
s_cbranch_scc1 L_Q2''')
k.I(f's_add_u32 {sT1}, {sA0}, 4096')
R0=96; U0=ACC
poll([f'buffer_load_dwordx4 {v(R0+4*i,4)}, {v(vL16)}, {sWS}, {[sA0,sT1][i>>2]} offen offset:{(i&3)*1024} sc1' for i in range(8)],
     [(R0+4*i+3,sT16,1) for i in range(8)],'p1')
stamp(6)
if 'nodot' in OPT:
    for i in range(8):
        for j in range(4):
            k.I(f'v_lshlrev_b32 {v(U0+8*i+2*j)}, 16, {v(R0+4*i+j)}')
            k.I(f'v_and_b32 {v(U0+8*i+2*j+1)}, 0xffff0000, {v(R0+4*i+j)}')
    for st_ in (32,16,8):
        for j in range(0,st_,2): k.I(f'v_pk_add_f32 {v(U0+j,2)}, {v(U0+j,2)}, {v(U0+st_+j,2)}')
else:
    for j in range(4):
        k.I(f'v_lshlrev_b32 {v(U0+2*j)}, 16, {v(R0+j)}')
        k.I(f'v_and_b32 {v(U0+2*j+1)}, 0xffff0000, {v(R0+j)}')
    for i in range(1,8):
        for j in range(7):
            k.I(f'v_dot2c_f32_bf16 {v(U0+j)}, {v(R0+4*i+j//2)}, {v(22 if j%2==0 else 21)}')
    k.nop(3)
for j in range(4): k.I(f'v_permlane32_swap_b32 {v(U0+j)}, {v(U0+4+j)}')
for j in range(0,4,2): k.I(f'v_pk_add_f32 {v(U0+j,2)}, {v(U0+j,2)}, {v(U0+4+j,2)}')
k.I(f'''v_cvt_pk_bf16_f32 v12, {v(U0)}, {v(U0+1)}
v_cvt_pk_bf16_f32 v13, {v(U0+2)}, {v(U0+3)}
ds_bpermute_b32 v8, v20, v12
ds_bpermute_b32 v9, v20, v13
ds_bpermute_b32 v10, v19, v12
ds_bpermute_b32 v11, v19, v13
v_and_b32 v11, 0xffff, v11
v_or_b32 v11, {sTagH}, v11
s_not_b64 exec, {sHi}
buffer_store_dwordx4 v[8:11], {v(vL16)}, {sWS}, {sA1} offen sc1
s_mov_b64 exec, -1''')
k.label('L_Q2'); k.nop(2)
if 'nop2bar' not in OPT: k.I('s_barrier')
stamp(7)
KV=136
k.I(f'''s_lshl_b32 {sA0}, {sTB}, 6
s_add_u32 {sA0}, {sA0}, {sH0}
s_lshl_b32 {sA0}, {sA0}, 11
s_add_u32 {sA0}, {sA0}, {WS_O}
s_mov_b32 {sT1}, {f2u(1e-6)}''')
poll([f'buffer_load_dwordx4 {v(KV+4*i,4)}, {v(vL16)}, {sWS}, {sA2} offen offset:{i*1024} sc1' for i in range(4)],
     [(KV+4*i+3,sT16,1) for i in range(4)],'p2')
stamp(4)
def omf(t):
    d=v(ACC+16*t,16)
    return [f'v_mfma_f32_32x32x16_bf16 {d}, {v(KV+4*i,4)}, {v(EQ+16*t+4*i,4)}, {"0" if i==0 else d}' for i in range(4)]
def ofin(t):
    p=ACC+16*t; o=96+8*t; c=8+t
    L=[f'v_add_f32 {v(c)}, {sT1}, {v(p+7)}', f'v_rcp_f32 {v(c)}, {v(c)}', f'v_mul_f32 {v(c)}, {v(c)}, {v(GG+t)}']
    for s in range(2):
        L+=[f'v_mul_f32 {v(p+8*s+j)}, {v(c)}, {v(p+8*s+j)}' for j in range(7)]
        L+=[f'v_cvt_pk_bf16_f32 {v(o+4*s+j)}, {v(p+8*s+2*j)}, {v(p+8*s+2*j+1) if j<3 else "0"}' for j in range(4)]
        L.append(f'v_or_b32 {v(o+4*s+3)}, {sTagH}, {v(o+4*s+3)}')
        if 'noost' not in OPT: L.append(f'buffer_store_dwordx4 {v(o+4*s,4)}, {v(vL16)}, {sWS}, {sA0} offen offset:{1024*s} sc1')
    L.append(f's_add_u32 {sA0}, {sA0}, 32768')
    return L
emit_list(omf(0)+omf(1))
emit_list(interleave(omf(2),ofin(0)))
emit_list(interleave(omf(3),ofin(1)))
emit_list(ofin(2)+ofin(3))
k.I(f'''s_lshl_b32 {sA0}, {sTB}, 4
s_add_u32 {sA0}, {sA0}, {sH0}
s_lshl_b32 {sA0}, {sA0}, 7
s_add_u32 {sA0}, {sA0}, {WS_FO}''')
flag_store(sA0)
stamp(5)
k.I(f's_cmp_lg_u32 s2, 0\ns_cbranch_scc1 L_Qend\ns_cmp_lg_u32 {sWave}, 0\ns_cbranch_scc1 L_Qend')
k.I('v_lshlrev_b32 v1, 7, v0')
k.I(f's_mov_b32 {sA0}, {WS_FA}\ns_mov_b32 {sA1}, {WS_FA+8192}\ns_mov_b32 {sT0}, {WS_FO}\ns_mov_b32 {sT1}, {WS_FO+8192}\ns_mov_b32 {sT2}, {WS_FO+16384}\ns_mov_b32 {sT3}, {WS_FO+24576}')
poll([f'buffer_load_dword {v(8+i)}, v1, {sWS}, {s} offen sc1' for i,s in enumerate([sA0,sA1,sT0,sT1,sT2,sT3])],[(8+i,sTag,0) for i in range(6)],'ep')
k.I(f's_mov_b32 {sA0}, {WS_EPOCH}')
flag_store(sA0)
k.label('L_Qend'); k.nop(2)
stamp(15)
dump_stamps()
k.label('L_end')
k.I('s_endpgm')
k.label('L_codeend')
k.raw(f""".section .rodata,"a"
.p2align 6
.amdhsa_kernel {NAME}_kernel
  .amdhsa_next_free_vgpr 256
  .amdhsa_next_free_sgpr 102
  .amdhsa_accum_offset 256
  .amdhsa_group_segment_fixed_size 0
  .amdhsa_kernarg_size 96
  .amdhsa_user_sgpr_count 2
  .amdhsa_user_sgpr_kernarg_segment_ptr 1
  .amdhsa_system_sgpr_workgroup_id_x 1
.end_amdhsa_kernel""")
T=k.text()
if 'noalign' not in OPT:
    from align import align
    T=align(T,int(OPT.get('minrun','6')))
open(OUT,'w').write(T)
print('instructions', k.nins)
```
